```python
import torch

def _softmax(x, axis=-1):
    return torch.softmax(x, dim=axis)
def _gelu(x):
    return torch.nn.functional.gelu(x, approximate="tanh")
def _silu(x):
    return torch.nn.functional.silu(x)
def _sigmoid(x):
    return torch.sigmoid(x)
def _layernorm(x, axis=-1, eps=1e-5):
    m = x.mean(dim=axis, keepdim=True)
    v = x.var(dim=axis, keepdim=True, unbiased=False)
    return (x - m) / torch.sqrt(v + eps)
def _scatter_add(tgt, idx, src, axis=0):
    return tgt.clone().index_add_(axis, idx, src)
def _segment_sum(src, seg, n):
    out = torch.zeros((n,) + src.shape[1:], dtype=src.dtype)
    return out.index_add_(0, seg, src)
def _pad(x, pw):
    flat = tuple(v for pair in reversed(pw) for v in pair)
    return torch.nn.functional.pad(x, flat)

kernel_name = 'sequential_preLN__sliding_block__glu_gated_swiglu__prompt'

def setup_inputs():

    _w = (lambda a: (lambda t: t.to(torch.bfloat16) if t.is_floating_point() else t)(torch.as_tensor(a)))
    def _A_setup():
        B, S, D = 1, 2048, 1024
        return {
            "x": _w((lambda *s: torch.randn(*s, dtype=torch.bfloat16) * 0.05)(B, S, D)),
            "wqkv": _w((lambda *s: torch.randn(*s, dtype=torch.bfloat16) * 0.05)(D, 3 * D)),
            "wo": _w((lambda *s: torch.randn(*s, dtype=torch.bfloat16) * 0.05)(D, D)),
        }
    _A_in = _A_setup()

    def _B_setup():
        B, S, D, F = 1, 2048, 1024, 3584
        return {
            "x": _w((lambda *s: torch.randn(*s, dtype=torch.bfloat16) * 0.05)(B, S, D)),
            "w1": _w((lambda *s: torch.randn(*s, dtype=torch.bfloat16) * 0.8)(D, F) * (2.0 / D) ** 0.5),
            "w3": _w((lambda *s: torch.randn(*s, dtype=torch.bfloat16) * 0.8)(D, F) * (2.0 / D) ** 0.5),
            "w2": _w((lambda *s: torch.randn(*s, dtype=torch.bfloat16) * 0.8)(F, D) * (2.0 / F) ** 0.5),
        }
    _B_in = _B_setup()

    return {
        "A_x": _A_in["x"],
        "A_wqkv": _A_in["wqkv"],
        "A_wo": _A_in["wo"],
        "B_x": _B_in["x"],
        "B_w1": _B_in["w1"],
        "B_w3": _B_in["w3"],
        "B_w2": _B_in["w2"],
    }

def reference(A_x, A_wqkv, A_wo, B_x, B_w1, B_w3, B_w2):
    def _A_ref(x, wqkv, wo):
        B, S, D = x.shape
        H = 32; Dh = D // H; W = 256
        qkv = (lambda x, *d: x.permute(*d))((x @ wqkv).reshape(B, S, 3, H, Dh), 2, 0, 3, 1, 4)
        q, k, v = qkv[0], qkv[1], qkv[2]
        scores = torch.einsum("bhqd,bhkd->bhqk", q, k) * (Dh ** -0.5)
        idx = torch.arange(S)
        mask = (idx[:, None] - idx[None, :] >= 0) & (idx[:, None] - idx[None, :] < W)
        scores = torch.where(mask[None, None], scores, -1e9)
        p = _softmax(scores, axis=-1)
        o = torch.einsum("bhqk,bhkd->bhqd", p, v)
        return (lambda x, *d: x.permute(*d))(o, 0, 2, 1, 3).reshape(B, S, D) @ wo

    def _B_ref(x, w1, w3, w2):
        gate = torch.einsum("bsd,df->bsf", x, w1)
        up = torch.einsum("bsd,df->bsf", x, w3)
        h = _silu(gate) * up
        out = torch.einsum("bsf,fd->bsd", h, w2)
        return out

    x = A_x
    h = x + _A_ref(_layernorm(x, axis=-1), A_wqkv, A_wo)
    h2 = h + _B_ref(_layernorm(h, axis=-1), B_w1, B_w3, B_w2)
    return h2
```

```python
import sys

S = 2048; D = 1024; F = 3584
MB = 1 << 20
WS_XN = 0 * MB
WS_QKV = 4 * MB
WS_O = 16 * MB
WS_H = 20 * MB
WS_HN = 24 * MB
WS_ACT = 28 * MB
WS_BYTES = 268435456

KA_X, KA_WQKV, KA_WO, KA_BX, KA_W1, KA_W3, KA_W2, KA_OUT, KA_DBG, KA_WS = [8 * i for i in range(10)]

HEADER = """; Kernarg layout for this problem (80 bytes, ptrs only, base s[0:1]):
"""


class Kern:
    def __init__(self, name, grid, block, lds, nvgpr, nsgpr=96):
        self.name = name; self.grid = grid; self.block = block; self.lds = lds
        self.nvgpr = nvgpr; self.nsgpr = nsgpr
        self.lines = []

    def e(self, s):
        for ln in s.strip().split("\n"):
            self.lines.append("    " + ln.strip())

    def lab(self, l):
        self.lines.append(l + ":")

    def text(self):
        out = [".globl %s" % self.name, ".p2align 8", ".type %s,@function" % self.name, "%s:" % self.name]
        out += self.lines
        return "\n".join(out)

    def desc(self):
        nv = self.nvgpr
        acc = (nv + 3) // 4 * 4
        return """.amdhsa_kernel %s
  .amdhsa_next_free_vgpr %d
  .amdhsa_next_free_sgpr %d
  .amdhsa_accum_offset %d
  .amdhsa_group_segment_fixed_size 0
  .amdhsa_kernarg_size 80
  .amdhsa_user_sgpr_count 2
  .amdhsa_user_sgpr_kernarg_segment_ptr 1
  .amdhsa_system_sgpr_workgroup_id_x 1
.end_amdhsa_kernel""" % (self.name, nv, self.nsgpr, acc)


def srd(k, sreg, slot, off, nbytes):
    k.e("s_load_dwordx2 s[%d:%d], s[0:1], %d" % (sreg, sreg + 1, slot))
    k.e("s_waitcnt lgkmcnt(0)")
    if off:
        k.e("s_add_u32 s%d, s%d, %d" % (sreg, sreg, off))
        k.e("s_addc_u32 s%d, s%d, 0" % (sreg + 1, sreg + 1))
    k.e("s_and_b32 s%d, s%d, 0xffff" % (sreg + 1, sreg + 1))
    k.e("s_mov_b32 s%d, %d" % (sreg + 2, nbytes))
    k.e("s_mov_b32 s%d, 0x00020000" % (sreg + 3))


def gen_ln(name, src_slot, src_off, dst_off):
    k = Kern(name, (512, 1, 1), (256, 1, 1), 0, 48)
    k.e("s_cmp_ge_u32 s2, 512")
    k.e("s_cbranch_scc1 %s_end" % name)
    srd(k, 4, src_slot, src_off, S * D * 2)
    srd(k, 8, KA_WS, dst_off, S * D * 2)
    k.e("""
    v_lshrrev_b32 v1, 6, v0
    v_and_b32 v2, 63, v0
    s_lshl_b32 s3, s2, 13
    v_lshlrev_b32 v1, 11, v1
    v_lshlrev_b32 v2, 4, v2
    v_add3_u32 v1, v1, v2, s3
    buffer_load_dwordx4 v[4:7], v1, s[4:7], 0 offen
    buffer_load_dwordx4 v[8:11], v1, s[4:7], 0 offen offset:1024
    s_waitcnt vmcnt(0)
    """)
    for i in range(8):
        k.e("v_lshlrev_b32 v%d, 16, v%d" % (16 + 2 * i, 4 + i))
        k.e("v_and_b32 v%d, 0xffff0000, v%d" % (17 + 2 * i, 4 + i))

    def wave_sum(src, tmp):
        for off in (0x041F, 0x081F, 0x101F, 0x201F, 0x401F):
            k.e("ds_swizzle_b32 v%d, v%d offset:0x%04X" % (tmp, src, off))
            k.e("s_waitcnt lgkmcnt(0)")
            k.e("v_add_f32 v%d, v%d, v%d" % (src, src, tmp))
        k.e("s_nop 1")
        k.e("v_readlane_b32 s12, v%d, 0" % src)
        k.e("v_readlane_b32 s13, v%d, 32" % src)
        k.e("s_nop 1")
        k.e("v_mov_b32 v%d, s12" % src)
        k.e("v_add_f32 v%d, s13, v%d" % (src, src))

    k.e("v_add_f32 v32, v16, v17")
    for i in range(2, 16):
        k.e("v_add_f32 v32, v32, v%d" % (16 + i))
    wave_sum(32, 33)
    k.e("v_mul_f32 v32, 0x3a800000, v32")
    k.e("v_mov_b32 v34, 0")
    for i in range(16):
        k.e("v_sub_f32 v33, v%d, v32" % (16 + i))
        k.e("v_fmac_f32 v34, v33, v33")
    wave_sum(34, 33)
    k.e("v_mul_f32 v34, 0x3a800000, v34")
    k.e("v_cvt_pk_bf16_f32 v35, v32, v34")
    k.e("v_lshlrev_b32 v32, 16, v35")
    k.e("v_and_b32 v34, 0xffff0000, v35")
    k.e("v_add_f32 v34, 0x3727c5ac, v34")
    k.e("v_cvt_pk_bf16_f32 v35, v34, v34")
    k.e("v_lshlrev_b32 v34, 16, v35")
    k.e("v_sqrt_f32 v34, v34")
    k.e("s_nop 0")
    k.e("v_cvt_pk_bf16_f32 v35, v34, v34")
    k.e("v_lshlrev_b32 v34, 16, v35")
    k.e("v_rcp_f32 v34, v34")
    k.e("s_nop 0")
    for i in range(8):
        a, b = 16 + 2 * i, 17 + 2 * i
        k.e("v_sub_f32 v%d, v%d, v32" % (a, a))
        k.e("v_sub_f32 v%d, v%d, v32" % (b, b))
        k.e("v_cvt_pk_bf16_f32 v36, v%d, v%d" % (a, b))
        k.e("v_lshlrev_b32 v%d, 16, v36" % a)
        k.e("v_and_b32 v%d, 0xffff0000, v36" % b)
        k.e("v_mul_f32 v%d, v%d, v34" % (a, a))
        k.e("v_mul_f32 v%d, v%d, v34" % (b, b))
        k.e("v_cvt_pk_bf16_f32 v%d, v%d, v%d" % (4 + i, a, b))
    k.e("""
    buffer_store_dwordx4 v[4:7], v1, s[8:11], 0 offen
    buffer_store_dwordx4 v[8:11], v1, s[8:11], 0 offen offset:1024
    """)
    k.lab("%s_end" % name)
    k.e("s_endpgm")
    return k


def f3(k):
    return (k & 3) | ((k >> 1) & 4)


def f2(k):
    return ((k >> 1) & 1) | ((k >> 2) & 2)


def gen_gemm(name, BM, WM, WN, Kdim, a_slot, a_off, subs, colblocks, ntn, epi):
    NW = WM * WN
    RB = BM // WM // 16
    CB = len(colblocks)
    ntm = S // BM
    nwg = ntm * ntn
    nk = Kdim // 64
    A_BYTES = BM * 128
    sub_lds = []
    o = A_BYTES
    for (slot, off, ldb, width) in subs:
        sub_lds.append(o); o += 64 * width * 2
    STAGE = o
    STAGE_P = 65536 if STAGE <= 65536 else None
    assert STAGE_P
    k = Kern(name, (nwg, 1, 1), (64 * NW, 1, 1), 2 * STAGE_P, 0)
    lab = lambda s: "%s_%s" % (name, s)
    k.e("s_cmp_ge_u32 s2, %d" % nwg)
    k.e("s_cbranch_scc1 %s" % lab("end"))
    srd(k, 4, a_slot, a_off, S * Kdim * 2)
    for i, (slot, off, ldb, width) in enumerate(subs):
        srd(k, 8 + 4 * i, slot, off, Kdim * ldb * 2)
    k.e("s_and_b32 s20, s2, %d" % (ntm - 1))
    k.e("s_lshr_b32 s21, s2, %d" % (ntm.bit_length() - 1))
    k.e("v_lshrrev_b32 v1, 6, v0")
    k.e("s_nop 0")
    k.e("v_readfirstlane_b32 s22, v1")
    k.e("s_and_b32 s23, s22, %d" % (WM - 1))
    k.e("s_lshr_b32 s24, s22, %d" % (WM.bit_length() - 1))
    k.e("v_and_b32 v0, 63, v0")
    nA = BM // 8
    nA_w = nA // NW
    vA_dma = 2
    k.e("""
    v_lshrrev_b32 v1, 3, v0
    v_and_b32 v40, 7, v0
    v_xor_b32 v40, v40, v1
    v_lshlrev_b32 v40, 4, v40
    """)
    k.e("s_mul_i32 s25, s22, %d" % (nA_w * 8))
    k.e("s_mul_i32 s26, s20, %d" % BM)
    k.e("s_add_u32 s25, s25, s26")
    k.e("v_add_u32 v1, s25, v1")
    k.e("s_mov_b32 s26, %d" % (Kdim * 2))
    k.e("v_mul_lo_u32 v1, v1, s26")
    k.e("v_add_u32 v%d, v1, v40" % vA_dma)
    for t in range(1, nA_w):
        k.e("v_add_u32 v%d, %d, v%d" % (vA_dma + t, t * 8 * Kdim * 2, vA_dma))
    vB_dma = vA_dma + nA_w
    bdma = []
    vb = vB_dma
    for si, (slot, off, ldb, width) in enumerate(subs):
        pitch = width * 2
        nB = 64 * pitch // 1024
        assert nB % NW == 0, (name, si, nB, NW)
        nB_w = nB // NW
        rows_per = 1024 // pitch
        cpr = pitch // 16
        fz = f3 if pitch >= 256 else f2
        for t in range(nB_w):
            k.e("s_mul_i32 s25, s22, %d" % (nB_w * rows_per))
            k.e("s_add_u32 s25, s25, %d" % (t * rows_per))
            k.e("v_lshrrev_b32 v1, %d, v0" % (cpr.bit_length() - 1))
            k.e("v_add_u32 v1, s25, v1")
            if fz is f3:
                k.e("v_and_b32 v40, 3, v1")
                k.e("v_lshrrev_b32 v41, 1, v1")
                k.e("v_and_b32 v41, 4, v41")
                k.e("v_or_b32 v40, v40, v41")
            else:
                k.e("v_lshrrev_b32 v40, 1, v1")
                k.e("v_and_b32 v40, 1, v40")
                k.e("v_lshrrev_b32 v41, 2, v1")
                k.e("v_and_b32 v41, 2, v41")
                k.e("v_or_b32 v40, v40, v41")
            k.e("v_lshlrev_b32 v40, 1, v40")
            k.e("v_and_b32 v41, %d, v0" % (cpr - 1))
            k.e("v_xor_b32 v40, v40, v41")
            k.e("v_lshlrev_b32 v40, 4, v40")
            k.e("s_mov_b32 s26, %d" % (ldb * 2))
            k.e("v_mul_lo_u32 v1, v1, s26")
            k.e("v_add_u32 v1, v1, v40")
            k.e("s_mul_i32 s26, s21, %d" % (width * 2))
            k.e("v_add_u32 v%d, s26, v1" % vb)
            bdma.append((si, t, vb, nB_w))
            vb += 1
    vAr = vb
    k.e("""
    v_and_b32 v1, 15, v0
    v_lshlrev_b32 v1, 7, v1
    v_lshrrev_b32 v40, 4, v0
    v_and_b32 v41, 7, v0
    """)
    k.e("s_mul_i32 s25, s23, %d" % (RB * 16 * 128))
    k.e("v_add_u32 v1, s25, v1")
    k.e("v_xor_b32 v42, v40, v41")
    k.e("v_lshlrev_b32 v42, 4, v42")
    k.e("v_add_u32 v%d, v1, v42" % vAr)
    k.e("v_or_b32 v40, 4, v40")
    k.e("v_xor_b32 v42, v40, v41")
    k.e("v_lshlrev_b32 v42, 4, v42")
    k.e("v_add_u32 v%d, v1, v42" % (vAr + 1))
    vBr = vAr + 2
    for cb, (si, pmul, padd) in enumerate(colblocks):
        slot, off, ldb, width = subs[si]
        pitch = width * 2
        k.e("""
        v_lshrrev_b32 v1, 4, v0
        v_lshlrev_b32 v1, 3, v1
        v_bfe_u32 v40, v0, 2, 2
        v_add_u32 v1, v1, v40
        """)
        if pitch >= 256:
            k.e("v_bfe_u32 v41, v0, 4, 1")
            k.e("v_lshlrev_b32 v41, 2, v41")
            k.e("v_or_b32 v41, v41, v40")
        else:
            k.e("v_bfe_u32 v41, v0, 3, 1")
            k.e("v_bfe_u32 v42, v0, 4, 1")
            k.e("v_lshlrev_b32 v42, 1, v42")
            k.e("v_or_b32 v41, v41, v42")
        k.e("s_mul_i32 s25, s24, %d" % pmul)
        k.e("s_add_u32 s25, s25, %d" % padd)
        k.e("v_xor_b32 v41, s25, v41")
        k.e("v_lshlrev_b32 v41, 5, v41")
        k.e("s_mov_b32 s26, %d" % pitch)
        k.e("v_mul_lo_u32 v1, v1, s26")
        k.e("v_and_b32 v42, 3, v0")
        k.e("v_lshlrev_b32 v42, 3, v42")
        k.e("v_add3_u32 v%d, v1, v41, v42" % (vBr + cb))
    vfr = vBr + CB
    vfr = (vfr + 3) // 4 * 4
    assert vfr <= 40 or True
    fA = lambda s, rb: vfr + (s * RB + rb) * 4
    fB = lambda s, cb: vfr + 2 * RB * 4 + (s * CB + cb) * 4
    vacc = vfr + 2 * RB * 4 + 2 * CB * 4
    acc = lambda rb, cb: vacc + (rb * CB + cb) * 4
    vend = vacc + RB * CB * 4
    k.nvgpr = vend
    for r in range(vacc, vend):
        k.e("v_mov_b32 v%d, 0" % r)
    k.e("s_mov_b32 s30, 0")
    for i in range(len(subs)):
        k.e("s_mov_b32 s%d, 0" % (31 + i))
    k.e("s_mov_b32 s34, 0")
    k.e("s_mul_i32 s35, s22, %d" % (nA_w * 1024))

    def dma():
        for t in range(nA_w):
            k.e("s_add_u32 m0, s34, s35")
            if t:
                k.e("s_add_u32 m0, m0, %d" % (t * 1024))
            k.e("s_nop 0")
            k.e("buffer_load_dwordx4 v%d, s[4:7], s30 offen lds" % (vA_dma + t))
        for (si, t, vreg, nB_w) in bdma:
            k.e("s_mul_i32 s36, s22, %d" % (nB_w * 1024))
            k.e("s_add_u32 s36, s36, %d" % (sub_lds[si] + t * 1024))
            k.e("s_add_u32 m0, s34, s36")
            k.e("s_nop 0")
            k.e("buffer_load_dwordx4 v%d, s[%d:%d], s%d offen lds" % (vreg, 8 + 4 * si, 11 + 4 * si, 31 + si))
        k.e("s_add_u32 s30, s30, 128")
        for i, (slot, off, ldb, width) in enumerate(subs):
            k.e("s_add_u32 s%d, s%d, %d" % (31 + i, 31 + i, 64 * ldb * 2))
        k.e("s_xor_b32 s34, s34, %d" % STAGE_P)

    def reads(st, kk):
        for rb in range(RB):
            k.e("ds_read_b128 v[%d:%d], v%d offset:%d" % (fA(st, rb), fA(st, rb) + 3, vAr + kk, rb * 2048))
        for cb, (si, pmul, padd) in enumerate(colblocks):
            pitch = subs[si][3] * 2
            base = sub_lds[si] + kk * 32 * pitch
            k.e("ds_read_b64_tr_b16 v[%d:%d], v%d offset:%d" % (fB(st, cb), fB(st, cb) + 1, vBr + cb, base))
            k.e("ds_read_b64_tr_b16 v[%d:%d], v%d offset:%d" % (fB(st, cb) + 2, fB(st, cb) + 3, vBr + cb, base + 4 * pitch))

    def mfmas(st):
        for rb in range(RB):
            for cb in range(CB):
                a = acc(rb, cb)
                k.e("v_mfma_f32_16x16x32_bf16 v[%d:%d], v[%d:%d], v[%d:%d], v[%d:%d]" % (
                    a, a + 3, fB(st, cb), fB(st, cb) + 3, fA(st, rb), fA(st, rb) + 3, a, a + 3))

    nrd = RB + 2 * CB
    dma()
    k.e("s_waitcnt vmcnt(0)")
    k.e("s_barrier")
    k.e("s_mov_b32 s37, 0")
    k.lab(lab("loop"))
    k.e("s_cmp_lt_u32 s37, %d" % (nk - 1))
    k.e("s_cbranch_scc0 %s" % lab("nodma"))
    dma()
    k.lab(lab("nodma"))
    reads(0, 0)
    reads(1, 1)
    k.e("s_waitcnt lgkmcnt(%d)" % min(nrd, 15))
    mfmas(0)
    k.e("s_waitcnt lgkmcnt(0)")
    mfmas(1)
    for r in range(2 + CB):
        k.e("v_xor_b32 v%d, %d, v%d" % (vAr + r, STAGE_P, vAr + r))
    k.e("s_waitcnt vmcnt(0)")
    k.e("s_barrier")
    k.e("s_add_u32 s37, s37, 1")
    k.e("s_cmp_lt_u32 s37, %d" % nk)
    k.e("s_cbranch_scc1 %s" % lab("loop"))
    k.e("s_nop 7")
    epi(k, dict(RB=RB, CB=CB, acc=acc, colblocks=colblocks, subs=subs, BM=BM, tmp=4, vend=vend))
    k.lab(lab("end"))
    k.e("s_endpgm")
    return k


def epi_store_factory(ldc, c_slot, c_off, c_bytes, res=None):
    def epi(k, c):
        RB, CB, acc, colblocks, subs = c["RB"], c["CB"], c["acc"], c["colblocks"], c["subs"]
        srd(k, 40, c_slot, c_off, c_bytes)
        if res:
            srd(k, 44, res[0], res[1], c_bytes)
        k.e("s_mul_i32 s25, s20, %d" % c["BM"])
        k.e("s_mul_i32 s26, s23, %d" % (RB * 16))
        k.e("s_add_u32 s25, s25, s26")
        k.e("v_and_b32 v1, 15, v0")
        k.e("v_add_u32 v1, s25, v1")
        k.e("s_mov_b32 s26, %d" % (ldc * 2))
        k.e("v_mul_lo_u32 v1, v1, s26")
        k.e("v_lshrrev_b32 v2, 4, v0")
        k.e("v_lshlrev_b32 v2, 3, v2")
        k.e("v_add_u32 v1, v1, v2")
        subbase = 0
        sb = []
        tot = sum(s[3] for s in subs)
        for s_ in subs:
            sb.append(subbase); subbase += s_[3]
        for cb, (si, pmul, padd) in enumerate(colblocks):
            k.e("s_mul_i32 s25, s21, %d" % (tot * 2))
            k.e("s_mul_i32 s26, s24, %d" % (pmul * 32))
            k.e("s_add_u32 s25, s25, s26")
            k.e("s_add_u32 s25, s25, %d" % ((sb[si] + padd * 16) * 2))
            k.e("v_add_u32 v3, s25, v1")
            if res:
                for rb in range(RB):
                    if rb:
                        k.e("v_add_u32 v%d, %d, v3" % (4 + rb, rb * 16 * ldc * 2))
                    else:
                        k.e("v_mov_b32 v4, v3")
                    k.e("buffer_load_dwordx2 v[%d:%d], v%d, s[44:47], 0 offen" % (12 + 2 * rb, 13 + 2 * rb, 4 + rb))
                k.e("s_waitcnt vmcnt(0)")
            for rb in range(RB):
                a = acc(rb, cb)
                if res:
                    k.e("v_cvt_pk_bf16_f32 v30, v%d, v%d" % (a, a + 1))
                    k.e("v_cvt_pk_bf16_f32 v31, v%d, v%d" % (a + 2, a + 3))
                    for j, (src, r) in enumerate(((30, 12 + 2 * rb), (31, 13 + 2 * rb))):
                        k.e("v_lshlrev_b32 v32, 16, v%d" % src)
                        k.e("v_and_b32 v33, 0xffff0000, v%d" % src)
                        k.e("v_lshlrev_b32 v34, 16, v%d" % r)
                        k.e("v_and_b32 v35, 0xffff0000, v%d" % r)
                        k.e("v_add_f32 v32, v32, v34")
                        k.e("v_add_f32 v33, v33, v35")
                        k.e("v_cvt_pk_bf16_f32 v%d, v32, v33" % (a + j))
                    k.e("buffer_store_dwordx2 v[%d:%d], v%d, s[40:43], 0 offen" % (a, a + 1, 4 + rb))
                else:
                    k.e("v_cvt_pk_bf16_f32 v%d, v%d, v%d" % (a, a, a + 1))
                    k.e("v_cvt_pk_bf16_f32 v%d, v%d, v%d" % (a + 1, a + 2, a + 3))
                    k.e("v_add_u32 v4, %d, v3" % (rb * 16 * ldc * 2))
                    k.e("buffer_store_dwordx2 v[%d:%d], v4, s[40:43], 0 offen" % (a, a + 1))
    return epi


def epi_swiglu(k, c):
    RB, CB, acc, colblocks, subs = c["RB"], c["CB"], c["acc"], c["colblocks"], c["subs"]
    ldc = F
    srd(k, 40, KA_WS, WS_ACT, S * F * 2)
    k.e("s_mul_i32 s25, s20, %d" % c["BM"])
    k.e("s_mul_i32 s26, s23, %d" % (RB * 16))
    k.e("s_add_u32 s25, s25, s26")
    k.e("v_and_b32 v1, 15, v0")
    k.e("v_add_u32 v1, s25, v1")
    k.e("s_mov_b32 s26, %d" % (ldc * 2))
    k.e("v_mul_lo_u32 v1, v1, s26")
    k.e("v_lshrrev_b32 v2, 4, v0")
    k.e("v_lshlrev_b32 v2, 3, v2")
    k.e("v_add_u32 v1, v1, v2")
    half = CB // 2
    width = subs[0][3]
    for cb in range(half):
        si, pmul, padd = colblocks[cb]
        assert si == 0 and colblocks[cb + half] == (1, pmul, padd)
        k.e("s_mul_i32 s25, s21, %d" % (width * 2))
        k.e("s_mul_i32 s26, s24, %d" % (pmul * 32))
        k.e("s_add_u32 s25, s25, s26")
        k.e("s_add_u32 s25, s25, %d" % (padd * 32))
        k.e("v_add_u32 v3, s25, v1")
        for rb in range(RB):
            g = acc(rb, cb); u = acc(rb, cb + half)
            k.e("v_cvt_pk_bf16_f32 v4, v%d, v%d" % (g, g + 1))
            k.e("v_cvt_pk_bf16_f32 v5, v%d, v%d" % (g + 2, g + 3))
            k.e("v_cvt_pk_bf16_f32 v6, v%d, v%d" % (u, u + 1))
            k.e("v_cvt_pk_bf16_f32 v7, v%d, v%d" % (u + 2, u + 3))
            for j in range(2):
                k.e("v_lshlrev_b32 v8, 16, v%d" % (4 + j))
                k.e("v_and_b32 v9, 0xffff0000, v%d" % (4 + j))
                k.e("v_mul_f32 v10, 0xbfb8aa3b, v8")
                k.e("v_mul_f32 v11, 0xbfb8aa3b, v9")
                k.e("v_exp_f32 v10, v10")
                k.e("v_exp_f32 v11, v11")
                k.e("s_nop 0")
                k.e("v_add_f32 v10, 1.0, v10")
                k.e("v_add_f32 v11, 1.0, v11")
                k.e("v_rcp_f32 v10, v10")
                k.e("v_rcp_f32 v11, v11")
                k.e("s_nop 0")
                k.e("v_mul_f32 v8, v8, v10")
                k.e("v_mul_f32 v9, v9, v11")
                k.e("v_cvt_pk_bf16_f32 v8, v8, v9")
                k.e("v_lshlrev_b32 v9, 16, v8")
                k.e("v_and_b32 v8, 0xffff0000, v8")
                k.e("v_lshlrev_b32 v10, 16, v%d" % (6 + j))
                k.e("v_and_b32 v11, 0xffff0000, v%d" % (6 + j))
                k.e("v_mul_f32 v9, v9, v10")
                k.e("v_mul_f32 v8, v8, v11")
                k.e("v_cvt_pk_bf16_f32 v%d, v9, v8" % (g + j))
            k.e("v_add_u32 v12, %d, v3" % (rb * 16 * ldc * 2))
            k.e("buffer_store_dwordx2 v[%d:%d], v12, s[40:43], 0 offen" % (g, g + 1))


def gen_attn(name):
    NQB = S // 128
    nwg = 32 * NQB
    KV_ROWS = 384
    K_LDS = 0
    V_LDS = KV_ROWS * 64
    k = Kern(name, (nwg, 1, 1), (256, 1, 1), 2 * KV_ROWS * 64, 0)
    lab = lambda s: "%s_%s" % (name, s)
    k.e("s_cmp_ge_u32 s2, %d" % nwg)
    k.e("s_cbranch_scc1 %s" % lab("end"))
    srd(k, 4, KA_WS, WS_QKV, S * 3 * D * 2)
    srd(k, 8, KA_WS, WS_O, S * D * 2)
    k.e("s_and_b32 s20, s2, 31")
    k.e("s_lshr_b32 s21, s2, 5")
    k.e("v_lshrrev_b32 v1, 6, v0")
    k.e("s_nop 0")
    k.e("v_readfirstlane_b32 s22, v1")
    k.e("v_and_b32 v0, 63, v0")
    k.e("""
    v_lshrrev_b32 v1, 2, v0
    v_and_b32 v2, 3, v0
    v_bfe_u32 v3, v0, 4, 2
    v_xor_b32 v2, v2, v3
    v_lshlrev_b32 v2, 4, v2
    """)
    k.e("s_lshl_b32 s23, s21, 7")
    k.e("s_mul_i32 s24, s22, 96")
    k.e("s_add_u32 s23, s23, s24")
    k.e("s_sub_u32 s23, s23, 256")
    k.e("v_add_u32 v1, s23, v1")
    k.e("s_mov_b32 s24, %d" % (3 * D * 2))
    k.e("v_mul_lo_u32 v1, v1, s24")
    k.e("v_add_u32 v1, v1, v2")
    k.e("s_lshl_b32 s24, s20, 6")
    k.e("v_add_u32 v1, s24, v1")
    k.e("s_mul_i32 s25, s22, 6144")
    for mat, ldsb in ((1, K_LDS), (2, V_LDS)):
        for t in range(6):
            k.e("v_add_u32 v2, %d, v1" % (t * 16 * 3 * D * 2 + mat * D * 2))
            k.e("s_add_u32 m0, s25, %d" % (ldsb + t * 1024))
            k.e("s_nop 0")
            k.e("buffer_load_dwordx4 v2, s[4:7], 0 offen lds")
    k.e("s_lshl_b32 s23, s21, 7")
    k.e("s_lshl_b32 s24, s22, 5")
    k.e("s_add_u32 s23, s23, s24")
    k.e("v_and_b32 v1, 31, v0")
    k.e("v_add_u32 v1, s23, v1")
    k.e("s_mov_b32 s24, %d" % (3 * D * 2))
    k.e("v_mul_lo_u32 v1, v1, s24")
    k.e("v_lshrrev_b32 v2, 5, v0")
    k.e("v_lshlrev_b32 v2, 4, v2")
    k.e("s_lshl_b32 s24, s20, 6")
    k.e("v_add3_u32 v1, v1, v2, s24")
    k.e("buffer_load_dwordx4 v[4:7], v1, s[4:7], 0 offen")
    k.e("buffer_load_dwordx4 v[8:11], v1, s[4:7], 0 offen offset:32")
    k.e("""
    v_and_b32 v1, 31, v0
    v_lshlrev_b32 v12, 6, v1
    v_bfe_u32 v2, v0, 2, 2
    v_lshrrev_b32 v3, 5, v0
    v_xor_b32 v13, v3, v2
    v_lshlrev_b32 v13, 4, v13
    v_add_u32 v13, v12, v13
    v_or_b32 v3, 2, v3
    v_xor_b32 v14, v3, v2
    v_lshlrev_b32 v14, 4, v14
    v_add_u32 v14, v12, v14
    """)
    k.e("s_lshl_b32 s24, s22, 11")
    k.e("v_add_u32 v13, s24, v13")
    k.e("v_add_u32 v14, s24, v14")
    k.e("""
    v_bfe_u32 v1, v0, 5, 1
    v_lshlrev_b32 v1, 2, v1
    v_bfe_u32 v2, v0, 2, 2
    v_add_u32 v1, v1, v2
    v_bfe_u32 v2, v0, 4, 1
    v_lshlrev_b32 v2, 1, v2
    v_bfe_u32 v3, v0, 1, 1
    v_or_b32 v2, v2, v3
    v_and_b32 v3, 1, v0
    v_lshlrev_b32 v3, 3, v3
    """)
    for j in range(4):
        k.e("v_add_u32 v19, %d, v1" % (8 * j))
        k.e("v_bfe_u32 v20, v19, 2, 2")
        k.e("v_xor_b32 v20, v20, v2")
        k.e("v_lshlrev_b32 v20, 4, v20")
        k.e("v_lshlrev_b32 v19, 6, v19")
        k.e("v_add3_u32 v%d, v19, v20, v3" % (15 + j))
        k.e("v_add_u32 v%d, s24, v%d" % (15 + j, 15 + j))
    k.e("s_waitcnt vmcnt(0)")
    k.e("s_barrier")
    SB = 32
    KF = 20
    for b in range(9):
        k.e("ds_read_b128 v[20:23], v13 offset:%d" % (K_LDS + b * 2048))
        k.e("ds_read_b128 v[24:27], v14 offset:%d" % (K_LDS + b * 2048))
        k.e("s_waitcnt lgkmcnt(0)")
        s0 = SB + b * 16
        k.e("v_mfma_f32_32x32x16_bf16 v[%d:%d], v[20:23], v[4:7], 0" % (s0, s0 + 15))
        k.e("v_mfma_f32_32x32x16_bf16 v[%d:%d], v[24:27], v[8:11], v[%d:%d]" % (s0, s0 + 15, s0, s0 + 15))
    k.e("s_nop 15")
    NS = 144
    for r in range(0, NS, 2):
        a = SB + r
        k.e("v_cvt_pk_bf16_f32 v28, v%d, v%d" % (a, a + 1))
        k.e("v_lshlrev_b32 v%d, 16, v28" % a)
        k.e("v_and_b32 v%d, 0xffff0000, v28" % (a + 1))
        k.e("v_mul_f32 v%d, 0x3e3504f3, v%d" % (a, a))
        k.e("v_mul_f32 v%d, 0x3e3504f3, v%d" % (a + 1, a + 1))
        k.e("v_cvt_pk_bf16_f32 v28, v%d, v%d" % (a, a + 1))
        k.e("v_lshlrev_b32 v%d, 16, v28" % a)
        k.e("v_and_b32 v%d, 0xffff0000, v28" % (a + 1))
    k.e("v_and_b32 v1, 31, v0")
    k.e("v_lshrrev_b32 v2, 5, v0")
    k.e("v_lshlrev_b32 v2, 2, v2")
    k.e("v_sub_u32 v1, v1, v2")
    k.e("v_mov_b32 v3, 0xce6e6b28")
    for r in range(16):
        c = (r & 3) + 8 * (r >> 2)
        k.e("v_cmp_ge_i32 vcc, v1, %d" % c)
        k.e("s_nop 1")
        k.e("v_cndmask_b32 v%d, v%d, v3, vcc" % (SB + r, SB + r))
        k.e("v_cndmask_b32 v%d, v3, v%d, vcc" % (SB + 128 + r, SB + 128 + r))
    k.e("s_lshl_b32 s23, s21, 2")
    k.e("s_add_u32 s23, s23, s22")
    for b in range(8):
        k.e("s_cmp_lt_u32 s23, %d" % (8 - b))
        k.e("s_cbranch_scc0 %s" % lab("nm%d" % b))
        for r in range(16):
            k.e("v_mov_b32 v%d, v3" % (SB + b * 16 + r))
        k.lab(lab("nm%d" % b))
    k.e("v_max_f32 v1, v%d, v%d" % (SB, SB + 1))
    for r in range(2, NS, 2):
        k.e("v_max3_f32 v1, v1, v%d, v%d" % (SB + r, SB + r + 1))
    k.e("v_mov_b32 v2, v1")
    k.e("s_nop 1")
    k.e("v_permlane32_swap_b32 v1, v2")
    k.e("v_max_f32 v1, v1, v2")
    k.e("v_mul_f32 v1, 0x3fb8aa3b, v1")
    k.e("v_mov_b32 v2, 0")
    for r in range(NS):
        a = SB + r
        k.e("v_fma_f32 v%d, v%d, s26, -v1" % (a, a))
        k.e("v_exp_f32 v%d, v%d" % (a, a))
    k.e("s_nop 0")
    for r in range(NS):
        k.e("v_add_f32 v2, v2, v%d" % (SB + r))
    k.e("v_mov_b32 v3, v2")
    k.e("s_nop 1")
    k.e("v_permlane32_swap_b32 v2, v3")
    k.e("v_add_f32 v2, v2, v3")
    k.e("v_rcp_f32 v2, v2")
    k.e("s_nop 0")
    PB = 176
    for b in range(9):
        for j in range(8):
            a = SB + b * 16 + 2 * j
            k.e("v_mul_f32 v%d, v%d, v2" % (a, a))
            k.e("v_mul_f32 v%d, v%d, v2" % (a + 1, a + 1))
            k.e("v_cvt_pk_bf16_f32 v%d, v%d, v%d" % (PB + b * 8 + j, a, a + 1))
    for b in range(9):
        off = V_LDS + b * 2048
        k.e("ds_read_b64_tr_b16 v[20:21], v15 offset:%d" % off)
        k.e("ds_read_b64_tr_b16 v[22:23], v16 offset:%d" % off)
        k.e("ds_read_b64_tr_b16 v[24:25], v17 offset:%d" % off)
        k.e("ds_read_b64_tr_b16 v[26:27], v18 offset:%d" % off)
        k.e("s_waitcnt lgkmcnt(0)")
        p = PB + b * 8
        if b == 0:
            k.e("v_mfma_f32_32x32x16_bf16 v[32:47], v[20:23], v[%d:%d], 0" % (p, p + 3))
        else:
            k.e("v_mfma_f32_32x32x16_bf16 v[32:47], v[20:23], v[%d:%d], v[32:47]" % (p, p + 3))
        k.e("v_mfma_f32_32x32x16_bf16 v[32:47], v[24:27], v[%d:%d], v[32:47]" % (p + 4, p + 7))
    k.e("s_nop 15")
    k.e("s_lshl_b32 s23, s21, 7")
    k.e("s_lshl_b32 s24, s22, 5")
    k.e("s_add_u32 s23, s23, s24")
    k.e("v_and_b32 v1, 31, v0")
    k.e("v_add_u32 v1, s23, v1")
    k.e("v_lshlrev_b32 v1, 11, v1")
    k.e("v_lshrrev_b32 v2, 5, v0")
    k.e("v_lshlrev_b32 v2, 3, v2")
    k.e("s_lshl_b32 s24, s20, 6")
    k.e("v_add3_u32 v1, v1, v2, s24")
    for j in range(4):
        k.e("v_cvt_pk_bf16_f32 v%d, v%d, v%d" % (48 + 2 * j, 32 + 4 * j, 33 + 4 * j))
        k.e("v_cvt_pk_bf16_f32 v%d, v%d, v%d" % (49 + 2 * j, 34 + 4 * j, 35 + 4 * j))
        k.e("buffer_store_dwordx2 v[%d:%d], v1, s[8:11], 0 offen offset:%d" % (48 + 2 * j, 49 + 2 * j, 16 * j))
    k.lab(lab("end"))
    k.e("s_endpgm")
    k.nvgpr = 248
    k.lines.insert(2, "    s_mov_b32 s26, 0x3fb8aa3b")
    return k


def build():
    ks = []
    ks.append(gen_ln("ln1_kernel", KA_X, 0, WS_XN))
    subs1 = [(KA_WQKV, 0, 3072, 128), (KA_WQKV, 0, 3072, 64)]
    ks.append(gen_gemm_g1())
    ks.append(gen_attn("attn_kernel"))
    ks.append(gen_gemm("g2_kernel", 128, 2, 2, 1024, KA_WS, WS_O, [(KA_WO, 0, 1024, 64)],
                       [(0, 2, 0), (0, 2, 1)], 16,
                       epi_store_factory(1024, KA_WS, WS_H, S * D * 2, res=(KA_X, 0))))
    ks.append(gen_ln("ln2_kernel", KA_WS, WS_H, WS_HN))
    ks.append(gen_gemm("g3_kernel", 256, 4, 2, 1024, KA_WS, WS_HN,
                       [(KA_W1, 0, F, 128), (KA_W3, 0, F, 128)],
                       [(0, 4, j) for j in range(4)] + [(1, 4, j) for j in range(4)], 28, epi_swiglu))
    ks.append(gen_gemm("g4_kernel", 128, 2, 2, F, KA_WS, WS_ACT, [(KA_W2, 0, 1024, 64)],
                       [(0, 2, 0), (0, 2, 1)], 16,
                       epi_store_factory(1024, KA_OUT, 0, S * D * 2, res=(KA_WS, WS_H))))
    return ks


def gen_gemm_g1():
    global _G1_PATCH
    k = gen_gemm("g1_kernel", 128, 2, 2, 1024, KA_WS, WS_XN,
                 [(KA_WQKV, 0, 3072, 128), (KA_WQKV, 256, 3072, 64)],
                 [(0, 4, 0), (0, 4, 1), (0, 4, 2), (0, 4, 3), (1, 2, 0), (1, 2, 1)], 16,
                 epi_store_factory(3072, KA_WS, WS_QKV, S * 3072 * 2))
    out = []
    for ln in k.lines:
        if ln.strip() in ("s_mul_i32 s26, s21, 256", "s_mul_i32 s26, s21, 128"):
            ln = "    s_mul_i32 s26, s21, 384"
        out.append(ln)
    k.lines = out
    return k


def main():
    ks = build()
    out = [HEADER.rstrip()]
    for k in ks:
        out.append("; @launch kernel=%s grid=(%d,%d,%d) block=(%d,%d,%d) lds=%d" % ((k.name,) + k.grid + k.block + (k.lds,)))
    out.append('.amdgcn_target "amdgcn-amd-amdhsa--gfx950"')
    out.append(".text")
    for k in ks:
        out.append(k.text())
    out.append('.section .rodata,"a"')
    for k in ks:
        out.append(".p2align 6")
        out.append(k.desc())
    open(sys.argv[1] if len(sys.argv) > 1 else "sequential_preLN__sliding_block__glu_gated_swiglu__prompt.s", "w").write("\n".join(out) + "\n")


if __name__ == "__main__":
    main()
```

```python
import sys, os
EXP = os.environ.get('EXP', '')

S = 2048; D = 1024; F = 3584
MB = 1 << 20
WS_QKV = 4 * MB
WS_O = 16 * MB
WS_H = 20 * MB
WS_ACT = 28 * MB
WS_PART = 49 * MB
WS_CS = 48 * MB

KA_X, KA_WQKV, KA_WO, KA_BX, KA_W1, KA_W3, KA_W2, KA_OUT, KA_DBG, KA_WS = range(10)
PTR0 = 64

HEADER = """; Kernarg layout for this problem (80 bytes, ptrs only, base s[0:1]):
;   offset  72: d_ws      268435456 bytes workspace
"""


class Kern:
    def __init__(self, name, grid, block, lds, nvgpr, nsgpr=100):
        self.name = name; self.grid = grid; self.block = block; self.lds = lds
        self.nvgpr = nvgpr; self.nsgpr = nsgpr
        self.lines = []

    def e(self, s):
        for ln in s.strip().split("\n"):
            if ln.strip():
                self.lines.append("    " + ln.strip())

    def lab(self, l):
        self.lines.append(l + ":")

    def text(self):
        out = [".globl %s" % self.name, ".p2align 8", ".type %s,@function" % self.name, "%s:" % self.name]
        return "\n".join(out + self.lines)

    def desc(self):
        nv = self.nvgpr
        return """.amdhsa_kernel %s
  .amdhsa_next_free_vgpr %d
  .amdhsa_next_free_sgpr %d
  .amdhsa_accum_offset %d
  .amdhsa_group_segment_fixed_size 0
  .amdhsa_kernarg_size 80
  .amdhsa_user_sgpr_count 2
  .amdhsa_user_sgpr_kernarg_segment_ptr 1
  .amdhsa_system_sgpr_workgroup_id_x 1
.end_amdhsa_kernel""" % (self.name, nv, self.nsgpr, (nv + 3) // 4 * 4)


def load_ptrs(k):
    k.e("s_load_dwordx16 s[64:79], s[0:1], 0")
    k.e("s_load_dwordx4 s[80:83], s[0:1], 64")
    k.e("s_waitcnt lgkmcnt(0)")


def srd(k, sreg, slot, off, nbytes):
    p = PTR0 + 2 * slot
    if off:
        k.e("s_add_u32 s%d, s%d, %d" % (sreg, p, off))
        k.e("s_addc_u32 s%d, s%d, 0" % (sreg + 1, p + 1))
        k.e("s_and_b32 s%d, s%d, 0xffff" % (sreg + 1, sreg + 1))
    else:
        k.e("s_mov_b32 s%d, s%d" % (sreg, p))
        k.e("s_and_b32 s%d, s%d, 0xffff" % (sreg + 1, p + 1))
    k.e("s_mov_b32 s%d, %d" % (sreg + 2, nbytes))
    k.e("s_mov_b32 s%d, 0x00020000" % (sreg + 3))


def stamp(k, i):
    if 'stamp' in EXP:
        k.e("s_memrealtime s[%d:%d]" % (86 + 2 * i, 87 + 2 * i))


def stamp_store(k, n, kidx):
    if 'stamp' not in EXP:
        return
    k.e("s_waitcnt vmcnt(0) lgkmcnt(0)")
    k.e("s_memrealtime s[%d:%d]" % (86 + 2 * n, 87 + 2 * n))
    k.e("s_waitcnt lgkmcnt(0)")
    srd(k, 56, KA_WS, 64 * MB + kidx * 65536, 65536)
    k.e("s_lshl_b32 s60, s2, 6")
    k.e("v_mov_b32 v1, s60")
    for i in range(n + 1):
        k.e("v_mov_b32 v2, s%d" % (86 + 2 * i))
        k.e("buffer_store_dword v2, v1, s[56:59], 0 offen offset:%d" % (4 * i))


def f3(k):
    return (k & 3) | ((k >> 1) & 4)


def gen_gemm(name, BM, WM, WN, Kdim, a_slot, a_off, subs, colblocks, ntn, epi, grp, nstages=6, NL=0, ln=None, res=None):
    NWC = WM * WN
    NW = NL if NL else NWC
    RB = BM // WM // 16
    CB = len(colblocks)
    ntm = S // BM
    nwg = ntm * ntn
    nk = Kdim // 64
    sub_lds = []
    o = BM * 128
    for sb in subs:
        sub_lds.append(o); o += 64 * sb[3] * 2
    STAGE = o
    NS = min(nstages, 163840 // STAGE)
    assert NS >= 2 and STAGE <= 65536
    k = Kern(name, (nwg, 1, 1), (64 * (NWC + NL), 1, 1), NS * STAGE, 0)
    lab = lambda s: "%s_%s" % (name, s)
    k.e("s_cmp_ge_u32 s2, %d" % nwg)
    k.e("s_cbranch_scc1 %s" % lab("end"))
    stamp(k, 0)
    load_ptrs(k)
    srd(k, 4, a_slot, a_off, S * Kdim * 2)
    for i, sb in enumerate(subs):
        srd(k, 8 + 4 * i, sb[0], sb[1], Kdim * sb[2] * 2 - sb[1])
    gm, gn = grp
    assert gm * gn * 8 == nwg
    k.e("s_and_b32 s25, s2, 7")
    k.e("s_lshr_b32 s26, s2, 3")
    ng = ntm // gm
    k.e("s_and_b32 s20, s25, %d" % (ng - 1))
    k.e("s_mul_i32 s20, s20, %d" % gm)
    k.e("s_and_b32 s27, s26, %d" % (gm - 1))
    k.e("s_add_u32 s20, s20, s27")
    k.e("s_lshr_b32 s21, s25, %d" % (ng.bit_length() - 1))
    k.e("s_mul_i32 s21, s21, %d" % gn)
    k.e("s_lshr_b32 s27, s26, %d" % (gm.bit_length() - 1))
    k.e("s_add_u32 s21, s21, s27")
    k.e("v_lshrrev_b32 v1, 6, v0")
    k.e("s_nop 0")
    k.e("v_readfirstlane_b32 s19, v1")
    k.e("s_and_b32 s23, s19, %d" % (WM - 1))
    k.e("s_lshr_b32 s24, s19, %d" % (WM.bit_length() - 1))
    k.e("s_and_b32 s24, s24, %d" % (WN - 1))
    if NL:
        k.e("s_sub_u32 s22, s19, %d" % NWC)
        k.e("s_and_b32 s22, s22, %d" % (NL - 1))
    else:
        k.e("s_mov_b32 s22, s19")
    k.e("v_and_b32 v0, 63, v0")
    nA_w = BM // 8 // NW
    vA_dma = 2
    _nb = sum(64 * sb[3] * 2 // 1024 // NW for sb in subs)
    XORST = (NS == 2 and STAGE == 65536)
    _vx = vA_dma + nA_w + _nb + (1 if XORST else 2) * (2 + CB)
    if ln == 'mfma':
        _vx = (_vx + 2 * RB + 3) // 4 * 4 + 4 + 4 * CB
    elif ln:
        _vx = _vx + 2 * RB + 1
    if res:
        _vx = (_vx + 1) // 2 * 2 + 2 * RB * CB
    _vfr = (_vx + 3) // 4 * 4
    T0, T1, T2 = _vfr, _vfr + 1, _vfr + 2
    k.e("""
    v_lshrrev_b32 v1, 3, v0
    v_and_b32 v%d, 7, v0
    v_xor_b32 v%d, v%d, v1
    v_lshlrev_b32 v%d, 4, v%d
    """ % (T0, T0, T0, T0, T0))
    k.e("s_mul_i32 s25, s22, %d" % (nA_w * 8))
    k.e("s_mul_i32 s26, s20, %d" % BM)
    k.e("s_add_u32 s25, s25, s26")
    k.e("v_add_u32 v1, s25, v1")
    k.e("s_mov_b32 s26, %d" % (Kdim * 2))
    k.e("v_mul_lo_u32 v1, v1, s26")
    k.e("v_add_u32 v%d, v1, v%d" % (vA_dma, T0))
    for t in range(1, nA_w):
        k.e("v_add_u32 v%d, %d, v%d" % (vA_dma + t, t * 8 * Kdim * 2, vA_dma))
    bdma = []
    vb = vA_dma + nA_w
    for si, (slot, off, ldb, width, tnmul) in enumerate(subs):
        pitch = width * 2
        nB = 64 * pitch // 1024
        assert nB % NW == 0
        nB_w = nB // NW
        rows_per = 1024 // pitch
        cpr = pitch // 16
        for t in range(nB_w):
            k.e("s_mul_i32 s25, s22, %d" % (nB_w * rows_per))
            k.e("s_add_u32 s25, s25, %d" % (t * rows_per))
            k.e("v_lshrrev_b32 v1, %d, v0" % (cpr.bit_length() - 1))
            k.e("v_add_u32 v1, s25, v1")
            if pitch >= 256:
                k.e("v_and_b32 v%d, 3, v1" % T0)
                k.e("v_lshrrev_b32 v%d, 1, v1" % T1)
                k.e("v_and_b32 v%d, 4, v%d" % (T1, T1))
            else:
                k.e("v_bfe_u32 v%d, v1, 1, 1" % T0)
                k.e("v_lshrrev_b32 v%d, 2, v1" % T1)
                k.e("v_and_b32 v%d, 2, v%d" % (T1, T1))
            k.e("v_or_b32 v%d, v%d, v%d" % (T0, T0, T1))
            k.e("v_lshlrev_b32 v%d, 1, v%d" % (T0, T0))
            k.e("v_and_b32 v%d, %d, v0" % (T1, cpr - 1))
            k.e("v_xor_b32 v%d, v%d, v%d" % (T0, T0, T1))
            k.e("v_lshlrev_b32 v%d, 4, v%d" % (T0, T0))
            k.e("s_mov_b32 s26, %d" % (ldb * 2))
            k.e("v_mul_lo_u32 v1, v1, s26")
            k.e("v_add_u32 v1, v1, v%d" % T0)
            k.e("s_mul_i32 s26, s21, %d" % (tnmul * 2))
            k.e("v_add_u32 v%d, s26, v1" % vb)
            bdma.append((si, t, vb, nB_w))
            vb += 1
    NAD = 2 + CB
    vAb = vb
    vAr = vAb if XORST else vAb + NAD
    k.e("""
    v_and_b32 v1, 15, v0
    v_lshlrev_b32 v1, 7, v1
    v_lshrrev_b32 v%d, 4, v0
    v_and_b32 v%d, 7, v0
    """ % (T0, T1))
    k.e("s_mul_i32 s25, s23, %d" % (RB * 16 * 128))
    k.e("v_add_u32 v1, s25, v1")
    k.e("v_xor_b32 v%d, v%d, v%d" % (T2, T0, T1))
    k.e("v_lshlrev_b32 v%d, 4, v%d" % (T2, T2))
    k.e("v_add_u32 v%d, v1, v%d" % (vAb, T2))
    k.e("v_or_b32 v%d, 4, v%d" % (T0, T0))
    k.e("v_xor_b32 v%d, v%d, v%d" % (T2, T0, T1))
    k.e("v_lshlrev_b32 v%d, 4, v%d" % (T2, T2))
    k.e("v_add_u32 v%d, v1, v%d" % (vAb + 1, T2))
    for cb, (si, pmul, padd) in enumerate(colblocks):
        pitch = subs[si][3] * 2
        k.e("""
        v_lshrrev_b32 v1, 4, v0
        v_lshlrev_b32 v1, 3, v1
        v_bfe_u32 v%d, v0, 2, 2
        v_add_u32 v1, v1, v%d
        """ % (T0, T0))
        if pitch >= 256:
            k.e("v_bfe_u32 v%d, v0, 4, 1" % T1)
            k.e("v_lshlrev_b32 v%d, 2, v%d" % (T1, T1))
            k.e("v_or_b32 v%d, v%d, v%d" % (T1, T1, T0))
        else:
            k.e("v_bfe_u32 v%d, v0, 3, 1" % T1)
            k.e("v_bfe_u32 v%d, v0, 4, 1" % T2)
            k.e("v_lshlrev_b32 v%d, 1, v%d" % (T2, T2))
            k.e("v_or_b32 v%d, v%d, v%d" % (T1, T1, T2))
        k.e("s_mul_i32 s25, s24, %d" % pmul)
        k.e("s_add_u32 s25, s25, %d" % padd)
        k.e("v_xor_b32 v%d, s25, v%d" % (T1, T1))
        k.e("v_lshlrev_b32 v%d, 5, v%d" % (T1, T1))
        k.e("s_mov_b32 s26, %d" % pitch)
        k.e("v_mul_lo_u32 v1, v1, s26")
        k.e("v_and_b32 v%d, 3, v0" % T2)
        k.e("v_lshlrev_b32 v%d, 3, v%d" % (T2, T2))
        k.e("v_add3_u32 v%d, v1, v%d, v%d" % (vAb + 2 + cb, T1, T2))
    vBr = vAr + 2
    vx = vAr + NAD
    vsum = vsq = vones = vcs = vres = None
    if ln:
        vsum = vx; vsq = vx + RB; vx += 2 * RB
        if ln == 'mfma':
            vx = (vx + 3) // 4 * 4
            vones = vx; vx += 4
            vcs = vx; vx += 4 * CB
        else:
            vones = vx; vx += 1
    if res:
        vx = (vx + 1) // 2 * 2
        vres = vx; vx += 2 * RB * CB
    vfr = (vx + 3) // 4 * 4
    fA = lambda s, rb: vfr + (s * RB + rb) * 4
    fB = lambda s, cb: vfr + 2 * RB * 4 + (s * CB + cb) * 4
    vacc = vfr + 2 * RB * 4 + 2 * CB * 4
    assert vfr == _vfr
    acc = lambda rb, cb: vacc + (rb * CB + cb) * 4
    vend = vacc + RB * CB * 4
    k.nvgpr = vend
    assert vend <= 256
    ctx = dict(RB=RB, CB=CB, acc=acc, colblocks=colblocks, subs=subs, BM=BM, vend=vend, vres=vres, ln=ln,
               vsum=vsum, vsq=vsq, vcs=vcs, Kdim=Kdim, lab=lab, vfr=vfr)
    if res:
        res_prefetch(k, ctx, res)
    def ws_stats():
            srd(k, 48, KA_WS, WS_PART, S * 256)
            t = vacc
            k.e("s_mul_i32 s25, s20, %d" % BM)
            k.e("s_mul_i32 s26, s23, %d" % (RB * 16))
            k.e("s_add_u32 s25, s25, s26")
            k.e("v_and_b32 v%d, 15, v0" % t)
            k.e("v_add_u32 v%d, s25, v%d" % (t, t))
            k.e("v_lshlrev_b32 v%d, 8, v%d" % (t, t))
            k.e("v_lshrrev_b32 v%d, 4, v0" % (t + 1))
            k.e("v_lshlrev_b32 v%d, 6, v%d" % (t + 1, t + 1))
            k.e("v_add_u32 v%d, v%d, v%d" % (t, t, t + 1))
            for rb in range(RB):
                for j in range(4):
                    d = t + 4 + 16 * rb + 4 * j
                    k.e("buffer_load_dwordx4 v[%d:%d], v%d, s[48:51], 0 offen offset:%d" % (d, d + 3, t, rb * 4096 % 4096 + 16 * j) if rb == 0 else
                        "v_add_u32 v%d, %d, v%d\nbuffer_load_dwordx4 v[%d:%d], v%d, s[48:51], 0 offen offset:%d" % (t + 1, rb * 4096, t, d, d + 3, t + 1, 16 * j))
            k.e("s_waitcnt vmcnt(0)")
            for rb in range(RB):
                d = t + 4 + 16 * rb
                k.e("v_add_f32 v%d, v%d, v%d" % (vsum + rb, d, d + 2))
                k.e("v_add_f32 v%d, v%d, v%d" % (vsq + rb, d + 1, d + 3))
                for j in range(2, 8):
                    k.e("v_add_f32 v%d, v%d, v%d" % (vsum + rb, vsum + rb, d + 2 * j))
                    k.e("v_add_f32 v%d, v%d, v%d" % (vsq + rb, vsq + rb, d + 2 * j + 1))
            ctx["vtmp"] = t
            ln_finish(k, ctx)

    def zero_acc():
        for r in range(vacc, vend):
            k.e("v_mov_b32 v%d, 0" % r)
    if ln != 'ws':
        zero_acc()
    if ln:
        for r in range(2 * RB if ln == 'mfma' else 0):
            k.e("v_mov_b32 v%d, 0" % (vsum + r))
        for r in range(4 if vcs else 1):
            k.e("v_mov_b32 v%d, 0x3f803f80" % (vones + r))
        if vcs:
            for r in range(4 * CB):
                k.e("v_mov_b32 v%d, 0" % (vcs + r))
    k.e("s_mov_b32 s30, 0")
    for i in range(len(subs)):
        k.e("s_mov_b32 s%d, 0" % (31 + i))
    k.e("s_mov_b32 s34, 0")
    k.e("s_mul_i32 s35, s22, %d" % (nA_w * 1024))
    for (si, t, vreg, nB_w) in bdma:
        if t == 0:
            k.e("s_mul_i32 s%d, s22, %d" % (44 + si, nB_w * 1024))
            k.e("s_add_u32 s%d, s%d, %d" % (44 + si, 44 + si, sub_lds[si]))
    nd = nA_w + len(bdma)

    def dma_items():
        it = []
        for t in range(nA_w):
            if t:
                pre = "s_add_u32 m0, s36, %d\ns_nop 0\n" % (t * 1024)
            else:
                pre = "s_add_u32 s36, s34, s35\ns_mov_b32 m0, s36\ns_nop 0\n"
            it.append(pre + "buffer_load_dwordx4 v%d, s[4:7], s30 offen lds" % (vA_dma + t))
        for (si, t, vreg, nB_w) in bdma:
            if t == 0:
                pre = "s_add_u32 s36, s34, s%d\ns_mov_b32 m0, s36\ns_nop 0\n" % (44 + si)
            else:
                pre = "s_add_u32 m0, s36, %d\ns_nop 0\n" % (t * 1024)
            it.append(pre + "buffer_load_dwordx4 v%d, s[%d:%d], s%d offen lds" % (vreg, 8 + 4 * si, 11 + 4 * si, 31 + si))
        tail = "s_add_u32 s30, s30, 128\n"
        for i, sb in enumerate(subs):
            tail += "s_add_u32 s%d, s%d, %d\n" % (31 + i, 31 + i, 64 * sb[2] * 2)
        tail += "s_add_u32 s34, s34, %d\ns_cmp_eq_u32 s34, %d\ns_cselect_b32 s34, 0, s34" % (STAGE, NS * STAGE)
        it[-1] += "\n" + tail
        return it

    def dma():
        for x in dma_items():
            k.e(x)

    def setaddr_items():
        if XORST:
            return ["v_xor_b32 v%d, %d, v%d" % (vAr + r, STAGE, vAr + r) for r in range(NAD)]
        it = ["v_add_u32 v%d, s38, v%d" % (vAr + r, vAb + r) for r in range(NAD)]
        it[-1] += "\ns_add_u32 s38, s38, %d\ns_cmp_eq_u32 s38, %d\ns_cselect_b32 s38, 0, s38" % (STAGE, NS * STAGE)
        return it

    def read_items(st, kk):
        it = []
        for rb in range(RB):
            it.append("ds_read_b128 v[%d:%d], v%d offset:%d" % (fA(st, rb), fA(st, rb) + 3, vAr + kk, rb * 2048))
        for cb, (si, pmul, padd) in enumerate(colblocks):
            pitch = subs[si][3] * 2
            base = sub_lds[si] + kk * 32 * pitch
            it.append("ds_read_b64_tr_b16 v[%d:%d], v%d offset:%d" % (fB(st, cb), fB(st, cb) + 1, vBr + cb, base))
            it.append("ds_read_b64_tr_b16 v[%d:%d], v%d offset:%d" % (fB(st, cb) + 2, fB(st, cb) + 3, vBr + cb, base + 4 * pitch))
        return it

    def stat_items(st):
        return []

    def mfmas(st, fill=(), late=()):
        fill = list(fill); late = list(late)
        ms = []
        for rb in range(RB):
            for cb in range(CB):
                a = acc(rb, cb)
                ms.append("v_mfma_f32_16x16x32_bf16 v[%d:%d], v[%d:%d], v[%d:%d], v[%d:%d]" % (
                    a, a + 3, fB(st, cb), fB(st, cb) + 3, fA(st, rb), fA(st, rb) + 3, a, a + 3))
        if vcs and 'nocs' not in EXP:
            for cb in range(CB):
                c = vcs + 4 * cb
                ms.append("v_mfma_f32_16x16x32_bf16 v[%d:%d], v[%d:%d], v[%d:%d], v[%d:%d]" % (
                    c, c + 3, fB(st, cb), fB(st, cb) + 3, vones, vones + 3, c, c + 3))
        n = len(ms)
        per = -(-len(fill) // n) if fill else 0
        perl = -(-len(late) // n) if late else 0
        for m in ms:
            k.e(m)
            for _ in range(per):
                if fill:
                    k.e(fill.pop(0))
            for _ in range(perl):
                if late:
                    k.e(late.pop(0))
        assert not fill and not late

    k.e("s_mov_b32 s37, 0")
    if NL:
        assert NS >= 3
        k.e("s_cmp_lt_u32 s19, %d" % NWC)
        k.e("s_cbranch_scc1 %s" % lab("comp"))
        for s_ in range(NS - 1):
            dma()
        LS = (ln == 'mfma')
        if LS:
            assert BM == 128 and NL == 4
            t = vfr
            k.e("v_lshrrev_b32 v%d, 1, v0" % (t + 22))
            k.e("s_lshl_b32 s25, s22, 5")
            k.e("v_add_u32 v%d, s25, v%d" % (t + 23, t + 22))
            k.e("v_lshlrev_b32 v%d, 7, v%d" % (t + 23, t + 23))
            k.e("v_and_b32 v%d, 1, v0" % (t + 24))
            k.e("v_lshlrev_b32 v%d, 6, v%d" % (t + 24, t + 24))
            k.e("v_add_u32 v%d, v%d, v%d" % (t + 23, t + 23, t + 24))
            k.e("v_lshrrev_b32 v%d, 1, v%d" % (t + 22, t + 22))
            for j in range(4):
                k.e("v_add_u32 v%d, %d, v%d" % (t + 24, j, t + 22))
                k.e("v_and_b32 v%d, 3, v%d" % (t + 24, t + 24))
                k.e("v_lshlrev_b32 v%d, 4, v%d" % (t + 24, t + 24))
                k.e("v_add_u32 v%d, v%d, v%d" % (t + 26 + j, t + 23, t + 24))
            k.e("v_mov_b32 v%d, 0" % (t + 20))
            k.e("v_mov_b32 v%d, 0" % (t + 21))
            k.e("s_mov_b32 s39, 0")

            def lstats():
                if 'nolstats' in EXP:
                    return
                for j in range(4):
                    k.e("v_add_u32 v%d, s39, v%d" % (t + j, t + 26 + j))
                for j in range(4):
                    k.e("ds_read_b128 v[%d:%d], v%d" % (t + 4 + 4 * j, t + 7 + 4 * j, t + j))
                k.e("s_add_u32 s39, s39, %d\ns_cmp_eq_u32 s39, %d\ns_cselect_b32 s39, 0, s39" % (STAGE, NS * STAGE))
                for j in range(16):
                    if j % 4 == 0:
                        k.e("s_waitcnt lgkmcnt(%d)" % (3 - j // 4))
                    d = t + 4 + j
                    k.e("v_lshlrev_b32 v%d, 16, v%d" % (t + 22, d))
                    k.e("v_and_b32 v%d, 0xffff0000, v%d" % (t + 23, d))
                    k.e("v_add_f32 v%d, v%d, v%d" % (t + 20, t + 20, t + 22))
                    k.e("v_fmac_f32 v%d, v%d, v%d" % (t + 21, t + 22, t + 22))
                    k.e("v_add_f32 v%d, v%d, v%d" % (t + 20, t + 20, t + 23))
                    k.e("v_fmac_f32 v%d, v%d, v%d" % (t + 21, t + 23, t + 23))
        k.e("s_waitcnt vmcnt(%d)" % ((NS - 2) * nd))
        k.e("s_barrier")
        if LS:
            lstats()
        k.lab(lab("lloop"))
        k.e("s_waitcnt vmcnt(%d)" % ((NS - 3) * nd))
        k.e("s_barrier")
        dma()
        k.e("s_add_u32 s37, s37, 1")
        k.e("s_cmp_lt_u32 s37, %d" % nk)
        if LS:
            k.e("s_cbranch_scc0 %s" % lab("ldone"))
            lstats()
            k.e("s_branch %s" % lab("lloop"))
            k.lab(lab("ldone"))
            k.e("s_waitcnt vmcnt(0)")
            for v in (t + 20, t + 21):
                k.e("ds_swizzle_b32 v%d, v%d offset:0x041F" % (t + 22, v))
                k.e("s_waitcnt lgkmcnt(0)")
                k.e("v_add_f32 v%d, v%d, v%d" % (v, v, t + 22))
            k.e("s_barrier")
            k.e("v_lshrrev_b32 v%d, 1, v0" % (t + 22))
            k.e("s_lshl_b32 s25, s22, 5")
            k.e("v_add_u32 v%d, s25, v%d" % (t + 22, t + 22))
            k.e("v_lshlrev_b32 v%d, 3, v%d" % (t + 22, t + 22))
            k.e("ds_write_b64 v%d, v[%d:%d]" % (t + 22, t + 20, t + 21))
            k.e("s_waitcnt lgkmcnt(0)")
            k.e("s_barrier")
        else:
            k.e("s_cbranch_scc1 %s" % lab("lloop"))
            k.e("s_waitcnt vmcnt(0)")
        k.e("s_endpgm")
        k.lab(lab("comp"))
        stamp(k, 1)
        k.e("s_mov_b32 s38, 0")
        for x in setaddr_items():
            k.e(x)
        k.e("s_barrier")
        stamp(k, 2)
        for x in read_items(0, 0):
            k.e(x)
        k.lab(lab("loop"))
        k.e("s_waitcnt lgkmcnt(0)")
        mfmas(0, read_items(1, 1), stat_items(0))
        k.e("s_barrier")
        k.e("s_waitcnt lgkmcnt(0)")
        mfmas(1, setaddr_items() + read_items(0, 0), stat_items(1))
    else:
        dma()
        if ln == 'ws':
            ws_stats()
            zero_acc()
        stamp(k, 1)
        k.e("s_mov_b32 s38, 0")
        if not XORST:
            for x in setaddr_items():
                k.e(x)
        k.lab(lab("loop"))
        k.e("s_waitcnt vmcnt(0)")
        k.e("s_barrier")
        for x in read_items(0, 0):
            k.e(x)
        k.e("s_waitcnt lgkmcnt(0)")
        mfmas(0, read_items(1, 1) + dma_items(), stat_items(0))
        k.e("s_waitcnt lgkmcnt(0)")
        mfmas(1, setaddr_items(), stat_items(1))
    k.e("s_add_u32 s37, s37, 1")
    k.e("s_cmp_lt_u32 s37, %d" % nk)
    k.e("s_cbranch_scc1 %s" % lab("loop"))
    k.e("s_waitcnt vmcnt(0) lgkmcnt(0)")
    stamp(k, 3)
    k.e("s_nop 7")
    if ln == 'mfma':
        k.e("s_barrier")
        k.e("s_barrier")
        k.e("v_and_b32 v2, 15, v0")
        k.e("s_mul_i32 s25, s23, %d" % (RB * 16))
        k.e("v_add_u32 v2, s25, v2")
        k.e("v_lshlrev_b32 v2, 3, v2")
        for rb in range(RB):
            k.e("ds_read_b32 v%d, v2 offset:%d" % (vsum + rb, rb * 128))
            k.e("ds_read_b32 v%d, v2 offset:%d" % (vsq + rb, rb * 128 + 4))
        k.e("s_waitcnt lgkmcnt(0)")
        ln_finish(k, ctx, reduce=False)
    epi(k, ctx)
    stamp_store(k, 4, {'g1': 0, 'g2': 1, 'g3': 2, 'g4': 3}[name[:2]])
    k.lab(lab("end"))
    k.e("s_endpgm")
    return k


def row_base(k, c, ldc, va=1, vb=2):
    k.e("s_mul_i32 s25, s20, %d" % c["BM"])
    k.e("s_mul_i32 s26, s23, %d" % (c["RB"] * 16))
    k.e("s_add_u32 s25, s25, s26")
    k.e("v_and_b32 v%d, 15, v0" % va)
    k.e("v_add_u32 v%d, s25, v%d" % (va, va))
    k.e("s_mov_b32 s26, %d" % (ldc * 2))
    k.e("v_mul_lo_u32 v%d, v%d, s26" % (va, va))
    k.e("v_lshrrev_b32 v%d, 4, v0" % vb)
    k.e("v_lshlrev_b32 v%d, 3, v%d" % (vb, vb))
    k.e("v_add_u32 v%d, v%d, v%d" % (va, va, vb))


def col_off(k, c, cb, sreg, cmul):
    si, pmul, padd = c["colblocks"][cb]
    sb = sum(s[3] for s in c["subs"][:si])
    k.e("s_mul_i32 s%d, s21, %d" % (sreg, cmul * 2))
    k.e("s_mul_i32 s26, s24, %d" % (pmul * 32))
    k.e("s_add_u32 s%d, s%d, s26" % (sreg, sreg))
    k.e("s_add_u32 s%d, s%d, %d" % (sreg, sreg, (sb + padd * 16) * 2))


def res_prefetch(k, c, res):
    RB, CB = c["RB"], c["CB"]
    srd(k, 48, res[0], res[1], S * D * 2)
    t = c["vfr"]
    row_base(k, c, D, t, t + 1)
    tot = sum(s[3] for s in c["subs"])
    for cb in range(CB):
        col_off(k, c, cb, 25, tot)
        for rb in range(RB):
            k.e("v_add_u32 v%d, s25, v%d" % (t + 2, t))
            if rb:
                k.e("v_add_u32 v%d, %d, v%d" % (t + 2, rb * 16 * D * 2, t + 2))
            r = c["vres"] + 2 * (rb * CB + cb)
            k.e("buffer_load_dwordx2 v[%d:%d], v%d, s[48:51], 0 offen" % (r, r + 1, t + 2))


def ln_finish(k, c, reduce=True):
    RB = c["RB"]
    invK = {1024: "0x3a800000"}[c["Kdim"]]
    T = c.get("vtmp", 2)
    for rb in range(RB):
        for v in ((c["vsum"] + rb, c["vsq"] + rb) if reduce else ()):
            k.e("ds_swizzle_b32 v%d, v%d offset:0x401F" % (T, v))
            k.e("s_waitcnt lgkmcnt(0)")
            k.e("v_add_f32 v%d, v%d, v%d" % (v, v, T))
            k.e("v_mov_b32 v%d, v%d" % (T, v))
            k.e("s_nop 1")
            k.e("v_permlane32_swap_b32 v%d, v%d" % (v, T))
            k.e("v_add_f32 v%d, v%d, v%d" % (v, v, T))
        m = c["vsum"] + rb; q = c["vsq"] + rb
        k.e("v_mul_f32 v%d, %s, v%d" % (m, invK, m))
        k.e("v_mul_f32 v%d, %s, v%d" % (q, invK, q))
        k.e("v_fma_f32 v%d, -v%d, v%d, v%d" % (q, m, m, q))
        k.e("v_cvt_pk_bf16_f32 v%d, v%d, v%d" % (T, m, q))
        k.e("v_lshlrev_b32 v%d, 16, v%d" % (m, T))
        k.e("v_and_b32 v%d, 0xffff0000, v%d" % (q, T))
        k.e("v_add_f32 v%d, 0x3727c5ac, v%d" % (q, q))
        k.e("v_cvt_pk_bf16_f32 v%d, v%d, v%d" % (T, q, q))
        k.e("v_lshlrev_b32 v%d, 16, v%d" % (q, T))
        k.e("v_sqrt_f32 v%d, v%d" % (q, q))
        k.e("s_nop 0")
        k.e("v_cvt_pk_bf16_f32 v%d, v%d, v%d" % (T, q, q))
        k.e("v_lshlrev_b32 v%d, 16, v%d" % (q, T))
        k.e("v_rcp_f32 v%d, v%d" % (q, q))
        k.e("s_nop 0")


def ln_apply(k, c, a, rb, cs):
    m = c["vsum"] + rb; q = c["vsq"] + rb
    for r in range(4):
        k.e("v_fma_f32 v%d, -v%d, v%d, v%d" % (a + r, m, cs + r, a + r))
    for r in range(4):
        k.e("v_mul_f32 v%d, v%d, v%d" % (a + r, a + r, q))


def epi_store_factory(ldc, c_slot, c_off, c_bytes, part=False):
    def epi(k, c):
        RB, CB, acc = c["RB"], c["CB"], c["acc"]
        srd(k, 40, c_slot, c_off, c_bytes)
        PS = c["vfr"]
        if part:
            for rb in range(RB):
                k.e("v_mov_b32 v%d, 0" % (PS + 2 * rb))
                k.e("v_mov_b32 v%d, 0" % (PS + 1 + 2 * rb))
        row_base(k, c, ldc)
        tot = sum(s[3] for s in c["subs"])
        for cb in range(CB):
            col_off(k, c, cb, 25, tot)
            k.e("v_add_u32 v3, s25, v1")
            for rb in range(RB):
                a = acc(rb, cb)
                if c["ln"]:
                    ln_apply(k, c, a, rb, c["vcs"] + 4 * cb)
                k.e("v_cvt_pk_bf16_f32 v%d, v%d, v%d" % (a, a, a + 1))
                k.e("v_cvt_pk_bf16_f32 v%d, v%d, v%d" % (a + 1, a + 2, a + 3))
                if c["vres"] is not None:
                    r = c["vres"] + 2 * (rb * CB + cb)
                    for j in range(2):
                        k.e("v_lshlrev_b32 v6, 16, v%d" % (a + j))
                        k.e("v_and_b32 v7, 0xffff0000, v%d" % (a + j))
                        k.e("v_lshlrev_b32 v8, 16, v%d" % (r + j))
                        k.e("v_and_b32 v9, 0xffff0000, v%d" % (r + j))
                        k.e("v_add_f32 v6, v6, v8")
                        k.e("v_add_f32 v7, v7, v9")
                        k.e("v_cvt_pk_bf16_f32 v%d, v6, v7" % (a + j))
                        if part:
                            k.e("v_lshlrev_b32 v6, 16, v%d" % (a + j))
                            k.e("v_and_b32 v7, 0xffff0000, v%d" % (a + j))
                            k.e("v_add_f32 v%d, v%d, v6" % (PS + 2 * rb, PS + 2 * rb))
                            k.e("v_fmac_f32 v%d, v6, v6" % (PS + 1 + 2 * rb))
                            k.e("v_add_f32 v%d, v%d, v7" % (PS + 2 * rb, PS + 2 * rb))
                            k.e("v_fmac_f32 v%d, v7, v7" % (PS + 1 + 2 * rb))
                k.e("v_add_u32 v4, %d, v3" % (rb * 16 * ldc * 2))
                k.e("buffer_store_dwordx2 v[%d:%d], v4, s[40:43], 0 offen" % (a, a + 1))
        if part:
            srd(k, 44, KA_WS, WS_PART, S * 256)
            for v in range(PS, PS + 2 * RB):
                k.e("ds_swizzle_b32 v2, v%d offset:0x401F" % v)
                k.e("s_waitcnt lgkmcnt(0)")
                k.e("v_add_f32 v%d, v%d, v2" % (v, v))
                k.e("v_mov_b32 v2, v%d" % v)
                k.e("s_nop 1")
                k.e("v_permlane32_swap_b32 v%d, v2" % v)
                k.e("v_add_f32 v%d, v%d, v2" % (v, v))
            k.e("s_mul_i32 s25, s20, %d" % c["BM"])
            k.e("s_mul_i32 s26, s23, %d" % (RB * 16))
            k.e("s_add_u32 s25, s25, s26")
            k.e("v_add_u32 v1, s25, v0")
            k.e("v_lshlrev_b32 v1, 8, v1")
            k.e("s_lshl_b32 s25, s21, 1")
            k.e("s_add_u32 s25, s25, s24")
            k.e("s_lshl_b32 s25, s25, 3")
            k.e("v_add_u32 v1, s25, v1")
            k.e("v_cmp_gt_u32 vcc, 16, v0")
            k.e("s_and_saveexec_b64 s[52:53], vcc")
            for rb in range(RB):
                k.e("v_add_u32 v2, %d, v1" % (rb * 4096))
                k.e("buffer_store_dwordx2 v[%d:%d], v2, s[44:47], 0 offen" % (PS + 2 * rb, PS + 1 + 2 * rb))
            k.e("s_mov_b64 exec, s[52:53]")
    return epi


def epi_swiglu(k, c):
    RB, CB, acc, colblocks, subs = c["RB"], c["CB"], c["acc"], c["colblocks"], c["subs"]
    ldc = F
    srd(k, 40, KA_WS, WS_ACT, S * F * 2)
    srd(k, 44, KA_WS, WS_CS, 2 * F * 4)
    row_base(k, c, ldc)
    half = CB // 2
    width = subs[0][3]
    vc = c["vfr"]
    k.e("v_lshrrev_b32 v2, 4, v0")
    k.e("v_lshlrev_b32 v2, 4, v2")
    for cb in range(half):
        si, pmul, padd = colblocks[cb]
        assert si == 0 and colblocks[cb + half] == (1, pmul, padd)
        k.e("s_mul_i32 s25, s21, %d" % (width * 4))
        k.e("s_mul_i32 s26, s24, %d" % (pmul * 64))
        k.e("s_add_u32 s25, s25, s26")
        k.e("s_add_u32 s25, s25, %d" % (padd * 64))
        k.e("v_add_u32 v3, s25, v2")
        k.e("buffer_load_dwordx4 v[%d:%d], v3, s[44:47], 0 offen" % (vc + 8 * cb, vc + 8 * cb + 3))
        k.e("v_add_u32 v3, %d, v3" % (F * 4))
        k.e("buffer_load_dwordx4 v[%d:%d], v3, s[44:47], 0 offen" % (vc + 8 * cb + 4, vc + 8 * cb + 7))
    k.e("s_waitcnt vmcnt(0)")
    for cb in range(half):
        si, pmul, padd = colblocks[cb]
        k.e("s_mul_i32 s25, s21, %d" % (width * 2))
        k.e("s_mul_i32 s26, s24, %d" % (pmul * 32))
        k.e("s_add_u32 s25, s25, s26")
        k.e("s_add_u32 s25, s25, %d" % (padd * 32))
        k.e("v_add_u32 v3, s25, v1")
        for rb in range(RB):
            g = acc(rb, cb); u = acc(rb, cb + half)
            ln_apply(k, c, g, rb, vc + 8 * cb)
            ln_apply(k, c, u, rb, vc + 8 * cb + 4)
            k.e("v_cvt_pk_bf16_f32 v4, v%d, v%d" % (g, g + 1))
            k.e("v_cvt_pk_bf16_f32 v5, v%d, v%d" % (g + 2, g + 3))
            k.e("v_cvt_pk_bf16_f32 v6, v%d, v%d" % (u, u + 1))
            k.e("v_cvt_pk_bf16_f32 v7, v%d, v%d" % (u + 2, u + 3))
            for j in range(2):
                k.e("""
                v_lshlrev_b32 v8, 16, v%d
                v_and_b32 v9, 0xffff0000, v%d
                v_mul_f32 v10, 0xbfb8aa3b, v8
                v_mul_f32 v11, 0xbfb8aa3b, v9
                v_exp_f32 v10, v10
                v_exp_f32 v11, v11
                s_nop 0
                v_add_f32 v10, 1.0, v10
                v_add_f32 v11, 1.0, v11
                v_rcp_f32 v10, v10
                v_rcp_f32 v11, v11
                s_nop 0
                v_mul_f32 v8, v8, v10
                v_mul_f32 v9, v9, v11
                v_cvt_pk_bf16_f32 v8, v8, v9
                v_lshlrev_b32 v9, 16, v8
                v_and_b32 v8, 0xffff0000, v8
                v_lshlrev_b32 v10, 16, v%d
                v_and_b32 v11, 0xffff0000, v%d
                v_mul_f32 v9, v9, v10
                v_mul_f32 v8, v8, v11
                v_cvt_pk_bf16_f32 v%d, v9, v8
                """ % (4 + j, 4 + j, 6 + j, 6 + j, g + j))
            k.e("v_add_u32 v12, %d, v3" % (rb * 16 * ldc * 2))
            k.e("buffer_store_dwordx2 v[%d:%d], v12, s[40:43], 0 offen" % (g, g + 1))


def gen_attn(name):
    MIMIC = 'mimic' in EXP
    NATT = 512
    NCS = 2 * F // 64
    nwg = NATT + NCS
    KV_ROWS = 384
    K_LDS = 0
    V_LDS = KV_ROWS * 64
    k = Kern(name, (nwg, 1, 1), (256, 1, 1), 2 * KV_ROWS * 64, 0)
    lab = lambda s: "%s_%s" % (name, s)
    k.e("s_cmp_ge_u32 s2, %d" % nwg)
    k.e("s_cbranch_scc1 %s" % lab("end"))
    load_ptrs(k)
    k.e("s_cmp_ge_u32 s2, %d" % NATT)
    k.e("s_cbranch_scc1 %s" % lab("cs"))
    srd(k, 4, KA_WS, WS_QKV, S * 3 * D * 2)
    srd(k, 8, KA_WS, WS_O, S * D * 2)
    k.e("s_and_b32 s20, s2, 31")
    k.e("s_lshr_b32 s21, s2, 5")
    k.e("v_lshrrev_b32 v1, 6, v0")
    k.e("s_nop 0")
    k.e("v_readfirstlane_b32 s22, v1")
    k.e("v_and_b32 v0, 63, v0")
    k.e("""
    v_lshrrev_b32 v1, 2, v0
    v_and_b32 v2, 3, v0
    v_bfe_u32 v3, v0, 4, 2
    v_xor_b32 v2, v2, v3
    v_lshlrev_b32 v2, 4, v2
    s_lshl_b32 s23, s21, 7
    s_mul_i32 s24, s22, 96
    s_add_u32 s23, s23, s24
    s_sub_u32 s23, s23, 256
    v_add_u32 v1, s23, v1
    s_mov_b32 s24, %d
    v_mul_lo_u32 v1, v1, s24
    v_add_u32 v1, v1, v2
    s_lshl_b32 s24, s20, 6
    v_add_u32 v1, s24, v1
    s_mul_i32 s25, s22, 6144
    """ % (3 * D * 2))
    for mat, ldsb in ((1, K_LDS), (2, V_LDS)):
        for t in range(6):
            k.e("v_add_u32 v2, %d, v1" % (t * 16 * 3 * D * 2 + mat * D * 2))
            k.e("s_add_u32 m0, s25, %d" % (ldsb + t * 1024))
            k.e("s_nop 0")
            k.e("buffer_load_dwordx4 v2, s[4:7], 0 offen lds")
    k.e("""
    s_lshl_b32 s23, s21, 7
    s_lshl_b32 s24, s22, 5
    s_add_u32 s23, s23, s24
    v_and_b32 v1, 31, v0
    v_add_u32 v1, s23, v1
    s_mov_b32 s24, %d
    v_mul_lo_u32 v1, v1, s24
    v_lshrrev_b32 v2, 5, v0
    v_lshlrev_b32 v2, 4, v2
    s_lshl_b32 s24, s20, 6
    v_add3_u32 v1, v1, v2, s24
    buffer_load_dwordx4 v[4:7], v1, s[4:7], 0 offen
    buffer_load_dwordx4 v[8:11], v1, s[4:7], 0 offen offset:32
    v_and_b32 v1, 31, v0
    v_lshlrev_b32 v12, 6, v1
    v_bfe_u32 v2, v0, 2, 2
    v_lshrrev_b32 v3, 5, v0
    v_xor_b32 v13, v3, v2
    v_lshlrev_b32 v13, 4, v13
    v_add_u32 v13, v12, v13
    v_or_b32 v3, 2, v3
    v_xor_b32 v14, v3, v2
    v_lshlrev_b32 v14, 4, v14
    v_add_u32 v14, v12, v14
    s_lshl_b32 s24, s22, 11
    v_add_u32 v13, s24, v13
    v_add_u32 v14, s24, v14
    v_bfe_u32 v1, v0, 5, 1
    v_lshlrev_b32 v1, 2, v1
    v_bfe_u32 v2, v0, 2, 2
    v_add_u32 v1, v1, v2
    v_bfe_u32 v2, v0, 4, 1
    v_lshlrev_b32 v2, 1, v2
    v_bfe_u32 v3, v0, 1, 1
    v_or_b32 v2, v2, v3
    v_and_b32 v3, 1, v0
    v_lshlrev_b32 v3, 3, v3
    """ % (3 * D * 2))
    for j in range(4):
        k.e("v_add_u32 v19, %d, v1" % (8 * j))
        k.e("v_bfe_u32 v20, v19, 2, 2")
        k.e("v_xor_b32 v20, v20, v2")
        k.e("v_lshlrev_b32 v20, 4, v20")
        k.e("v_lshlrev_b32 v19, 6, v19")
        k.e("v_add3_u32 v%d, v19, v20, v3" % (15 + j))
        k.e("v_add_u32 v%d, s24, v%d" % (15 + j, 15 + j))
    k.e("s_waitcnt vmcnt(0)")
    k.e("s_barrier")
    SB = 48
    k.e("ds_read_b128 v[20:23], v13 offset:%d" % K_LDS)
    k.e("ds_read_b128 v[24:27], v14 offset:%d" % K_LDS)
    for b in range(9):
        f = 20 + 8 * (b & 1); fn = 20 + 8 * ((b + 1) & 1)
        if b < 8:
            k.e("ds_read_b128 v[%d:%d], v13 offset:%d" % (fn, fn + 3, K_LDS + (b + 1) * 2048))
            k.e("ds_read_b128 v[%d:%d], v14 offset:%d" % (fn + 4, fn + 7, K_LDS + (b + 1) * 2048))
            k.e("s_waitcnt lgkmcnt(2)")
        else:
            k.e("s_waitcnt lgkmcnt(0)")
        s0 = SB + b * 16
        k.e("v_mfma_f32_32x32x16_bf16 v[%d:%d], v[%d:%d], v[4:7], 0" % (s0, s0 + 15, f, f + 3))
        k.e("v_mfma_f32_32x32x16_bf16 v[%d:%d], v[%d:%d], v[8:11], v[%d:%d]" % (s0, s0 + 15, f + 4, f + 7, s0, s0 + 15))
    k.e("s_nop 15")
    NSR = 144
    if MIMIC:
        for r in range(0, NSR, 2):
            a = SB + r
            k.e("v_cvt_pk_bf16_f32 v36, v%d, v%d" % (a, a + 1))
            k.e("v_lshlrev_b32 v%d, 16, v36" % a)
            k.e("v_and_b32 v%d, 0xffff0000, v36" % (a + 1))
            k.e("v_mul_f32 v%d, 0x3e3504f3, v%d" % (a, a))
            k.e("v_mul_f32 v%d, 0x3e3504f3, v%d" % (a + 1, a + 1))
            k.e("v_cvt_pk_bf16_f32 v36, v%d, v%d" % (a, a + 1))
            k.e("v_lshlrev_b32 v%d, 16, v36" % a)
            k.e("v_and_b32 v%d, 0xffff0000, v36" % (a + 1))
        k.e("s_mov_b32 s26, 0x3fb8aa3b")
    else:
        k.e("s_mov_b32 s26, 0x3e8293ee")
    k.e("v_and_b32 v1, 31, v0")
    k.e("v_lshrrev_b32 v2, 5, v0")
    k.e("v_lshlrev_b32 v2, 2, v2")
    k.e("v_sub_u32 v1, v1, v2")
    k.e("v_mov_b32 v3, 0xce6e6b28")
    for r in range(16):
        c = (r & 3) + 8 * (r >> 2)
        k.e("v_cmp_ge_i32 vcc, v1, %d" % c)
        k.e("s_nop 1")
        k.e("v_cndmask_b32 v%d, v%d, v3, vcc" % (SB + r, SB + r))
        k.e("v_cndmask_b32 v%d, v3, v%d, vcc" % (SB + 128 + r, SB + 128 + r))
    k.e("s_lshl_b32 s23, s21, 2")
    k.e("s_add_u32 s23, s23, s22")
    k.e("s_cmp_ge_u32 s23, 8")
    k.e("s_cbranch_scc1 %s" % lab("nomask"))
    for b in range(8):
        k.e("s_cmp_lt_u32 s23, %d" % (8 - b))
        k.e("s_cbranch_scc0 %s" % lab("nm%d" % b))
        for r in range(16):
            k.e("v_mov_b32 v%d, v3" % (SB + b * 16 + r))
        k.lab(lab("nm%d" % b))
    k.lab(lab("nomask"))
    k.e("v_max_f32 v1, v%d, v%d" % (SB, SB + 1))
    for r in range(2, NSR, 2):
        k.e("v_max3_f32 v1, v1, v%d, v%d" % (SB + r, SB + r + 1))
    k.e("v_mov_b32 v2, v1")
    k.e("s_nop 1")
    k.e("v_permlane32_swap_b32 v1, v2")
    k.e("v_max_f32 v1, v1, v2")
    k.e("v_mul_f32 v1, s26, v1")
    k.e("v_mov_b32 v2, 0")
    k.e("v_mov_b32 v3, 0")
    PB = None
    for b in range(9):
        for r in range(16):
            a = SB + b * 16 + r
            k.e("v_fma_f32 v%d, v%d, s26, -v1" % (a, a))
            k.e("v_exp_f32 v%d, v%d" % (a, a))
        k.e("s_nop 0")
        if not MIMIC:
            for j in range(8):
                a = SB + b * 16 + 2 * j
                k.e("v_add_f32 v2, v2, v%d" % a)
                k.e("v_add_f32 v3, v3, v%d" % (a + 1))
                k.e("v_cvt_pk_bf16_f32 v%d, v%d, v%d" % (SB + b * 16 + j, a, a + 1))
    if MIMIC:
        for r in range(NSR):
            k.e("v_add_f32 v2, v2, v%d" % (SB + r))
    k.e("v_add_f32 v2, v2, v3")
    k.e("v_mov_b32 v3, v2")
    k.e("s_nop 1")
    k.e("v_permlane32_swap_b32 v2, v3")
    k.e("v_add_f32 v2, v2, v3")
    k.e("v_rcp_f32 v2, v2")
    k.e("s_nop 0")
    if MIMIC:
        for b in range(9):
            for j in range(8):
                a = SB + b * 16 + 2 * j
                k.e("v_mul_f32 v%d, v%d, v2" % (a, a))
                k.e("v_mul_f32 v%d, v%d, v2" % (a + 1, a + 1))
                k.e("v_cvt_pk_bf16_f32 v%d, v%d, v%d" % (SB + b * 16 + j, a, a + 1))
    OA = 192
    for j in range(4):
        k.e("ds_read_b64_tr_b16 v[%d:%d], v%d offset:%d" % (20 + 2 * j, 21 + 2 * j, 15 + j, V_LDS))
    for b in range(9):
        f = 20 + 8 * (b & 1); fn = 20 + 8 * ((b + 1) & 1)
        if b < 8:
            for j in range(4):
                k.e("ds_read_b64_tr_b16 v[%d:%d], v%d offset:%d" % (fn + 2 * j, fn + 2 * j + 1, 15 + j, V_LDS + (b + 1) * 2048))
            k.e("s_waitcnt lgkmcnt(4)")
        else:
            k.e("s_waitcnt lgkmcnt(0)")
        p = SB + b * 16
        if b == 0:
            k.e("v_mfma_f32_32x32x16_bf16 v[%d:%d], v[%d:%d], v[%d:%d], 0" % (OA, OA + 15, f, f + 3, p, p + 3))
        else:
            k.e("v_mfma_f32_32x32x16_bf16 v[%d:%d], v[%d:%d], v[%d:%d], v[%d:%d]" % (OA, OA + 15, f, f + 3, p, p + 3, OA, OA + 15))
        k.e("v_mfma_f32_32x32x16_bf16 v[%d:%d], v[%d:%d], v[%d:%d], v[%d:%d]" % (OA, OA + 15, f + 4, f + 7, p + 4, p + 7, OA, OA + 15))
    k.e("""
    s_lshl_b32 s23, s21, 7
    s_lshl_b32 s24, s22, 5
    s_add_u32 s23, s23, s24
    v_and_b32 v1, 31, v0
    v_add_u32 v1, s23, v1
    v_lshlrev_b32 v1, 11, v1
    v_lshrrev_b32 v3, 5, v0
    v_lshlrev_b32 v3, 3, v3
    s_lshl_b32 s24, s20, 6
    v_add3_u32 v1, v1, v3, s24
    s_nop 7
    """)
    if not MIMIC:
        for r in range(16):
            k.e("v_mul_f32 v%d, v%d, v2" % (OA + r, OA + r))
    for j in range(4):
        k.e("v_cvt_pk_bf16_f32 v%d, v%d, v%d" % (208 + 2 * j, OA + 4 * j, OA + 1 + 4 * j))
        k.e("v_cvt_pk_bf16_f32 v%d, v%d, v%d" % (209 + 2 * j, OA + 2 + 4 * j, OA + 3 + 4 * j))
        k.e("buffer_store_dwordx2 v[%d:%d], v1, s[8:11], 0 offen offset:%d" % (208 + 2 * j, 209 + 2 * j, 16 * j))
    k.e("s_endpgm")
    k.lab(lab("cs"))
    k.e("s_sub_u32 s20, s2, %d" % NATT)
    k.e("s_cmp_lt_u32 s20, 56")
    k.e("s_cselect_b32 s4, s%d, s%d" % (PTR0 + 2 * KA_W1, PTR0 + 2 * KA_W3))
    k.e("s_cselect_b32 s5, s%d, s%d" % (PTR0 + 2 * KA_W1 + 1, PTR0 + 2 * KA_W3 + 1))
    k.e("s_and_b32 s5, s5, 0xffff")
    k.e("s_mov_b32 s6, %d" % (D * F * 2))
    k.e("s_mov_b32 s7, 0x00020000")
    k.e("s_cselect_b32 s21, 0, 56")
    k.e("s_sub_u32 s21, s20, s21")
    srd(k, 8, KA_WS, WS_CS, 2 * F * 4)
    k.e("""
    v_lshrrev_b32 v1, 3, v0
    v_and_b32 v2, 7, v0
    s_mov_b32 s22, %d
    v_mul_lo_u32 v1, v1, s22
    v_lshlrev_b32 v2, 4, v2
    s_lshl_b32 s22, s21, 7
    v_add3_u32 v1, v1, v2, s22
    """ % (F * 2))
    for r in range(8):
        k.e("v_mov_b32 v%d, 0" % (8 + r))
    for half in range(2):
        for i in range(16):
            k.e("v_add_u32 v2, %d, v1" % ((half * 16 + i) * 32 * F * 2))
            k.e("buffer_load_dwordx4 v[%d:%d], v2, s[4:7], 0 offen" % (16 + 4 * i, 19 + 4 * i))
        for i in range(16):
            k.e("s_waitcnt vmcnt(%d)" % (15 - i))
            for j in range(4):
                k.e("v_lshlrev_b32 v3, 16, v%d" % (16 + 4 * i + j))
                k.e("v_and_b32 v4, 0xffff0000, v%d" % (16 + 4 * i + j))
                k.e("v_add_f32 v%d, v%d, v3" % (8 + 2 * j, 8 + 2 * j))
                k.e("v_add_f32 v%d, v%d, v4" % (9 + 2 * j, 9 + 2 * j))
    k.e("v_lshlrev_b32 v2, 5, v0")
    k.e("ds_write_b128 v2, v[8:11]")
    k.e("ds_write_b128 v2, v[12:15] offset:16")
    k.e("s_waitcnt lgkmcnt(0)")
    k.e("s_barrier")
    k.e("v_cmp_gt_u32 vcc, 64, v0")
    k.e("s_and_saveexec_b64 s[24:25], vcc")
    k.e("s_cbranch_execz %s" % lab("end"))
    k.e("v_lshlrev_b32 v2, 2, v0")
    for i in range(32):
        k.e("ds_read_b32 v%d, v2 offset:%d" % (16 + i, i * 256))
    k.e("s_waitcnt lgkmcnt(0)")
    for i in range(1, 32):
        k.e("v_add_f32 v16, v16, v%d" % (16 + i))
    k.e("s_lshl_b32 s22, s20, 8")
    k.e("v_add_u32 v2, s22, v2")
    k.e("buffer_store_dword v16, v2, s[8:11], 0 offen")
    k.lab(lab("end"))
    k.e("s_endpgm")
    k.nvgpr = 216
    return k


def build():
    ks = []
    ks.append(gen_gemm("g1_kernel", 128, 2, 2, 1024, KA_X, 0,
                       [(KA_WQKV, 0, 3072, 128, 192), (KA_WQKV, 256, 3072, 64, 192)],
                       [(0, 4, 0), (0, 4, 1), (0, 4, 2), (0, 4, 3), (1, 2, 0), (1, 2, 1)], 16,
                       epi_store_factory(3072, KA_WS, WS_QKV, S * 3072 * 2), (4, 8), NL=4, ln='mfma'))
    ks.append(gen_attn("attn_kernel"))
    ks.append(gen_gemm("g2_kernel", 128, 2, 2, 1024, KA_WS, WS_O, [(KA_WO, 0, 1024, 64, 64)],
                       [(0, 2, 0), (0, 2, 1)], 16,
                       epi_store_factory(1024, KA_WS, WS_H, S * D * 2, part=True), (4, 8), NL=4, res=(KA_X, 0)))
    ks.append(gen_gemm("g3_kernel", 256, 4, 2, 1024, KA_WS, WS_H,
                       [(KA_W1, 0, F, 128, 128), (KA_W3, 0, F, 128, 128)],
                       [(0, 4, j) for j in range(4)] + [(1, 4, j) for j in range(4)], 28, epi_swiglu, (4, 7), ln='ws'))
    ks.append(gen_gemm("g4_kernel", 128, 2, 2, F, KA_WS, WS_ACT, [(KA_W2, 0, 1024, 64, 64)],
                       [(0, 2, 0), (0, 2, 1)], 16,
                       epi_store_factory(1024, KA_OUT, 0, S * D * 2), (4, 8), NL=4, res=(KA_WS, WS_H)))
    return ks


def main():
    ks = build()
    out = [HEADER.rstrip()]
    for k in ks:
        out.append("; @launch kernel=%s grid=(%d,%d,%d) block=(%d,%d,%d) lds=%d" % ((k.name,) + k.grid + k.block + (k.lds,)))
    out.append('.amdgcn_target "amdgcn-amd-amdhsa--gfx950"')
    out.append(".text")
    for k in ks:
        out.append(k.text())
    out.append('.section .rodata,"a"')
    for k in ks:
        out.append(".p2align 6")
        out.append(k.desc())
    open(sys.argv[1] if len(sys.argv) > 1 else "sequential_preLN__sliding_block__glu_gated_swiglu__prompt.s", "w").write("\n".join(out) + "\n")


if __name__ == "__main__":
    main()
```

```python
import sys, os
EXP = os.environ.get('EXP', '')

S = 2048; D = 1024; F = 3584
MB = 1 << 20
WS_QKV = 4 * MB
WS_O = 16 * MB
WS_H = 20 * MB
WS_ACT = 28 * MB
WS_PART = 49 * MB
WS_CS = 48 * MB

KA_X, KA_WQKV, KA_WO, KA_BX, KA_W1, KA_W3, KA_W2, KA_OUT, KA_DBG, KA_WS = range(10)
PTR0 = 64

HEADER = """; Kernarg layout for this problem (80 bytes, ptrs only, base s[0:1]):
;   offset  72: d_ws      268435456 bytes workspace
"""


class Kern:
    def __init__(self, name, grid, block, lds, nvgpr, nsgpr=100):
        self.name = name; self.grid = grid; self.block = block; self.lds = lds
        self.nvgpr = nvgpr; self.nsgpr = nsgpr
        self.lines = []

    def e(self, s):
        for ln in s.strip().split("\n"):
            if ln.strip():
                self.lines.append("    " + ln.strip())

    def lab(self, l):
        self.lines.append(l + ":")

    def text(self):
        out = [".globl %s" % self.name, ".p2align 8", ".type %s,@function" % self.name, "%s:" % self.name]
        return "\n".join(out + self.lines)

    def desc(self):
        nv = self.nvgpr
        return """.amdhsa_kernel %s
  .amdhsa_next_free_vgpr %d
  .amdhsa_next_free_sgpr %d
  .amdhsa_accum_offset %d
  .amdhsa_group_segment_fixed_size 0
  .amdhsa_kernarg_size 80
  .amdhsa_user_sgpr_count 2
  .amdhsa_user_sgpr_kernarg_segment_ptr 1
  .amdhsa_system_sgpr_workgroup_id_x 1
.end_amdhsa_kernel""" % (self.name, nv, self.nsgpr, (nv + 3) // 4 * 4)


def load_ptrs(k):
    k.e("s_load_dwordx16 s[64:79], s[0:1], 0")
    k.e("s_load_dwordx4 s[80:83], s[0:1], 64")
    k.e("s_waitcnt lgkmcnt(0)")


def srd(k, sreg, slot, off, nbytes):
    p = PTR0 + 2 * slot
    if off:
        k.e("s_add_u32 s%d, s%d, %d" % (sreg, p, off))
        k.e("s_addc_u32 s%d, s%d, 0" % (sreg + 1, p + 1))
        k.e("s_and_b32 s%d, s%d, 0xffff" % (sreg + 1, sreg + 1))
    else:
        k.e("s_mov_b32 s%d, s%d" % (sreg, p))
        k.e("s_and_b32 s%d, s%d, 0xffff" % (sreg + 1, p + 1))
    k.e("s_mov_b32 s%d, %d" % (sreg + 2, nbytes))
    k.e("s_mov_b32 s%d, 0x00020000" % (sreg + 3))


def stamp(k, i):
    if 'stamp' in EXP:
        k.e("s_memrealtime s[%d:%d]" % (86 + 2 * i, 87 + 2 * i))


def stamp_store(k, n, kidx):
    if 'stamp' not in EXP:
        return
    k.e("s_waitcnt vmcnt(0) lgkmcnt(0)")
    k.e("s_memrealtime s[%d:%d]" % (86 + 2 * n, 87 + 2 * n))
    k.e("s_waitcnt lgkmcnt(0)")
    srd(k, 56, KA_WS, 64 * MB + kidx * 65536, 65536)
    k.e("s_lshl_b32 s60, s2, 6")
    k.e("v_mov_b32 v1, s60")
    for i in range(n + 1):
        k.e("v_mov_b32 v2, s%d" % (86 + 2 * i))
        k.e("buffer_store_dword v2, v1, s[56:59], 0 offen offset:%d" % (4 * i))


def f3(k):
    return (k & 3) | ((k >> 1) & 4)


def gen_gemm(name, BM, WM, WN, Kdim, a_slot, a_off, subs, colblocks, ntn, epi, grp, nstages=6, NL=0, ln=None, res=None, pp=False, npf=0):
    NWC = WM * WN
    NW = NL if NL else NWC
    RB = BM // WM // 16
    CB = len(colblocks)
    ntm = S // BM
    nwg = ntm * ntn
    nk = Kdim // 64
    sub_lds = []
    o = BM * 128
    for sb in subs:
        sub_lds.append(o); o += 64 * sb[3] * 2
    STAGE = o
    NS = min(nstages, 163840 // STAGE)
    assert NS >= 2 and STAGE <= 65536
    k = Kern(name, (nwg + npf, 1, 1), (64 * (NWC + NL), 1, 1), NS * STAGE, 0)
    lab = lambda s: "%s_%s" % (name, s)
    k.e("s_cmp_ge_u32 s2, %d" % (nwg + npf))
    k.e("s_cbranch_scc1 %s" % lab("end"))
    stamp(k, 0)
    load_ptrs(k)
    if npf:
        k.e("s_cmp_lt_u32 s2, %d" % nwg)
        k.e("s_cbranch_scc1 %s" % lab("main"))
        srd(k, 4, KA_W2, 0, F * D * 2)
        per = F * D * 2 // npf
        nthr = 64 * (NWC + NL)
        assert per % (nthr * 16) == 0
        k.e("s_sub_u32 s20, s2, %d" % nwg)
        k.e("s_mul_i32 s20, s20, %d" % per)
        k.e("v_lshlrev_b32 v1, 4, v0")
        k.e("v_add_u32 v1, s20, v1")
        for i in range(per // (nthr * 16)):
            k.e("buffer_load_dwordx4 v[%d:%d], v1, s[4:7], 0 offen" % (8 + 4 * i, 11 + 4 * i))
            k.e("v_add_u32 v1, %d, v1" % (nthr * 16))
        k.e("s_waitcnt vmcnt(0)")
        k.e("s_endpgm")
        k.lab(lab("main"))
    srd(k, 4, a_slot, a_off, S * Kdim * 2)
    for i, sb in enumerate(subs):
        srd(k, 8 + 4 * i, sb[0], sb[1], Kdim * sb[2] * 2 - sb[1])
    gm, gn = grp
    assert gm * gn * 8 == nwg
    k.e("s_and_b32 s25, s2, 7")
    k.e("s_lshr_b32 s26, s2, 3")
    ng = ntm // gm
    k.e("s_and_b32 s20, s25, %d" % (ng - 1))
    k.e("s_mul_i32 s20, s20, %d" % gm)
    k.e("s_and_b32 s27, s26, %d" % (gm - 1))
    k.e("s_add_u32 s20, s20, s27")
    k.e("s_lshr_b32 s21, s25, %d" % (ng.bit_length() - 1))
    k.e("s_mul_i32 s21, s21, %d" % gn)
    k.e("s_lshr_b32 s27, s26, %d" % (gm.bit_length() - 1))
    k.e("s_add_u32 s21, s21, s27")
    k.e("v_lshrrev_b32 v1, 6, v0")
    k.e("s_nop 0")
    k.e("v_readfirstlane_b32 s19, v1")
    k.e("s_and_b32 s23, s19, %d" % (WM - 1))
    k.e("s_lshr_b32 s24, s19, %d" % (WM.bit_length() - 1))
    k.e("s_and_b32 s24, s24, %d" % (WN - 1))
    if NL:
        k.e("s_sub_u32 s22, s19, %d" % NWC)
        k.e("s_and_b32 s22, s22, %d" % (NL - 1))
    else:
        k.e("s_mov_b32 s22, s19")
    k.e("v_and_b32 v0, 63, v0")
    nA_w = BM // 8 // NW
    vA_dma = 2
    _nb = sum(64 * sb[3] * 2 // 1024 // NW for sb in subs)
    XORST = (NS == 2 and STAGE == 65536)
    _vx = vA_dma + nA_w + _nb + (1 if XORST else 2) * (2 + CB)
    if ln == 'mfma':
        _vx = (_vx + 2 * RB + 3) // 4 * 4 + 4 + 4 * CB
    elif ln:
        _vx = _vx + 2 * RB + 1
    if res:
        _vx = (_vx + 1) // 2 * 2 + 2 * RB * CB
    _vfr = (_vx + 3) // 4 * 4
    T0, T1, T2 = _vfr, _vfr + 1, _vfr + 2
    k.e("""
    v_lshrrev_b32 v1, 3, v0
    v_and_b32 v%d, 7, v0
    v_xor_b32 v%d, v%d, v1
    v_lshlrev_b32 v%d, 4, v%d
    """ % (T0, T0, T0, T0, T0))
    k.e("s_mul_i32 s25, s22, %d" % (nA_w * 8))
    k.e("s_mul_i32 s26, s20, %d" % BM)
    k.e("s_add_u32 s25, s25, s26")
    k.e("v_add_u32 v1, s25, v1")
    k.e("s_mov_b32 s26, %d" % (Kdim * 2))
    k.e("v_mul_lo_u32 v1, v1, s26")
    k.e("v_add_u32 v%d, v1, v%d" % (vA_dma, T0))
    for t in range(1, nA_w):
        k.e("v_add_u32 v%d, %d, v%d" % (vA_dma + t, t * 8 * Kdim * 2, vA_dma))
    bdma = []
    vb = vA_dma + nA_w
    for si, (slot, off, ldb, width, tnmul) in enumerate(subs):
        pitch = width * 2
        nB = 64 * pitch // 1024
        assert nB % NW == 0
        nB_w = nB // NW
        rows_per = 1024 // pitch
        cpr = pitch // 16
        for t in range(nB_w):
            k.e("s_mul_i32 s25, s22, %d" % (nB_w * rows_per))
            k.e("s_add_u32 s25, s25, %d" % (t * rows_per))
            k.e("v_lshrrev_b32 v1, %d, v0" % (cpr.bit_length() - 1))
            k.e("v_add_u32 v1, s25, v1")
            if pitch >= 256:
                k.e("v_and_b32 v%d, 3, v1" % T0)
                k.e("v_lshrrev_b32 v%d, 1, v1" % T1)
                k.e("v_and_b32 v%d, 4, v%d" % (T1, T1))
            else:
                k.e("v_bfe_u32 v%d, v1, 1, 1" % T0)
                k.e("v_lshrrev_b32 v%d, 2, v1" % T1)
                k.e("v_and_b32 v%d, 2, v%d" % (T1, T1))
            k.e("v_or_b32 v%d, v%d, v%d" % (T0, T0, T1))
            k.e("v_lshlrev_b32 v%d, 1, v%d" % (T0, T0))
            k.e("v_and_b32 v%d, %d, v0" % (T1, cpr - 1))
            k.e("v_xor_b32 v%d, v%d, v%d" % (T0, T0, T1))
            k.e("v_lshlrev_b32 v%d, 4, v%d" % (T0, T0))
            k.e("s_mov_b32 s26, %d" % (ldb * 2))
            k.e("v_mul_lo_u32 v1, v1, s26")
            k.e("v_add_u32 v1, v1, v%d" % T0)
            k.e("s_mul_i32 s26, s21, %d" % (tnmul * 2))
            k.e("v_add_u32 v%d, s26, v1" % vb)
            bdma.append((si, t, vb, nB_w))
            vb += 1
    NAD = 2 + CB
    vAb = vb
    vAr = vAb if XORST else vAb + NAD
    k.e("""
    v_and_b32 v1, 15, v0
    v_lshlrev_b32 v1, 7, v1
    v_lshrrev_b32 v%d, 4, v0
    v_and_b32 v%d, 7, v0
    """ % (T0, T1))
    k.e("s_mul_i32 s25, s23, %d" % (RB * 16 * 128))
    k.e("v_add_u32 v1, s25, v1")
    k.e("v_xor_b32 v%d, v%d, v%d" % (T2, T0, T1))
    k.e("v_lshlrev_b32 v%d, 4, v%d" % (T2, T2))
    k.e("v_add_u32 v%d, v1, v%d" % (vAb, T2))
    k.e("v_or_b32 v%d, 4, v%d" % (T0, T0))
    k.e("v_xor_b32 v%d, v%d, v%d" % (T2, T0, T1))
    k.e("v_lshlrev_b32 v%d, 4, v%d" % (T2, T2))
    k.e("v_add_u32 v%d, v1, v%d" % (vAb + 1, T2))
    for cb, (si, pmul, padd) in enumerate(colblocks):
        pitch = subs[si][3] * 2
        k.e("""
        v_lshrrev_b32 v1, 4, v0
        v_lshlrev_b32 v1, 3, v1
        v_bfe_u32 v%d, v0, 2, 2
        v_add_u32 v1, v1, v%d
        """ % (T0, T0))
        if pitch >= 256:
            k.e("v_bfe_u32 v%d, v0, 4, 1" % T1)
            k.e("v_lshlrev_b32 v%d, 2, v%d" % (T1, T1))
            k.e("v_or_b32 v%d, v%d, v%d" % (T1, T1, T0))
        else:
            k.e("v_bfe_u32 v%d, v0, 3, 1" % T1)
            k.e("v_bfe_u32 v%d, v0, 4, 1" % T2)
            k.e("v_lshlrev_b32 v%d, 1, v%d" % (T2, T2))
            k.e("v_or_b32 v%d, v%d, v%d" % (T1, T1, T2))
        k.e("s_mul_i32 s25, s24, %d" % pmul)
        k.e("s_add_u32 s25, s25, %d" % padd)
        k.e("v_xor_b32 v%d, s25, v%d" % (T1, T1))
        k.e("v_lshlrev_b32 v%d, 5, v%d" % (T1, T1))
        k.e("s_mov_b32 s26, %d" % pitch)
        k.e("v_mul_lo_u32 v1, v1, s26")
        k.e("v_and_b32 v%d, 3, v0" % T2)
        k.e("v_lshlrev_b32 v%d, 3, v%d" % (T2, T2))
        k.e("v_add3_u32 v%d, v1, v%d, v%d" % (vAb + 2 + cb, T1, T2))
    vBr = vAr + 2
    vx = vAr + NAD
    vsum = vsq = vones = vcs = vres = None
    if ln:
        vsum = vx; vsq = vx + RB; vx += 2 * RB
        if ln == 'mfma':
            vx = (vx + 3) // 4 * 4
            vones = vx; vx += 4
            vcs = vx; vx += 4 * CB
        else:
            vones = vx; vx += 1
    if res:
        vx = (vx + 1) // 2 * 2
        vres = vx; vx += 2 * RB * CB
    vfr = (vx + 3) // 4 * 4
    fA = lambda s, rb: vfr + (s * RB + rb) * 4
    fB = lambda s, cb: vfr + 2 * RB * 4 + (s * CB + cb) * 4
    vacc = vfr + 2 * RB * 4 + 2 * CB * 4
    assert vfr == _vfr
    acc = lambda rb, cb: vacc + (rb * CB + cb) * 4
    vend = vacc + RB * CB * 4
    k.nvgpr = vend
    assert vend <= 256
    ctx = dict(ws_stats=lambda: ws_stats(), RB=RB, CB=CB, acc=acc, colblocks=colblocks, subs=subs, BM=BM, vend=vend, vres=vres, ln=ln,
               vsum=vsum, vsq=vsq, vcs=vcs, Kdim=Kdim, lab=lab, vfr=vfr)
    def ws_stats():
        srd(k, 48, KA_WS, WS_PART, S * 256)
        t = vfr + 36
        dbase = [vfr + 40, vfr + 56, vfr + 72, 4]
        assert RB == 4 and vsum >= 20
        k.e("s_mul_i32 s25, s20, %d" % BM)
        k.e("s_mul_i32 s26, s23, %d" % (RB * 16))
        k.e("s_add_u32 s25, s25, s26")
        k.e("v_and_b32 v%d, 15, v0" % t)
        k.e("v_add_u32 v%d, s25, v%d" % (t, t))
        k.e("v_lshlrev_b32 v%d, 4, v%d" % (t, t))
        k.e("v_lshrrev_b32 v%d, 4, v0" % (t + 1))
        k.e("v_lshlrev_b32 v%d, 17, v%d" % (t + 1, t + 1))
        k.e("v_add_u32 v%d, v%d, v%d" % (t, t, t + 1))
        for j in range(4):
            if j:
                k.e("v_add_u32 v%d, 32768, v%d" % (t, t))
            for rb in range(RB):
                d = dbase[rb] + 4 * j
                k.e("buffer_load_dwordx4 v[%d:%d], v%d, s[48:51], 0 offen offset:%d" % (d, d + 3, t, 256 * rb))
        k.e("s_waitcnt vmcnt(0)")
        for rb in range(RB):
            d = dbase[rb]
            k.e("v_add_f32 v%d, v%d, v%d" % (vsum + rb, d, d + 2))
            k.e("v_add_f32 v%d, v%d, v%d" % (vsq + rb, d + 1, d + 3))
            for j in range(2, 8):
                k.e("v_add_f32 v%d, v%d, v%d" % (vsum + rb, vsum + rb, d + 2 * j))
                k.e("v_add_f32 v%d, v%d, v%d" % (vsq + rb, vsq + rb, d + 2 * j + 1))
        ctx["vtmp"] = vfr + 40
        ln_finish(k, ctx)

    def zero_acc():
        for r in range(vacc, vend):
            k.e("v_mov_b32 v%d, 0" % r)
    if ln != 'ws':
        zero_acc()
    if ln:
        for r in range(2 * RB if ln == 'mfma' else 0):
            k.e("v_mov_b32 v%d, 0" % (vsum + r))
        for r in range(4 if vcs else 1):
            k.e("v_mov_b32 v%d, 0x3f803f80" % (vones + r))
        if vcs:
            for r in range(4 * CB):
                k.e("v_mov_b32 v%d, 0" % (vcs + r))
    k.e("s_mov_b32 s30, 0")
    for i in range(len(subs)):
        k.e("s_mov_b32 s%d, 0" % (31 + i))
    k.e("s_mov_b32 s34, 0")
    k.e("s_mul_i32 s35, s22, %d" % (nA_w * 1024))
    for (si, t, vreg, nB_w) in bdma:
        if t == 0:
            k.e("s_mul_i32 s%d, s22, %d" % (44 + si, nB_w * 1024))
            k.e("s_add_u32 s%d, s%d, %d" % (44 + si, 44 + si, sub_lds[si]))
    nd = nA_w + len(bdma)

    def dma_items():
        it = []
        for t in range(nA_w):
            if t:
                pre = "s_add_u32 m0, s36, %d\ns_nop 0\n" % (t * 1024)
            else:
                pre = "s_add_u32 s36, s34, s35\ns_mov_b32 m0, s36\ns_nop 0\n"
            it.append(pre + "buffer_load_dwordx4 v%d, s[4:7], s30 offen lds" % (vA_dma + t))
        for (si, t, vreg, nB_w) in bdma:
            if t == 0:
                pre = "s_add_u32 s36, s34, s%d\ns_mov_b32 m0, s36\ns_nop 0\n" % (44 + si)
            else:
                pre = "s_add_u32 m0, s36, %d\ns_nop 0\n" % (t * 1024)
            it.append(pre + "buffer_load_dwordx4 v%d, s[%d:%d], s%d offen lds" % (vreg, 8 + 4 * si, 11 + 4 * si, 31 + si))
        tail = "s_add_u32 s30, s30, 128\n"
        for i, sb in enumerate(subs):
            tail += "s_add_u32 s%d, s%d, %d\n" % (31 + i, 31 + i, 64 * sb[2] * 2)
        tail += "s_add_u32 s34, s34, %d\ns_cmp_eq_u32 s34, %d\ns_cselect_b32 s34, 0, s34" % (STAGE, NS * STAGE)
        it[-1] += "\n" + tail
        return it

    def dma():
        for x in dma_items():
            k.e(x)

    def setaddr_items():
        if XORST:
            return ["v_xor_b32 v%d, %d, v%d" % (vAr + r, STAGE, vAr + r) for r in range(NAD)]
        it = ["v_add_u32 v%d, s38, v%d" % (vAr + r, vAb + r) for r in range(NAD)]
        it[-1] += "\ns_add_u32 s38, s38, %d\ns_cmp_eq_u32 s38, %d\ns_cselect_b32 s38, 0, s38" % (STAGE, NS * STAGE)
        return it

    def read_items(st, kk):
        it = []
        for rb in range(RB):
            it.append("ds_read_b128 v[%d:%d], v%d offset:%d" % (fA(st, rb), fA(st, rb) + 3, vAr + kk, rb * 2048))
        for cb, (si, pmul, padd) in enumerate(colblocks):
            pitch = subs[si][3] * 2
            base = sub_lds[si] + kk * 32 * pitch
            it.append("ds_read_b64_tr_b16 v[%d:%d], v%d offset:%d" % (fB(st, cb), fB(st, cb) + 1, vBr + cb, base))
            it.append("ds_read_b64_tr_b16 v[%d:%d], v%d offset:%d" % (fB(st, cb) + 2, fB(st, cb) + 3, vBr + cb, base + 4 * pitch))
        return it

    def stat_items(st):
        return []

    def mfmas(st, fill=(), late=()):
        fill = list(fill); late = list(late)
        ms = []
        for rb in range(RB):
            for cb in range(CB):
                a = acc(rb, cb)
                ms.append("v_mfma_f32_16x16x32_bf16 v[%d:%d], v[%d:%d], v[%d:%d], v[%d:%d]" % (
                    a, a + 3, fB(st, cb), fB(st, cb) + 3, fA(st, rb), fA(st, rb) + 3, a, a + 3))
        if vcs and 'nocs' not in EXP:
            for cb in range(CB):
                c = vcs + 4 * cb
                ms.append("v_mfma_f32_16x16x32_bf16 v[%d:%d], v[%d:%d], v[%d:%d], v[%d:%d]" % (
                    c, c + 3, fB(st, cb), fB(st, cb) + 3, vones, vones + 3, c, c + 3))
        n = len(ms)
        per = -(-len(fill) // n) if fill else 0
        perl = -(-len(late) // n) if late else 0
        for m in ms:
            k.e(m)
            for _ in range(per):
                if fill:
                    k.e(fill.pop(0))
            for _ in range(perl):
                if late:
                    k.e(late.pop(0))
        assert not fill and not late

    k.e("s_mov_b32 s37, 0")
    if NL:
        assert NS >= 3
        k.e("s_cmp_lt_u32 s19, %d" % NWC)
        k.e("s_cbranch_scc1 %s" % lab("comp"))
        for s_ in range(NS - 1):
            dma()
        LS = (ln == 'mfma')
        if LS:
            assert BM == 128 and NL == 4
            t = vfr
            k.e("v_lshrrev_b32 v%d, 1, v0" % (t + 22))
            k.e("s_lshl_b32 s25, s22, 5")
            k.e("v_add_u32 v%d, s25, v%d" % (t + 23, t + 22))
            k.e("v_lshlrev_b32 v%d, 7, v%d" % (t + 23, t + 23))
            k.e("v_and_b32 v%d, 1, v0" % (t + 24))
            k.e("v_lshlrev_b32 v%d, 6, v%d" % (t + 24, t + 24))
            k.e("v_add_u32 v%d, v%d, v%d" % (t + 23, t + 23, t + 24))
            k.e("v_lshrrev_b32 v%d, 1, v%d" % (t + 22, t + 22))
            for j in range(4):
                k.e("v_add_u32 v%d, %d, v%d" % (t + 24, j, t + 22))
                k.e("v_and_b32 v%d, 3, v%d" % (t + 24, t + 24))
                k.e("v_lshlrev_b32 v%d, 4, v%d" % (t + 24, t + 24))
                k.e("v_add_u32 v%d, v%d, v%d" % (t + 26 + j, t + 23, t + 24))
            k.e("v_mov_b32 v%d, 0" % (t + 20))
            k.e("v_mov_b32 v%d, 0" % (t + 21))
            k.e("s_mov_b32 s39, 0")

            def lstats():
                if 'nolstats' in EXP:
                    return
                for j in range(4):
                    k.e("v_add_u32 v%d, s39, v%d" % (t + j, t + 26 + j))
                for j in range(4):
                    k.e("ds_read_b128 v[%d:%d], v%d" % (t + 4 + 4 * j, t + 7 + 4 * j, t + j))
                k.e("s_add_u32 s39, s39, %d\ns_cmp_eq_u32 s39, %d\ns_cselect_b32 s39, 0, s39" % (STAGE, NS * STAGE))
                for j in range(16):
                    if j % 4 == 0:
                        k.e("s_waitcnt lgkmcnt(%d)" % (3 - j // 4))
                    d = t + 4 + j
                    k.e("v_dot2c_f32_bf16 v%d, v%d, v%d" % (t + 20, d, vones))
                    k.e("v_dot2c_f32_bf16 v%d, v%d, v%d" % (t + 21, d, d))
        k.e("s_waitcnt vmcnt(%d)" % ((NS - 2) * nd))
        k.e("s_barrier")
        if LS:
            lstats()
        k.lab(lab("lloop"))
        k.e("s_waitcnt vmcnt(%d)" % ((NS - 3) * nd))
        k.e("s_barrier")
        dma()
        k.e("s_add_u32 s37, s37, 1")
        k.e("s_cmp_lt_u32 s37, %d" % nk)
        if LS:
            k.e("s_cbranch_scc0 %s" % lab("ldone"))
            lstats()
            k.e("s_branch %s" % lab("lloop"))
            k.lab(lab("ldone"))
            k.e("s_waitcnt vmcnt(0)")
            for v in (t + 20, t + 21):
                k.e("ds_swizzle_b32 v%d, v%d offset:0x041F" % (t + 22, v))
                k.e("s_waitcnt lgkmcnt(0)")
                k.e("v_add_f32 v%d, v%d, v%d" % (v, v, t + 22))
            k.e("s_barrier")
            k.e("v_lshrrev_b32 v%d, 1, v0" % (t + 22))
            k.e("s_lshl_b32 s25, s22, 5")
            k.e("v_add_u32 v%d, s25, v%d" % (t + 22, t + 22))
            k.e("v_lshlrev_b32 v%d, 3, v%d" % (t + 22, t + 22))
            k.e("ds_write_b64 v%d, v[%d:%d]" % (t + 22, t + 20, t + 21))
            k.e("s_waitcnt lgkmcnt(0)")
            k.e("s_barrier")
        else:
            k.e("s_cbranch_scc1 %s" % lab("lloop"))
            k.e("s_waitcnt vmcnt(0)")
        k.e("s_endpgm")
        k.lab(lab("comp"))
        if res:
            res_prefetch(k, ctx, res)
        stamp(k, 1)
        k.e("s_mov_b32 s38, 0")
        for x in setaddr_items():
            k.e(x)
        k.e("s_barrier")
        stamp(k, 2)
        for x in read_items(0, 0):
            k.e(x)
        k.lab(lab("loop"))
        k.e("s_waitcnt lgkmcnt(0)")
        mfmas(0, read_items(1, 1), stat_items(0))
        k.e("s_barrier")
        k.e("s_waitcnt lgkmcnt(0)")
        mfmas(1, setaddr_items() + read_items(0, 0), stat_items(1))
    elif pp:
        assert XORST and NWC == 8
        dma()
        zero_acc()
        stamp(k, 1)
        k.e("s_waitcnt vmcnt(0)")
        k.e("s_barrier")
        k.e("s_cmp_ge_u32 s19, 4")
        k.e("s_cbranch_scc1 %s" % lab("ypath"))

        def loadphase():
            for x in dma_items():
                k.e(x)
            for x in read_items(0, 0) + read_items(1, 1):
                k.e(x)
            for x in setaddr_items():
                k.e(x)
            k.e("s_waitcnt lgkmcnt(0)")

        def compphase():
            mfmas(0)
            mfmas(1)
        loadphase()
        k.e("s_barrier")
        k.lab(lab("xloop"))
        compphase()
        k.e("s_waitcnt vmcnt(0)")
        k.e("s_barrier")
        loadphase()
        k.e("s_barrier")
        k.e("s_add_u32 s37, s37, 1")
        k.e("s_cmp_lt_u32 s37, %d" % nk)
        k.e("s_cbranch_scc1 %s" % lab("xloop"))
        k.e("s_branch %s" % lab("done"))
        k.lab(lab("ypath"))
        k.e("s_barrier")
        k.lab(lab("loop"))
        loadphase()
        k.e("s_waitcnt vmcnt(0)")
        k.e("s_barrier")
        compphase()
        k.e("s_barrier")
    else:
        dma()
        if ln == 'ws':
            ws_stats()
            zero_acc()
        stamp(k, 1)
        k.e("s_mov_b32 s38, 0")
        if not XORST:
            for x in setaddr_items():
                k.e(x)
        k.lab(lab("loop"))
        k.e("s_waitcnt vmcnt(0)")
        k.e("s_barrier")
        for x in read_items(0, 0):
            k.e(x)
        k.e("s_waitcnt lgkmcnt(0)")
        mfmas(0, read_items(1, 1) + dma_items(), stat_items(0))
        k.e("s_waitcnt lgkmcnt(0)")
        mfmas(1, setaddr_items(), stat_items(1))
    k.e("s_add_u32 s37, s37, 1")
    k.e("s_cmp_lt_u32 s37, %d" % nk)
    k.e("s_cbranch_scc1 %s" % lab("loop"))
    k.lab(lab("done"))
    k.e("s_waitcnt vmcnt(0) lgkmcnt(0)")
    if not NL:
        k.e("s_barrier")
    stamp(k, 3)
    k.e("s_nop 7")
    if ln == 'mfma':
        k.e("s_barrier")
        k.e("s_barrier")
        k.e("v_and_b32 v2, 15, v0")
        k.e("s_mul_i32 s25, s23, %d" % (RB * 16))
        k.e("v_add_u32 v2, s25, v2")
        k.e("v_lshlrev_b32 v2, 3, v2")
        for rb in range(RB):
            k.e("ds_read_b32 v%d, v2 offset:%d" % (vsum + rb, rb * 128))
            k.e("ds_read_b32 v%d, v2 offset:%d" % (vsq + rb, rb * 128 + 4))
        k.e("s_waitcnt lgkmcnt(0)")
        ln_finish(k, ctx, reduce=False)
    epi(k, ctx)
    stamp_store(k, 4, {'g1': 0, 'g2': 1, 'g3': 2, 'g4': 3}[name[:2]])
    k.lab(lab("end"))
    k.e("s_endpgm")
    return k


def row_base(k, c, ldc, va=1, vb=2):
    k.e("s_mul_i32 s25, s20, %d" % c["BM"])
    k.e("s_mul_i32 s26, s23, %d" % (c["RB"] * 16))
    k.e("s_add_u32 s25, s25, s26")
    k.e("v_and_b32 v%d, 15, v0" % va)
    k.e("v_add_u32 v%d, s25, v%d" % (va, va))
    k.e("s_mov_b32 s26, %d" % (ldc * 2))
    k.e("v_mul_lo_u32 v%d, v%d, s26" % (va, va))
    k.e("v_lshrrev_b32 v%d, 4, v0" % vb)
    k.e("v_lshlrev_b32 v%d, 3, v%d" % (vb, vb))
    k.e("v_add_u32 v%d, v%d, v%d" % (va, va, vb))


def col_off(k, c, cb, sreg, cmul):
    si, pmul, padd = c["colblocks"][cb]
    sb = sum(s[3] for s in c["subs"][:si])
    k.e("s_mul_i32 s%d, s21, %d" % (sreg, cmul * 2))
    k.e("s_mul_i32 s26, s24, %d" % (pmul * 32))
    k.e("s_add_u32 s%d, s%d, s26" % (sreg, sreg))
    k.e("s_add_u32 s%d, s%d, %d" % (sreg, sreg, (sb + padd * 16) * 2))


def res_prefetch(k, c, res):
    RB, CB = c["RB"], c["CB"]
    srd(k, 48, res[0], res[1], S * D * 2)
    t = c["vfr"]
    row_base(k, c, D, t, t + 1)
    tot = sum(s[3] for s in c["subs"])
    for cb in range(CB):
        col_off(k, c, cb, 25, tot)
        for rb in range(RB):
            k.e("v_add_u32 v%d, s25, v%d" % (t + 2, t))
            if rb:
                k.e("v_add_u32 v%d, %d, v%d" % (t + 2, rb * 16 * D * 2, t + 2))
            r = c["vres"] + 2 * (rb * CB + cb)
            k.e("buffer_load_dwordx2 v[%d:%d], v%d, s[48:51], 0 offen" % (r, r + 1, t + 2))


def ln_finish(k, c, reduce=True):
    RB = c["RB"]
    invK = {1024: "0x3a800000"}[c["Kdim"]]
    T = c.get("vtmp", 2)
    vs = [c["vsum"] + rb for rb in range(RB)] + [c["vsq"] + rb for rb in range(RB)]
    if reduce:
        for j, v in enumerate(vs):
            k.e("ds_swizzle_b32 v%d, v%d offset:0x401F" % (T + j, v))
        k.e("s_waitcnt lgkmcnt(0)")
        for j, v in enumerate(vs):
            k.e("v_add_f32 v%d, v%d, v%d" % (v, v, T + j))
        for j, v in enumerate(vs):
            k.e("v_mov_b32 v%d, v%d" % (T + j, v))
        k.e("s_nop 1")
        for j, v in enumerate(vs):
            k.e("v_permlane32_swap_b32 v%d, v%d" % (v, T + j))
        k.e("s_nop 1")
        for j, v in enumerate(vs):
            k.e("v_add_f32 v%d, v%d, v%d" % (v, v, T + j))
    R = range(RB)
    m = lambda rb: c["vsum"] + rb
    q = lambda rb: c["vsq"] + rb
    for rb in R:
        k.e("v_mul_f32 v%d, %s, v%d" % (m(rb), invK, m(rb)))
        k.e("v_mul_f32 v%d, %s, v%d" % (q(rb), invK, q(rb)))
    for rb in R:
        k.e("v_fma_f32 v%d, -v%d, v%d, v%d" % (q(rb), m(rb), m(rb), q(rb)))
    for rb in R:
        k.e("v_cvt_pk_bf16_f32 v%d, v%d, v%d" % (T + rb, m(rb), q(rb)))
    for rb in R:
        k.e("v_lshlrev_b32 v%d, 16, v%d" % (m(rb), T + rb))
        k.e("v_and_b32 v%d, 0xffff0000, v%d" % (q(rb), T + rb))
    for rb in R:
        k.e("v_add_f32 v%d, 0x3727c5ac, v%d" % (q(rb), q(rb)))
    for rb in R:
        k.e("v_cvt_pk_bf16_f32 v%d, v%d, v%d" % (T + rb, q(rb), q(rb)))
    for rb in R:
        k.e("v_lshlrev_b32 v%d, 16, v%d" % (q(rb), T + rb))
    for rb in R:
        k.e("v_sqrt_f32 v%d, v%d" % (q(rb), q(rb)))
    k.e("s_nop 0")
    for rb in R:
        k.e("v_cvt_pk_bf16_f32 v%d, v%d, v%d" % (T + rb, q(rb), q(rb)))
    for rb in R:
        k.e("v_lshlrev_b32 v%d, 16, v%d" % (q(rb), T + rb))
    for rb in R:
        k.e("v_rcp_f32 v%d, v%d" % (q(rb), q(rb)))
    k.e("s_nop 0")


def ln_apply(k, c, a, rb, cs):
    m = c["vsum"] + rb; q = c["vsq"] + rb
    for r in range(4):
        k.e("v_fma_f32 v%d, -v%d, v%d, v%d" % (a + r, m, cs + r, a + r))
    for r in range(4):
        k.e("v_mul_f32 v%d, v%d, v%d" % (a + r, a + r, q))


class LdsStore:
    def __init__(self, k, c, groups, ldc, srd_reg, NWC, vbase):
        self.k = k; self.c = c; self.groups = groups; self.ldc = ldc; self.srd = srd_reg
        self.off = []; o = 0
        for g in groups:
            self.off.append(o); o += 64 * len(g) * 32
        self.wbytes = o
        self.aw = {}
        v = vbase
        k.e("s_mul_i32 s27, s19, %d" % self.wbytes)
        for gi, g in enumerate(groups):
            CH = 2 * len(g); pitch = CH * 16
            for j, cb in enumerate(g):
                k.e("v_and_b32 v%d, 15, v0" % v)
                k.e("v_and_b32 v%d, %d, v0" % (v + 1, CH - 1))
                k.e("v_bfe_u32 v%d, v0, 5, 1" % (v + 2))
                k.e("v_or_b32 v%d, %d, v%d" % (v + 2, 2 * j, v + 2))
                k.e("v_xor_b32 v%d, v%d, v%d" % (v + 1, v + 1, v + 2))
                k.e("v_lshlrev_b32 v%d, 4, v%d" % (v + 1, v + 1))
                k.e("v_mul_u32_u24 v%d, %d, v%d" % (v, pitch, v))
                k.e("v_bfe_u32 v%d, v0, 4, 1" % (v + 2))
                k.e("v_lshlrev_b32 v%d, 3, v%d" % (v + 2, v + 2))
                k.e("v_add3_u32 v%d, v%d, v%d, v%d" % (v, v, v + 1, v + 2))
                k.e("v_add_u32 v%d, s27, v%d" % (v, v))
                self.aw[cb] = (v, gi, pitch); v += 1
        self.vfree = v + 2

    def put(self, rb, cb, a):
        v, gi, pitch = self.aw[cb]
        self.k.e("ds_write_b64 v%d, v[%d:%d] offset:%d" % (v, a, a + 1, self.off[gi] + rb * 16 * pitch))

    def flush(self, colbase_fn, vd):
        k = self.k; c = self.c
        k.e("s_waitcnt lgkmcnt(0)")
        v = self.vfree
        for gi, g in enumerate(self.groups):
            CH = 2 * len(g); pitch = CH * 16; rp = 64 // CH
            lg = CH.bit_length() - 1
            k.e("v_lshrrev_b32 v%d, %d, v0" % (v, lg))
            k.e("v_and_b32 v%d, %d, v0" % (v + 1, CH - 1))
            k.e("v_and_b32 v%d, %d, v%d" % (v + 2, CH - 1, v))
            k.e("v_xor_b32 v%d, v%d, v%d" % (v + 2, v + 2, v + 1))
            k.e("v_lshlrev_b32 v%d, 4, v%d" % (v + 2, v + 2))
            k.e("v_mul_u32_u24 v%d, %d, v%d" % (v + 3, pitch, v))
            k.e("v_add3_u32 v%d, v%d, v%d, s27" % (v + 2, v + 2, v + 3))
            k.e("s_mul_i32 s25, s20, %d" % c["BM"])
            k.e("s_mul_i32 s26, s23, %d" % (c["RB"] * 16))
            k.e("s_add_u32 s25, s25, s26")
            k.e("v_add_u32 v%d, s25, v%d" % (v, v))
            k.e("s_mov_b32 s26, %d" % (self.ldc * 2))
            k.e("v_mul_lo_u32 v%d, v%d, s26" % (v, v))
            k.e("v_lshlrev_b32 v%d, 4, v%d" % (v + 1, v + 1))
            colbase_fn(k, gi, 25)
            k.e("v_add3_u32 v%d, v%d, v%d, s25" % (v, v, v + 1))
            nj = 64 // rp
            for j in range(nj):
                k.e("ds_read_b128 v[%d:%d], v%d offset:%d" % (vd + 4 * j, vd + 4 * j + 3, v + 2, self.off[gi] + j * rp * pitch))
            for j in range(nj):
                k.e("s_waitcnt lgkmcnt(%d)" % (nj - 1 - j))
                if j:
                    k.e("v_add_u32 v%d, %d, v%d" % (v, rp * self.ldc * 2, v))
                k.e("buffer_store_dwordx4 v[%d:%d], v%d, s[%d:%d], 0 offen" % (vd + 4 * j, vd + 4 * j + 3, v, self.srd, self.srd + 3))
            k.e("s_nop 1")


def epi_store_factory(ldc, c_slot, c_off, c_bytes, part=False, groups=None):
    def epi(k, c):
        RB, CB, acc = c["RB"], c["CB"], c["acc"]
        srd(k, 40, c_slot, c_off, c_bytes)
        PS = c["vfr"]
        if groups:
            tot = sum(s[3] for s in c["subs"])
            k.e("s_barrier")
            ls = LdsStore(k, c, groups, ldc, 40, 4, c["vfr"])
            for cb in range(CB):
                for rb in range(RB):
                    a = acc(rb, cb)
                    if c["ln"]:
                        ln_apply(k, c, a, rb, c["vcs"] + 4 * cb)
                    k.e("v_cvt_pk_bf16_f32 v%d, v%d, v%d" % (a, a, a + 1))
                    k.e("v_cvt_pk_bf16_f32 v%d, v%d, v%d" % (a + 1, a + 2, a + 3))
                    ls.put(rb, cb, a)
            ls.flush(lambda k, gi, sreg: col_off(k, c, groups[gi][0], sreg, tot), c["vfr"] + 16)
            return
        if part:
            for rb in range(RB):
                k.e("v_mov_b32 v%d, 0" % (PS + 2 * rb))
                k.e("v_mov_b32 v%d, 0" % (PS + 1 + 2 * rb))
        row_base(k, c, ldc)
        tot = sum(s[3] for s in c["subs"])
        for cb in range(CB):
            col_off(k, c, cb, 25, tot)
            k.e("v_add_u32 v3, s25, v1")
            for rb in range(RB):
                a = acc(rb, cb)
                if c["ln"]:
                    ln_apply(k, c, a, rb, c["vcs"] + 4 * cb)
                k.e("v_cvt_pk_bf16_f32 v%d, v%d, v%d" % (a, a, a + 1))
                k.e("v_cvt_pk_bf16_f32 v%d, v%d, v%d" % (a + 1, a + 2, a + 3))
                if c["vres"] is not None:
                    r = c["vres"] + 2 * (rb * CB + cb)
                    for j in range(2):
                        k.e("v_lshlrev_b32 v6, 16, v%d" % (a + j))
                        k.e("v_and_b32 v7, 0xffff0000, v%d" % (a + j))
                        k.e("v_lshlrev_b32 v8, 16, v%d" % (r + j))
                        k.e("v_and_b32 v9, 0xffff0000, v%d" % (r + j))
                        k.e("v_add_f32 v6, v6, v8")
                        k.e("v_add_f32 v7, v7, v9")
                        k.e("v_cvt_pk_bf16_f32 v%d, v6, v7" % (a + j))
                        if part:
                            k.e("v_lshlrev_b32 v6, 16, v%d" % (a + j))
                            k.e("v_and_b32 v7, 0xffff0000, v%d" % (a + j))
                            k.e("v_add_f32 v%d, v%d, v6" % (PS + 2 * rb, PS + 2 * rb))
                            k.e("v_fmac_f32 v%d, v6, v6" % (PS + 1 + 2 * rb))
                            k.e("v_add_f32 v%d, v%d, v7" % (PS + 2 * rb, PS + 2 * rb))
                            k.e("v_fmac_f32 v%d, v7, v7" % (PS + 1 + 2 * rb))
                k.e("v_add_u32 v4, %d, v3" % (rb * 16 * ldc * 2))
                k.e("buffer_store_dwordx2 v[%d:%d], v4, s[40:43], 0 offen" % (a, a + 1))
        if part:
            srd(k, 44, KA_WS, WS_PART, S * 256)
            for v in range(PS, PS + 2 * RB):
                k.e("ds_swizzle_b32 v2, v%d offset:0x401F" % v)
                k.e("s_waitcnt lgkmcnt(0)")
                k.e("v_add_f32 v%d, v%d, v2" % (v, v))
                k.e("v_mov_b32 v2, v%d" % v)
                k.e("s_nop 1")
                k.e("v_permlane32_swap_b32 v%d, v2" % v)
                k.e("v_add_f32 v%d, v%d, v2" % (v, v))
            k.e("s_mul_i32 s25, s20, %d" % c["BM"])
            k.e("s_mul_i32 s26, s23, %d" % (RB * 16))
            k.e("s_add_u32 s25, s25, s26")
            k.e("v_add_u32 v1, s25, v0")
            k.e("v_lshlrev_b32 v1, 4, v1")
            k.e("s_lshl_b32 s25, s21, 15")
            k.e("s_lshl_b32 s26, s24, 3")
            k.e("s_add_u32 s25, s25, s26")
            k.e("v_add_u32 v1, s25, v1")
            k.e("v_cmp_gt_u32 vcc, 16, v0")
            k.e("s_and_saveexec_b64 s[52:53], vcc")
            for rb in range(RB):
                k.e("v_add_u32 v2, %d, v1" % (rb * 256))
                k.e("buffer_store_dwordx2 v[%d:%d], v2, s[44:47], 0 offen" % (PS + 2 * rb, PS + 1 + 2 * rb))
            k.e("s_mov_b64 exec, s[52:53]")
    return epi


def epi_swiglu(k, c):
    RB, CB, acc, colblocks, subs = c["RB"], c["CB"], c["acc"], c["colblocks"], c["subs"]
    ldc = F
    srd(k, 40, KA_WS, WS_ACT, S * F * 2)
    srd(k, 44, KA_WS, WS_CS, 2 * F * 4)
    half = CB // 2
    width = subs[0][3]
    vc = c["vfr"]
    assert 8 * half <= 32
    k.e("v_lshrrev_b32 v2, 4, v0")
    k.e("v_lshlrev_b32 v2, 4, v2")
    for cb in range(half):
        si, pmul, padd = colblocks[cb]
        assert si == 0 and colblocks[cb + half] == (1, pmul, padd)
        k.e("s_mul_i32 s25, s21, %d" % (width * 4))
        k.e("s_mul_i32 s26, s24, %d" % (pmul * 64))
        k.e("s_add_u32 s25, s25, s26")
        k.e("s_add_u32 s25, s25, %d" % (padd * 64))
        k.e("v_add_u32 v3, s25, v2")
        k.e("buffer_load_dwordx4 v[%d:%d], v3, s[44:47], 0 offen" % (vc + 8 * cb, vc + 8 * cb + 3))
        k.e("v_add_u32 v3, %d, v3" % (F * 4))
        k.e("buffer_load_dwordx4 v[%d:%d], v3, s[44:47], 0 offen" % (vc + 8 * cb + 4, vc + 8 * cb + 7))
    c["ws_stats"]()
    stamp(k, 2)
    ls = LdsStore(k, c, [list(range(half))], ldc, 40, 8, c["vfr"] + 40)
    vr = c["vfr"] + 32
    for rb in range(RB):
        k.e("v_mul_f32 v%d, 0xbfb8aa3b, v%d" % (vr + rb, c["vsq"] + rb))
    for cb in range(half):
        si, pmul, padd = colblocks[cb]
        k.e("s_mul_i32 s25, s21, %d" % (width * 2))
        k.e("s_mul_i32 s26, s24, %d" % (pmul * 32))
        k.e("s_add_u32 s25, s25, s26")
        k.e("s_add_u32 s25, s25, %d" % (padd * 32))
        for rb in range(RB):
            g = acc(rb, cb); u = acc(rb, cb + half)
            m = c["vsum"] + rb; q = c["vsq"] + rb
            cg = vc + 8 * cb; cu = cg + 4
            for r in range(4):
                k.e("v_fma_f32 v%d, -v%d, v%d, v%d" % (g + r, m, cg + r, g + r))
            for r in range(4):
                k.e("v_mul_f32 v%d, v%d, v%d" % (4 + r, g + r, vr + rb))
            for r in range(4):
                k.e("v_exp_f32 v%d, v%d" % (4 + r, 4 + r))
            for r in range(4):
                k.e("v_fma_f32 v%d, -v%d, v%d, v%d" % (u + r, m, cu + r, u + r))
            for r in range(4):
                k.e("v_add_f32 v%d, 1.0, v%d" % (4 + r, 4 + r))
            for r in range(4):
                k.e("v_rcp_f32 v%d, v%d" % (4 + r, 4 + r))
            for r in range(4):
                k.e("v_mul_f32 v%d, v%d, v%d" % (g + r, g + r, u + r))
            k.e("v_mul_f32 v8, v%d, v%d" % (q, q))
            for r in range(4):
                k.e("v_mul_f32 v%d, v%d, v%d" % (4 + r, 4 + r, 8))
            for r in range(4):
                k.e("v_mul_f32 v%d, v%d, v%d" % (g + r, g + r, 4 + r))
            k.e("v_cvt_pk_bf16_f32 v%d, v%d, v%d" % (g, g, g + 1))
            k.e("v_cvt_pk_bf16_f32 v%d, v%d, v%d" % (g + 1, g + 2, g + 3))
            ls.put(rb, cb, g)

    def colbase(k, gi, sreg):
        si, pmul, padd = colblocks[0]
        k.e("s_mul_i32 s%d, s21, %d" % (sreg, width * 2))
        k.e("s_mul_i32 s26, s24, %d" % (pmul * 32))
        k.e("s_add_u32 s%d, s%d, s26" % (sreg, sreg))
    ls.flush(colbase, c["vfr"] + 56)


def gen_attn(name):
    MIMIC = 'mimic' in EXP
    NATT = 512
    NCS = 2 * F // 64
    NPF = 32
    NH = NCS + NPF
    nwg = NATT + NH
    KV_ROWS = 384
    K_LDS = 0
    V_LDS = KV_ROWS * 64
    k = Kern(name, (nwg, 1, 1), (256, 1, 1), 2 * KV_ROWS * 64, 0)
    lab = lambda s: "%s_%s" % (name, s)
    k.e("s_cmp_ge_u32 s2, %d" % nwg)
    k.e("s_cbranch_scc1 %s" % lab("end"))
    load_ptrs(k)
    k.e("s_cmp_lt_u32 s2, %d" % NH)
    k.e("s_cbranch_scc1 %s" % lab("cs"))
    k.e("s_sub_u32 s2, s2, %d" % NH)
    stamp(k, 0)
    srd(k, 4, KA_WS, WS_QKV, S * 3 * D * 2)
    srd(k, 8, KA_WS, WS_O, S * D * 2)
    k.e("s_and_b32 s20, s2, 31")
    k.e("s_lshr_b32 s21, s2, 5")
    k.e("v_lshrrev_b32 v1, 6, v0")
    k.e("s_nop 0")
    k.e("v_readfirstlane_b32 s22, v1")
    k.e("v_and_b32 v0, 63, v0")
    k.e("""
    v_lshrrev_b32 v1, 2, v0
    v_and_b32 v2, 3, v0
    v_bfe_u32 v3, v0, 4, 2
    v_xor_b32 v2, v2, v3
    v_lshlrev_b32 v2, 4, v2
    s_lshl_b32 s23, s21, 7
    s_mul_i32 s24, s22, 96
    s_add_u32 s23, s23, s24
    s_sub_u32 s23, s23, 256
    v_add_u32 v1, s23, v1
    s_mov_b32 s24, %d
    v_mul_lo_u32 v1, v1, s24
    v_add_u32 v1, v1, v2
    s_lshl_b32 s24, s20, 6
    v_add_u32 v1, s24, v1
    s_mul_i32 s25, s22, 6144
    """ % (3 * D * 2))
    for mat, ldsb in ((1, K_LDS), (2, V_LDS)):
        for t in range(6):
            k.e("v_add_u32 v2, %d, v1" % (t * 16 * 3 * D * 2 + mat * D * 2))
            k.e("s_add_u32 m0, s25, %d" % (ldsb + t * 1024))
            k.e("s_nop 0")
            k.e("buffer_load_dwordx4 v2, s[4:7], 0 offen lds")
    k.e("""
    s_lshl_b32 s23, s21, 7
    s_lshl_b32 s24, s22, 5
    s_add_u32 s23, s23, s24
    v_and_b32 v1, 31, v0
    v_add_u32 v1, s23, v1
    s_mov_b32 s24, %d
    v_mul_lo_u32 v1, v1, s24
    v_lshrrev_b32 v2, 5, v0
    v_lshlrev_b32 v2, 4, v2
    s_lshl_b32 s24, s20, 6
    v_add3_u32 v1, v1, v2, s24
    buffer_load_dwordx4 v[4:7], v1, s[4:7], 0 offen
    buffer_load_dwordx4 v[8:11], v1, s[4:7], 0 offen offset:32
    v_and_b32 v1, 31, v0
    v_lshlrev_b32 v12, 6, v1
    v_bfe_u32 v2, v0, 2, 2
    v_lshrrev_b32 v3, 5, v0
    v_xor_b32 v13, v3, v2
    v_lshlrev_b32 v13, 4, v13
    v_add_u32 v13, v12, v13
    v_or_b32 v3, 2, v3
    v_xor_b32 v14, v3, v2
    v_lshlrev_b32 v14, 4, v14
    v_add_u32 v14, v12, v14
    s_lshl_b32 s24, s22, 11
    v_add_u32 v13, s24, v13
    v_add_u32 v14, s24, v14
    v_bfe_u32 v1, v0, 5, 1
    v_lshlrev_b32 v1, 2, v1
    v_bfe_u32 v2, v0, 2, 2
    v_add_u32 v1, v1, v2
    v_bfe_u32 v2, v0, 4, 1
    v_lshlrev_b32 v2, 1, v2
    v_bfe_u32 v3, v0, 1, 1
    v_or_b32 v2, v2, v3
    v_and_b32 v3, 1, v0
    v_lshlrev_b32 v3, 3, v3
    """ % (3 * D * 2))
    for j in range(4):
        k.e("v_add_u32 v19, %d, v1" % (8 * j))
        k.e("v_bfe_u32 v20, v19, 2, 2")
        k.e("v_xor_b32 v20, v20, v2")
        k.e("v_lshlrev_b32 v20, 4, v20")
        k.e("v_lshlrev_b32 v19, 6, v19")
        k.e("v_add3_u32 v%d, v19, v20, v3" % (15 + j))
        k.e("v_add_u32 v%d, s24, v%d" % (15 + j, 15 + j))
    k.e("s_waitcnt vmcnt(0)")
    k.e("s_barrier")
    stamp(k, 1)
    SB = 48
    k.e("ds_read_b128 v[20:23], v13 offset:%d" % K_LDS)
    k.e("ds_read_b128 v[24:27], v14 offset:%d" % K_LDS)
    for b in range(9):
        f = 20 + 8 * (b & 1); fn = 20 + 8 * ((b + 1) & 1)
        if b < 8:
            k.e("ds_read_b128 v[%d:%d], v13 offset:%d" % (fn, fn + 3, K_LDS + (b + 1) * 2048))
            k.e("ds_read_b128 v[%d:%d], v14 offset:%d" % (fn + 4, fn + 7, K_LDS + (b + 1) * 2048))
            k.e("s_waitcnt lgkmcnt(2)")
        else:
            k.e("s_waitcnt lgkmcnt(0)")
        s0 = SB + b * 16
        k.e("v_mfma_f32_32x32x16_bf16 v[%d:%d], v[%d:%d], v[4:7], 0" % (s0, s0 + 15, f, f + 3))
        k.e("v_mfma_f32_32x32x16_bf16 v[%d:%d], v[%d:%d], v[8:11], v[%d:%d]" % (s0, s0 + 15, f + 4, f + 7, s0, s0 + 15))
    k.e("s_nop 15")
    NSR = 144
    stamp(k, 2)
    if MIMIC:
        for r in range(0, NSR, 2):
            a = SB + r
            k.e("v_cvt_pk_bf16_f32 v36, v%d, v%d" % (a, a + 1))
            k.e("v_lshlrev_b32 v%d, 16, v36" % a)
            k.e("v_and_b32 v%d, 0xffff0000, v36" % (a + 1))
            k.e("v_mul_f32 v%d, 0x3e3504f3, v%d" % (a, a))
            k.e("v_mul_f32 v%d, 0x3e3504f3, v%d" % (a + 1, a + 1))
            k.e("v_cvt_pk_bf16_f32 v36, v%d, v%d" % (a, a + 1))
            k.e("v_lshlrev_b32 v%d, 16, v36" % a)
            k.e("v_and_b32 v%d, 0xffff0000, v36" % (a + 1))
        k.e("s_mov_b32 s26, 0x3fb8aa3b")
    else:
        k.e("s_mov_b32 s26, 0x3e8293ee")
    k.e("v_and_b32 v1, 31, v0")
    k.e("v_lshrrev_b32 v2, 5, v0")
    k.e("v_lshlrev_b32 v2, 2, v2")
    k.e("v_sub_u32 v1, v1, v2")
    k.e("v_mov_b32 v3, 0xce6e6b28")
    for r in range(16):
        c = (r & 3) + 8 * (r >> 2)
        k.e("v_cmp_ge_i32 vcc, v1, %d" % c)
        k.e("s_nop 1")
        k.e("v_cndmask_b32 v%d, v%d, v3, vcc" % (SB + r, SB + r))
        k.e("v_cndmask_b32 v%d, v3, v%d, vcc" % (SB + 128 + r, SB + 128 + r))
    k.e("s_lshl_b32 s23, s21, 2")
    k.e("s_add_u32 s23, s23, s22")
    k.e("s_cmp_ge_u32 s23, 8")
    k.e("s_cbranch_scc1 %s" % lab("nomask"))
    for b in range(8):
        k.e("s_cmp_lt_u32 s23, %d" % (8 - b))
        k.e("s_cbranch_scc0 %s" % lab("nm%d" % b))
        for r in range(16):
            k.e("v_mov_b32 v%d, v3" % (SB + b * 16 + r))
        k.lab(lab("nm%d" % b))
    k.lab(lab("nomask"))
    k.e("v_max_f32 v1, v%d, v%d" % (SB, SB + 1))
    for r in range(2, NSR, 2):
        k.e("v_max3_f32 v1, v1, v%d, v%d" % (SB + r, SB + r + 1))
    k.e("v_mov_b32 v2, v1")
    k.e("s_nop 1")
    k.e("v_permlane32_swap_b32 v1, v2")
    k.e("v_max_f32 v1, v1, v2")
    k.e("v_mul_f32 v1, s26, v1")
    k.e("v_mov_b32 v2, 0")
    k.e("v_mov_b32 v3, 0")
    PB = None
    for b in range(9):
        for r in range(16):
            a = SB + b * 16 + r
            k.e("v_fma_f32 v%d, v%d, s26, -v1" % (a, a))
            k.e("v_exp_f32 v%d, v%d" % (a, a))
        k.e("s_nop 0")
        if not MIMIC:
            for j in range(8):
                a = SB + b * 16 + 2 * j
                k.e("v_add_f32 v2, v2, v%d" % a)
                k.e("v_add_f32 v3, v3, v%d" % (a + 1))
                k.e("v_cvt_pk_bf16_f32 v%d, v%d, v%d" % (SB + b * 16 + j, a, a + 1))
    if MIMIC:
        for r in range(NSR):
            k.e("v_add_f32 v2, v2, v%d" % (SB + r))
    k.e("v_add_f32 v2, v2, v3")
    k.e("v_mov_b32 v3, v2")
    k.e("s_nop 1")
    k.e("v_permlane32_swap_b32 v2, v3")
    k.e("v_add_f32 v2, v2, v3")
    k.e("v_rcp_f32 v2, v2")
    k.e("s_nop 0")
    if MIMIC:
        for b in range(9):
            for j in range(8):
                a = SB + b * 16 + 2 * j
                k.e("v_mul_f32 v%d, v%d, v2" % (a, a))
                k.e("v_mul_f32 v%d, v%d, v2" % (a + 1, a + 1))
                k.e("v_cvt_pk_bf16_f32 v%d, v%d, v%d" % (SB + b * 16 + j, a, a + 1))
    OA = 192
    stamp(k, 3)
    for j in range(4):
        k.e("ds_read_b64_tr_b16 v[%d:%d], v%d offset:%d" % (20 + 2 * j, 21 + 2 * j, 15 + j, V_LDS))
    for b in range(9):
        f = 20 + 8 * (b & 1); fn = 20 + 8 * ((b + 1) & 1)
        if b < 8:
            for j in range(4):
                k.e("ds_read_b64_tr_b16 v[%d:%d], v%d offset:%d" % (fn + 2 * j, fn + 2 * j + 1, 15 + j, V_LDS + (b + 1) * 2048))
            k.e("s_waitcnt lgkmcnt(4)")
        else:
            k.e("s_waitcnt lgkmcnt(0)")
        p = SB + b * 16
        if b == 0:
            k.e("v_mfma_f32_32x32x16_bf16 v[%d:%d], v[%d:%d], v[%d:%d], 0" % (OA, OA + 15, f, f + 3, p, p + 3))
        else:
            k.e("v_mfma_f32_32x32x16_bf16 v[%d:%d], v[%d:%d], v[%d:%d], v[%d:%d]" % (OA, OA + 15, f, f + 3, p, p + 3, OA, OA + 15))
        k.e("v_mfma_f32_32x32x16_bf16 v[%d:%d], v[%d:%d], v[%d:%d], v[%d:%d]" % (OA, OA + 15, f + 4, f + 7, p + 4, p + 7, OA, OA + 15))
    k.e("""
    s_lshl_b32 s23, s21, 7
    s_lshl_b32 s24, s22, 5
    s_add_u32 s23, s23, s24
    v_and_b32 v1, 31, v0
    v_add_u32 v1, s23, v1
    v_lshlrev_b32 v1, 11, v1
    v_lshrrev_b32 v3, 5, v0
    v_lshlrev_b32 v3, 3, v3
    s_lshl_b32 s24, s20, 6
    v_add3_u32 v1, v1, v3, s24
    s_nop 7
    """)
    if not MIMIC:
        for r in range(16):
            k.e("v_mul_f32 v%d, v%d, v2" % (OA + r, OA + r))
    for j in range(4):
        k.e("v_cvt_pk_bf16_f32 v%d, v%d, v%d" % (208 + 2 * j, OA + 4 * j, OA + 1 + 4 * j))
        k.e("v_cvt_pk_bf16_f32 v%d, v%d, v%d" % (209 + 2 * j, OA + 2 + 4 * j, OA + 3 + 4 * j))
        k.e("buffer_store_dwordx2 v[%d:%d], v1, s[8:11], 0 offen offset:%d" % (208 + 2 * j, 209 + 2 * j, 16 * j))
    stamp_store(k, 4, 4)
    k.e("s_endpgm")
    k.lab(lab("cs"))
    k.e("s_cmp_ge_u32 s2, %d" % NCS)
    k.e("s_cbranch_scc1 %s" % lab("pf"))
    k.e("s_mov_b32 s20, s2")
    k.e("s_cmp_lt_u32 s20, 56")
    k.e("s_cselect_b32 s4, s%d, s%d" % (PTR0 + 2 * KA_W1, PTR0 + 2 * KA_W3))
    k.e("s_cselect_b32 s5, s%d, s%d" % (PTR0 + 2 * KA_W1 + 1, PTR0 + 2 * KA_W3 + 1))
    k.e("s_cselect_b32 s21, 0, 56")
    k.e("s_and_b32 s5, s5, 0xffff")
    k.e("s_mov_b32 s6, %d" % (D * F * 2))
    k.e("s_mov_b32 s7, 0x00020000")
    k.e("s_sub_u32 s21, s20, s21")
    srd(k, 8, KA_WS, WS_CS, 2 * F * 4)
    k.e("""
    v_lshrrev_b32 v1, 3, v0
    v_and_b32 v2, 7, v0
    s_mov_b32 s22, %d
    v_mul_lo_u32 v1, v1, s22
    v_lshlrev_b32 v2, 4, v2
    s_lshl_b32 s22, s21, 7
    v_add3_u32 v1, v1, v2, s22
    """ % (F * 2))
    for r in range(8):
        k.e("v_mov_b32 v%d, 0" % (8 + r))
    for half in range(1):
        for i in range(32):
            k.e("v_add_u32 v2, %d, v1" % (i * 32 * F * 2))
            k.e("buffer_load_dwordx4 v[%d:%d], v2, s[4:7], 0 offen" % (16 + 4 * i, 19 + 4 * i))
        for i in range(32):
            k.e("s_waitcnt vmcnt(%d)" % (31 - i))
            for j in range(4):
                k.e("v_lshlrev_b32 v3, 16, v%d" % (16 + 4 * i + j))
                k.e("v_and_b32 v4, 0xffff0000, v%d" % (16 + 4 * i + j))
                k.e("v_add_f32 v%d, v%d, v3" % (8 + 2 * j, 8 + 2 * j))
                k.e("v_add_f32 v%d, v%d, v4" % (9 + 2 * j, 9 + 2 * j))
    k.e("v_lshlrev_b32 v2, 5, v0")
    k.e("ds_write_b128 v2, v[8:11]")
    k.e("ds_write_b128 v2, v[12:15] offset:16")
    k.e("s_waitcnt lgkmcnt(0)")
    k.e("s_barrier")
    k.e("v_cmp_gt_u32 vcc, 64, v0")
    k.e("s_and_saveexec_b64 s[24:25], vcc")
    k.e("s_cbranch_execz %s" % lab("end"))
    k.e("v_lshlrev_b32 v2, 2, v0")
    for i in range(32):
        k.e("ds_read_b32 v%d, v2 offset:%d" % (16 + i, i * 256))
    k.e("s_waitcnt lgkmcnt(0)")
    for i in range(1, 32):
        k.e("v_add_f32 v16, v16, v%d" % (16 + i))
    k.e("s_lshl_b32 s22, s20, 8")
    k.e("v_add_u32 v2, s22, v2")
    k.e("buffer_store_dword v16, v2, s[8:11], 0 offen")
    k.e("s_endpgm")
    k.lab(lab("pf"))
    k.e("s_sub_u32 s20, s2, %d" % NCS)
    k.e("s_cmp_lt_u32 s20, 0")
    k.e("s_cselect_b32 s4, s%d, s%d" % (PTR0 + 2 * KA_W2, PTR0 + 2 * KA_WO))
    k.e("s_cselect_b32 s5, s%d, s%d" % (PTR0 + 2 * KA_W2 + 1, PTR0 + 2 * KA_WO + 1))
    k.e("s_mov_b32 s23, %d" % (D * D * 2))
    k.e("s_cselect_b32 s6, %d, s23" % (F * D * 2))
    k.e("s_cselect_b32 s21, 0, 0")
    k.e("s_mov_b32 s22, 65536")
    k.e("s_and_b32 s5, s5, 0xffff")
    k.e("s_mov_b32 s7, 0x00020000")
    k.e("s_sub_u32 s21, s20, s21")
    k.e("s_mul_i32 s21, s21, s22")
    k.e("v_lshlrev_b32 v1, 4, v0")
    k.e("v_add_u32 v1, s21, v1")
    for i in range(16):
        k.e("buffer_load_dwordx4 v[%d:%d], v1, s[4:7], 0 offen" % (8 + 4 * i, 11 + 4 * i))
        k.e("v_add_u32 v1, 4096, v1")
    k.e("s_waitcnt vmcnt(0)")
    k.lab(lab("end"))
    k.e("s_endpgm")
    k.nvgpr = 216
    return k


def build():
    ks = []
    ks.append(gen_gemm("g1_kernel", 128, 2, 2, 1024, KA_X, 0,
                       [(KA_WQKV, 0, 3072, 128, 192), (KA_WQKV, 256, 3072, 64, 192)],
                       [(0, 4, 0), (0, 4, 1), (0, 4, 2), (0, 4, 3), (1, 2, 0), (1, 2, 1)], 16,
                       epi_store_factory(3072, KA_WS, WS_QKV, S * 3072 * 2, groups=[[0, 1, 2, 3], [4, 5]]), (4, 8), NL=4, ln='mfma'))
    ks.append(gen_attn("attn_kernel"))
    ks.append(gen_gemm("g2_kernel", 128, 2, 2, 1024, KA_WS, WS_O, [(KA_WO, 0, 1024, 64, 64)],
                       [(0, 2, 0), (0, 2, 1)], 16,
                       epi_store_factory(1024, KA_WS, WS_H, S * D * 2, part=True), (4, 8), NL=4, res=(KA_X, 0)))
    ks.append(gen_gemm("g3_kernel", 256, 4, 2, 1024, KA_WS, WS_H,
                       [(KA_W1, 0, F, 128, 128), (KA_W3, 0, F, 128, 128)],
                       [(0, 4, j) for j in range(4)] + [(1, 4, j) for j in range(4)], 28, epi_swiglu, (4, 7), ln='ws', pp=True, npf=32))
    ks.append(gen_gemm("g4_kernel", 128, 2, 2, F, KA_WS, WS_ACT, [(KA_W2, 0, 1024, 64, 64)],
                       [(0, 2, 0), (0, 2, 1)], 16,
                       epi_store_factory(1024, KA_OUT, 0, S * D * 2), (4, 8), NL=4, res=(KA_WS, WS_H)))
    return ks


def main():
    ks = build()
    out = [HEADER.rstrip()]
    for k in ks:
        out.append("; @launch kernel=%s grid=(%d,%d,%d) block=(%d,%d,%d) lds=%d" % ((k.name,) + k.grid + k.block + (k.lds,)))
    out.append('.amdgcn_target "amdgcn-amd-amdhsa--gfx950"')
    out.append(".text")
    for k in ks:
        out.append(k.text())
    out.append('.section .rodata,"a"')
    for k in ks:
        out.append(".p2align 6")
        out.append(k.desc())
    open(sys.argv[1] if len(sys.argv) > 1 else "sequential_preLN__sliding_block__glu_gated_swiglu__prompt.s", "w").write("\n".join(out) + "\n")


if __name__ == "__main__":
    main()
```

```python
import sys, os
EXP = os.environ.get('EXP', '')
STFLAG = ' sc1' if 'sc1' in EXP else (' nt' if 'stnt' in EXP else (' sc0 sc1' if 'sc01' in EXP else ''))

S = 2048; D = 1024; F = 3584
MB = 1 << 20
WS_QKV = 4 * MB
WS_O = 16 * MB
WS_H = 20 * MB
WS_ACT = 28 * MB
WS_PART = 49 * MB
WS_CS = 48 * MB

KA_X, KA_WQKV, KA_WO, KA_BX, KA_W1, KA_W3, KA_W2, KA_OUT, KA_DBG, KA_WS = range(10)
PTR0 = 64

HEADER = """; Kernarg layout for this problem (80 bytes, ptrs only, base s[0:1]):
;   offset  72: d_ws      268435456 bytes workspace
"""


class Kern:
    def __init__(self, name, grid, block, lds, nvgpr, nsgpr=100):
        self.name = name; self.grid = grid; self.block = block; self.lds = lds
        self.nvgpr = nvgpr; self.nsgpr = nsgpr
        self.lines = []

    def e(self, s):
        for ln in s.strip().split("\n"):
            if ln.strip():
                self.lines.append("    " + ln.strip())

    def lab(self, l):
        self.lines.append(l + ":")

    def text(self):
        out = [".globl %s" % self.name, ".p2align 8", ".type %s,@function" % self.name, "%s:" % self.name]
        return "\n".join(out + self.lines)

    def desc(self):
        nv = self.nvgpr
        return """.amdhsa_kernel %s
  .amdhsa_next_free_vgpr %d
  .amdhsa_next_free_sgpr %d
  .amdhsa_accum_offset %d
  .amdhsa_group_segment_fixed_size 0
  .amdhsa_kernarg_size 80
  .amdhsa_user_sgpr_count 2
  .amdhsa_user_sgpr_kernarg_segment_ptr 1
  .amdhsa_system_sgpr_workgroup_id_x 1
.end_amdhsa_kernel""" % (self.name, nv, self.nsgpr, (nv + 3) // 4 * 4)


def load_ptrs(k):
    k.e("s_load_dwordx16 s[64:79], s[0:1], 0")
    k.e("s_load_dwordx4 s[80:83], s[0:1], 64")
    k.e("s_waitcnt lgkmcnt(0)")


def srd(k, sreg, slot, off, nbytes):
    p = PTR0 + 2 * slot
    if off:
        k.e("s_add_u32 s%d, s%d, %d" % (sreg, p, off))
        k.e("s_addc_u32 s%d, s%d, 0" % (sreg + 1, p + 1))
        k.e("s_and_b32 s%d, s%d, 0xffff" % (sreg + 1, sreg + 1))
    else:
        k.e("s_mov_b32 s%d, s%d" % (sreg, p))
        k.e("s_and_b32 s%d, s%d, 0xffff" % (sreg + 1, p + 1))
    k.e("s_mov_b32 s%d, %d" % (sreg + 2, nbytes))
    k.e("s_mov_b32 s%d, 0x00020000" % (sreg + 3))


def stamp(k, i):
    if 'stamp' in EXP:
        k.e("s_memrealtime s[%d:%d]" % (86 + 2 * i, 87 + 2 * i))


def stamp_store(k, n, kidx):
    if 'stamp' not in EXP:
        return
    k.e("s_waitcnt vmcnt(0) lgkmcnt(0)")
    k.e("s_memrealtime s[%d:%d]" % (86 + 2 * n, 87 + 2 * n))
    k.e("s_waitcnt lgkmcnt(0)")
    srd(k, 56, KA_WS, 64 * MB + kidx * 65536, 65536)
    k.e("s_lshl_b32 s60, s2, 6")
    k.e("v_mov_b32 v1, s60")
    for i in range(n + 1):
        k.e("v_mov_b32 v2, s%d" % (86 + 2 * i))
        k.e("buffer_store_dword v2, v1, s[56:59], 0 offen offset:%d" % (4 * i))


def f3(k):
    return (k & 3) | ((k >> 1) & 4)


def gen_gemm(name, BM, WM, WN, Kdim, a_slot, a_off, subs, colblocks, ntn, epi, grp, nstages=6, NL=0, ln=None, res=None, pp=False, npf=0):
    NWC = WM * WN
    NW = NL if NL else NWC
    RB = BM // WM // 16
    CB = len(colblocks)
    ntm = S // BM
    nwg = ntm * ntn
    nk = Kdim // 64
    sub_lds = []
    o = BM * 128
    for sb in subs:
        sub_lds.append(o); o += 64 * sb[3] * 2
    STAGE = o
    NS = min(nstages, 163840 // STAGE)
    assert NS >= 2 and STAGE <= 65536
    k = Kern(name, (nwg + npf, 1, 1), (64 * (NWC + NL), 1, 1), NS * STAGE, 0)
    lab = lambda s: "%s_%s" % (name, s)
    k.e("s_cmp_ge_u32 s2, %d" % (nwg + npf))
    k.e("s_cbranch_scc1 %s" % lab("end"))
    stamp(k, 0)
    load_ptrs(k)
    if npf:
        k.e("s_cmp_lt_u32 s2, %d" % nwg)
        k.e("s_cbranch_scc1 %s" % lab("main"))
        srd(k, 4, KA_W2, 0, F * D * 2)
        per = F * D * 2 // npf
        nthr = 64 * (NWC + NL)
        assert per % (nthr * 16) == 0
        k.e("s_sub_u32 s20, s2, %d" % nwg)
        k.e("s_mul_i32 s20, s20, %d" % per)
        k.e("v_lshlrev_b32 v1, 4, v0")
        k.e("v_add_u32 v1, s20, v1")
        for i in range(per // (nthr * 16)):
            k.e("buffer_load_dwordx4 v[%d:%d], v1, s[4:7], 0 offen" % (8 + 4 * i, 11 + 4 * i))
            k.e("v_add_u32 v1, %d, v1" % (nthr * 16))
        k.e("s_waitcnt vmcnt(0)")
        k.e("s_endpgm")
        k.lab(lab("main"))
    srd(k, 4, a_slot, a_off, S * Kdim * 2)
    for i, sb in enumerate(subs):
        srd(k, 8 + 4 * i, sb[0], sb[1], Kdim * sb[2] * 2 - sb[1])
    gm, gn = grp
    assert gm * gn * 8 == nwg
    k.e("s_and_b32 s25, s2, 7")
    k.e("s_lshr_b32 s26, s2, 3")
    ng = ntm // gm
    k.e("s_and_b32 s20, s25, %d" % (ng - 1))
    k.e("s_mul_i32 s20, s20, %d" % gm)
    k.e("s_and_b32 s27, s26, %d" % (gm - 1))
    k.e("s_add_u32 s20, s20, s27")
    k.e("s_lshr_b32 s21, s25, %d" % (ng.bit_length() - 1))
    k.e("s_mul_i32 s21, s21, %d" % gn)
    k.e("s_lshr_b32 s27, s26, %d" % (gm.bit_length() - 1))
    k.e("s_add_u32 s21, s21, s27")
    k.e("v_lshrrev_b32 v1, 6, v0")
    k.e("s_nop 0")
    k.e("v_readfirstlane_b32 s19, v1")
    k.e("s_and_b32 s23, s19, %d" % (WM - 1))
    k.e("s_lshr_b32 s24, s19, %d" % (WM.bit_length() - 1))
    k.e("s_and_b32 s24, s24, %d" % (WN - 1))
    if NL:
        k.e("s_sub_u32 s22, s19, %d" % NWC)
        k.e("s_and_b32 s22, s22, %d" % (NL - 1))
    else:
        k.e("s_mov_b32 s22, s19")
    k.e("v_and_b32 v0, 63, v0")
    nA_w = BM // 8 // NW
    vA_dma = 2
    _nb = sum(64 * sb[3] * 2 // 1024 // NW for sb in subs)
    XORST = (NS == 2 and STAGE == 65536)
    _vx = vA_dma + nA_w + _nb + (1 if XORST else 2) * (2 + CB)
    if ln == 'mfma':
        _vx = (_vx + 2 * RB + 3) // 4 * 4 + 4 + 4 * CB
    elif ln:
        _vx = _vx + 2 * RB + 1
    if res:
        _vx = (_vx + 1) // 2 * 2 + 2 * RB * CB
    _vfr = (_vx + 3) // 4 * 4
    T0, T1, T2 = _vfr, _vfr + 1, _vfr + 2
    k.e("""
    v_lshrrev_b32 v1, 3, v0
    v_and_b32 v%d, 7, v0
    v_xor_b32 v%d, v%d, v1
    v_lshlrev_b32 v%d, 4, v%d
    """ % (T0, T0, T0, T0, T0))
    k.e("s_mul_i32 s25, s22, %d" % (nA_w * 8))
    k.e("s_mul_i32 s26, s20, %d" % BM)
    k.e("s_add_u32 s25, s25, s26")
    k.e("v_add_u32 v1, s25, v1")
    k.e("s_mov_b32 s26, %d" % (Kdim * 2))
    k.e("v_mul_lo_u32 v1, v1, s26")
    k.e("v_add_u32 v%d, v1, v%d" % (vA_dma, T0))
    for t in range(1, nA_w):
        k.e("v_add_u32 v%d, %d, v%d" % (vA_dma + t, t * 8 * Kdim * 2, vA_dma))
    bdma = []
    vb = vA_dma + nA_w
    for si, (slot, off, ldb, width, tnmul) in enumerate(subs):
        pitch = width * 2
        nB = 64 * pitch // 1024
        assert nB % NW == 0
        nB_w = nB // NW
        rows_per = 1024 // pitch
        cpr = pitch // 16
        for t in range(nB_w):
            k.e("s_mul_i32 s25, s22, %d" % (nB_w * rows_per))
            k.e("s_add_u32 s25, s25, %d" % (t * rows_per))
            k.e("v_lshrrev_b32 v1, %d, v0" % (cpr.bit_length() - 1))
            k.e("v_add_u32 v1, s25, v1")
            if pitch >= 256:
                k.e("v_and_b32 v%d, 3, v1" % T0)
                k.e("v_lshrrev_b32 v%d, 1, v1" % T1)
                k.e("v_and_b32 v%d, 4, v%d" % (T1, T1))
            else:
                k.e("v_bfe_u32 v%d, v1, 1, 1" % T0)
                k.e("v_lshrrev_b32 v%d, 2, v1" % T1)
                k.e("v_and_b32 v%d, 2, v%d" % (T1, T1))
            k.e("v_or_b32 v%d, v%d, v%d" % (T0, T0, T1))
            k.e("v_lshlrev_b32 v%d, 1, v%d" % (T0, T0))
            k.e("v_and_b32 v%d, %d, v0" % (T1, cpr - 1))
            k.e("v_xor_b32 v%d, v%d, v%d" % (T0, T0, T1))
            k.e("v_lshlrev_b32 v%d, 4, v%d" % (T0, T0))
            k.e("s_mov_b32 s26, %d" % (ldb * 2))
            k.e("v_mul_lo_u32 v1, v1, s26")
            k.e("v_add_u32 v1, v1, v%d" % T0)
            k.e("s_mul_i32 s26, s21, %d" % (tnmul * 2))
            k.e("v_add_u32 v%d, s26, v1" % vb)
            bdma.append((si, t, vb, nB_w))
            vb += 1
    NAD = 2 + CB
    vAb = vb
    vAr = vAb if XORST else vAb + NAD
    k.e("""
    v_and_b32 v1, 15, v0
    v_lshlrev_b32 v1, 7, v1
    v_lshrrev_b32 v%d, 4, v0
    v_and_b32 v%d, 7, v0
    """ % (T0, T1))
    k.e("s_mul_i32 s25, s23, %d" % (RB * 16 * 128))
    k.e("v_add_u32 v1, s25, v1")
    k.e("v_xor_b32 v%d, v%d, v%d" % (T2, T0, T1))
    k.e("v_lshlrev_b32 v%d, 4, v%d" % (T2, T2))
    k.e("v_add_u32 v%d, v1, v%d" % (vAb, T2))
    k.e("v_or_b32 v%d, 4, v%d" % (T0, T0))
    k.e("v_xor_b32 v%d, v%d, v%d" % (T2, T0, T1))
    k.e("v_lshlrev_b32 v%d, 4, v%d" % (T2, T2))
    k.e("v_add_u32 v%d, v1, v%d" % (vAb + 1, T2))
    for cb, (si, pmul, padd) in enumerate(colblocks):
        pitch = subs[si][3] * 2
        k.e("""
        v_lshrrev_b32 v1, 4, v0
        v_lshlrev_b32 v1, 3, v1
        v_bfe_u32 v%d, v0, 2, 2
        v_add_u32 v1, v1, v%d
        """ % (T0, T0))
        if pitch >= 256:
            k.e("v_bfe_u32 v%d, v0, 4, 1" % T1)
            k.e("v_lshlrev_b32 v%d, 2, v%d" % (T1, T1))
            k.e("v_or_b32 v%d, v%d, v%d" % (T1, T1, T0))
        else:
            k.e("v_bfe_u32 v%d, v0, 3, 1" % T1)
            k.e("v_bfe_u32 v%d, v0, 4, 1" % T2)
            k.e("v_lshlrev_b32 v%d, 1, v%d" % (T2, T2))
            k.e("v_or_b32 v%d, v%d, v%d" % (T1, T1, T2))
        k.e("s_mul_i32 s25, s24, %d" % pmul)
        k.e("s_add_u32 s25, s25, %d" % padd)
        k.e("v_xor_b32 v%d, s25, v%d" % (T1, T1))
        k.e("v_lshlrev_b32 v%d, 5, v%d" % (T1, T1))
        k.e("s_mov_b32 s26, %d" % pitch)
        k.e("v_mul_lo_u32 v1, v1, s26")
        k.e("v_and_b32 v%d, 3, v0" % T2)
        k.e("v_lshlrev_b32 v%d, 3, v%d" % (T2, T2))
        k.e("v_add3_u32 v%d, v1, v%d, v%d" % (vAb + 2 + cb, T1, T2))
    vBr = vAr + 2
    vx = vAr + NAD
    vsum = vsq = vones = vcs = vres = None
    if ln:
        vsum = vx; vsq = vx + RB; vx += 2 * RB
        if ln == 'mfma':
            vx = (vx + 3) // 4 * 4
            vones = vx; vx += 4
            vcs = vx; vx += 4 * CB
        else:
            vones = vx; vx += 1
    if res:
        vx = (vx + 1) // 2 * 2
        vres = vx; vx += 2 * RB * CB
    vfr = (vx + 3) // 4 * 4
    fA = lambda s, rb: vfr + (s * RB + rb) * 4
    fB = lambda s, cb: vfr + 2 * RB * 4 + (s * CB + cb) * 4
    vacc = vfr + 2 * RB * 4 + 2 * CB * 4
    assert vfr == _vfr
    acc = lambda rb, cb: vacc + (rb * CB + cb) * 4
    vend = vacc + RB * CB * 4
    k.nvgpr = vend
    assert vend <= 256
    ctx = dict(ws_stats=lambda: ws_stats(), RB=RB, CB=CB, acc=acc, colblocks=colblocks, subs=subs, BM=BM, vend=vend, vres=vres, ln=ln,
               vsum=vsum, vsq=vsq, vcs=vcs, Kdim=Kdim, lab=lab, vfr=vfr)
    def ws_stats():
        srd(k, 48, KA_WS, WS_PART, S * 256)
        t = vfr + 36
        dbase = [vfr + 40, vfr + 56, vfr + 72, 4]
        assert RB == 4 and vsum >= 20
        k.e("s_mul_i32 s25, s20, %d" % BM)
        k.e("s_mul_i32 s26, s23, %d" % (RB * 16))
        k.e("s_add_u32 s25, s25, s26")
        k.e("v_and_b32 v%d, 15, v0" % t)
        k.e("v_add_u32 v%d, s25, v%d" % (t, t))
        k.e("v_lshlrev_b32 v%d, 4, v%d" % (t, t))
        k.e("v_lshrrev_b32 v%d, 4, v0" % (t + 1))
        k.e("v_lshlrev_b32 v%d, 17, v%d" % (t + 1, t + 1))
        k.e("v_add_u32 v%d, v%d, v%d" % (t, t, t + 1))
        for j in range(4):
            if j:
                k.e("v_add_u32 v%d, 32768, v%d" % (t, t))
            for rb in range(RB):
                d = dbase[rb] + 4 * j
                k.e("buffer_load_dwordx4 v[%d:%d], v%d, s[48:51], 0 offen offset:%d" % (d, d + 3, t, 256 * rb))
        k.e("s_waitcnt vmcnt(0)")
        for rb in range(RB):
            d = dbase[rb]
            k.e("v_add_f32 v%d, v%d, v%d" % (vsum + rb, d, d + 2))
            k.e("v_add_f32 v%d, v%d, v%d" % (vsq + rb, d + 1, d + 3))
            for j in range(2, 8):
                k.e("v_add_f32 v%d, v%d, v%d" % (vsum + rb, vsum + rb, d + 2 * j))
                k.e("v_add_f32 v%d, v%d, v%d" % (vsq + rb, vsq + rb, d + 2 * j + 1))
        ctx["vtmp"] = vfr + 40
        ln_finish(k, ctx)

    def zero_acc():
        for r in range(vacc, vend):
            k.e("v_mov_b32 v%d, 0" % r)
    if ln != 'ws':
        zero_acc()
    if ln:
        for r in range(2 * RB if ln == 'mfma' else 0):
            k.e("v_mov_b32 v%d, 0" % (vsum + r))
        for r in range(4 if vcs else 1):
            k.e("v_mov_b32 v%d, 0x3f803f80" % (vones + r))
        if vcs:
            for r in range(4 * CB):
                k.e("v_mov_b32 v%d, 0" % (vcs + r))
    k.e("s_mov_b32 s30, 0")
    for i in range(len(subs)):
        k.e("s_mov_b32 s%d, 0" % (31 + i))
    k.e("s_mov_b32 s34, 0")
    k.e("s_mul_i32 s35, s22, %d" % (nA_w * 1024))
    for (si, t, vreg, nB_w) in bdma:
        if t == 0:
            k.e("s_mul_i32 s%d, s22, %d" % (44 + si, nB_w * 1024))
            k.e("s_add_u32 s%d, s%d, %d" % (44 + si, 44 + si, sub_lds[si]))
    nd = nA_w + len(bdma)

    def dma_items():
        it = []
        for t in range(nA_w):
            if t:
                pre = "s_add_u32 m0, s36, %d\ns_nop 0\n" % (t * 1024)
            else:
                pre = "s_add_u32 s36, s34, s35\ns_mov_b32 m0, s36\ns_nop 0\n"
            it.append(pre + "buffer_load_dwordx4 v%d, s[4:7], s30 offen lds" % (vA_dma + t))
        for (si, t, vreg, nB_w) in bdma:
            if t == 0:
                pre = "s_add_u32 s36, s34, s%d\ns_mov_b32 m0, s36\ns_nop 0\n" % (44 + si)
            else:
                pre = "s_add_u32 m0, s36, %d\ns_nop 0\n" % (t * 1024)
            it.append(pre + "buffer_load_dwordx4 v%d, s[%d:%d], s%d offen lds" % (vreg, 8 + 4 * si, 11 + 4 * si, 31 + si))
        tail = "s_add_u32 s30, s30, 128\n"
        for i, sb in enumerate(subs):
            tail += "s_add_u32 s%d, s%d, %d\n" % (31 + i, 31 + i, 64 * sb[2] * 2)
        tail += "s_add_u32 s34, s34, %d\ns_cmp_eq_u32 s34, %d\ns_cselect_b32 s34, 0, s34" % (STAGE, NS * STAGE)
        it[-1] += "\n" + tail
        return it

    def dma():
        for x in dma_items():
            k.e(x)

    def setaddr_items():
        if XORST:
            return ["v_xor_b32 v%d, %d, v%d" % (vAr + r, STAGE, vAr + r) for r in range(NAD)]
        it = ["v_add_u32 v%d, s38, v%d" % (vAr + r, vAb + r) for r in range(NAD)]
        it[-1] += "\ns_add_u32 s38, s38, %d\ns_cmp_eq_u32 s38, %d\ns_cselect_b32 s38, 0, s38" % (STAGE, NS * STAGE)
        return it

    def read_items(st, kk):
        it = []
        for rb in range(RB):
            it.append("ds_read_b128 v[%d:%d], v%d offset:%d" % (fA(st, rb), fA(st, rb) + 3, vAr + kk, rb * 2048))
        for cb, (si, pmul, padd) in enumerate(colblocks):
            pitch = subs[si][3] * 2
            base = sub_lds[si] + kk * 32 * pitch
            it.append("ds_read_b64_tr_b16 v[%d:%d], v%d offset:%d" % (fB(st, cb), fB(st, cb) + 1, vBr + cb, base))
            it.append("ds_read_b64_tr_b16 v[%d:%d], v%d offset:%d" % (fB(st, cb) + 2, fB(st, cb) + 3, vBr + cb, base + 4 * pitch))
        return it

    def stat_items(st):
        return []

    def mfmas(st, fill=(), late=()):
        fill = list(fill); late = list(late)
        ms = []
        for rb in range(RB):
            for cb in range(CB):
                a = acc(rb, cb)
                ms.append("v_mfma_f32_16x16x32_bf16 v[%d:%d], v[%d:%d], v[%d:%d], v[%d:%d]" % (
                    a, a + 3, fB(st, cb), fB(st, cb) + 3, fA(st, rb), fA(st, rb) + 3, a, a + 3))
        if vcs and 'nocs' not in EXP:
            for cb in range(CB):
                c = vcs + 4 * cb
                ms.append("v_mfma_f32_16x16x32_bf16 v[%d:%d], v[%d:%d], v[%d:%d], v[%d:%d]" % (
                    c, c + 3, fB(st, cb), fB(st, cb) + 3, vones, vones + 3, c, c + 3))
        n = len(ms)
        per = -(-len(fill) // n) if fill else 0
        perl = -(-len(late) // n) if late else 0
        for m in ms:
            k.e(m)
            for _ in range(per):
                if fill:
                    k.e(fill.pop(0))
            for _ in range(perl):
                if late:
                    k.e(late.pop(0))
        assert not fill and not late

    k.e("s_mov_b32 s37, 0")
    if NL:
        assert NS >= 3
        k.e("s_cmp_lt_u32 s19, %d" % NWC)
        k.e("s_cbranch_scc1 %s" % lab("comp"))
        if 'lprio' in EXP:
            k.e("s_setprio 2")
        for s_ in range(NS - 1):
            dma()
        LS = (ln == 'mfma')
        if LS:
            assert BM == 128 and NL == 4
            t = vfr
            k.e("v_lshrrev_b32 v%d, 1, v0" % (t + 22))
            k.e("s_lshl_b32 s25, s22, 5")
            k.e("v_add_u32 v%d, s25, v%d" % (t + 23, t + 22))
            k.e("v_lshlrev_b32 v%d, 7, v%d" % (t + 23, t + 23))
            k.e("v_and_b32 v%d, 1, v0" % (t + 24))
            k.e("v_lshlrev_b32 v%d, 6, v%d" % (t + 24, t + 24))
            k.e("v_add_u32 v%d, v%d, v%d" % (t + 23, t + 23, t + 24))
            k.e("v_lshrrev_b32 v%d, 1, v%d" % (t + 22, t + 22))
            for j in range(4):
                k.e("v_add_u32 v%d, %d, v%d" % (t + 24, j, t + 22))
                k.e("v_and_b32 v%d, 3, v%d" % (t + 24, t + 24))
                k.e("v_lshlrev_b32 v%d, 4, v%d" % (t + 24, t + 24))
                k.e("v_add_u32 v%d, v%d, v%d" % (t + 26 + j, t + 23, t + 24))
            k.e("v_mov_b32 v%d, 0" % (t + 20))
            k.e("v_mov_b32 v%d, 0" % (t + 21))
            k.e("s_mov_b32 s39, 0")

            def lstats():
                if 'nolstats' in EXP:
                    return
                for j in range(4):
                    k.e("v_add_u32 v%d, s39, v%d" % (t + j, t + 26 + j))
                for j in range(4):
                    k.e("ds_read_b128 v[%d:%d], v%d" % (t + 4 + 4 * j, t + 7 + 4 * j, t + j))
                k.e("s_add_u32 s39, s39, %d\ns_cmp_eq_u32 s39, %d\ns_cselect_b32 s39, 0, s39" % (STAGE, NS * STAGE))
                for j in range(16):
                    if j % 4 == 0:
                        k.e("s_waitcnt lgkmcnt(%d)" % (3 - j // 4))
                    d = t + 4 + j
                    k.e("v_dot2c_f32_bf16 v%d, v%d, v%d" % (t + 20, d, vones))
                    k.e("v_dot2c_f32_bf16 v%d, v%d, v%d" % (t + 21, d, d))
        k.e("s_waitcnt vmcnt(%d)" % ((NS - 2) * nd))
        k.e("s_barrier")
        if LS:
            lstats()
        k.lab(lab("lloop"))
        k.e("s_waitcnt vmcnt(%d)" % ((NS - 3) * nd))
        k.e("s_barrier")
        dma()
        k.e("s_add_u32 s37, s37, 1")
        k.e("s_cmp_lt_u32 s37, %d" % nk)
        if LS:
            k.e("s_cbranch_scc0 %s" % lab("ldone"))
            lstats()
            k.e("s_branch %s" % lab("lloop"))
            k.lab(lab("ldone"))
            k.e("s_waitcnt vmcnt(0)")
            for v in (t + 20, t + 21):
                k.e("ds_swizzle_b32 v%d, v%d offset:0x041F" % (t + 22, v))
                k.e("s_waitcnt lgkmcnt(0)")
                k.e("v_add_f32 v%d, v%d, v%d" % (v, v, t + 22))
            k.e("s_barrier")
            k.e("v_lshrrev_b32 v%d, 1, v0" % (t + 22))
            k.e("s_lshl_b32 s25, s22, 5")
            k.e("v_add_u32 v%d, s25, v%d" % (t + 22, t + 22))
            k.e("v_lshlrev_b32 v%d, 3, v%d" % (t + 22, t + 22))
            k.e("ds_write_b64 v%d, v[%d:%d]" % (t + 22, t + 20, t + 21))
            k.e("s_waitcnt lgkmcnt(0)")
            k.e("s_barrier")
        else:
            k.e("s_cbranch_scc1 %s" % lab("lloop"))
            k.e("s_waitcnt vmcnt(0)")
        k.e("s_endpgm")
        k.lab(lab("comp"))
        if 'prio' in EXP:
            k.e("s_setprio 2")
        if res:
            res_prefetch(k, ctx, res)
        stamp(k, 1)
        k.e("s_mov_b32 s38, 0")
        for x in setaddr_items():
            k.e(x)
        k.e("s_barrier")
        stamp(k, 2)
        for x in read_items(0, 0):
            k.e(x)
        k.lab(lab("loop"))
        k.e("s_waitcnt lgkmcnt(0)")
        mfmas(0, read_items(1, 1), stat_items(0))
        k.e("s_barrier")
        k.e("s_waitcnt lgkmcnt(0)")
        mfmas(1, setaddr_items() + read_items(0, 0), stat_items(1))
    elif pp:
        assert XORST and NWC == 8
        dma()
        zero_acc()
        stamp(k, 1)
        k.e("s_waitcnt vmcnt(0)")
        k.e("s_barrier")
        k.e("s_cmp_ge_u32 s19, 4")
        k.e("s_cbranch_scc1 %s" % lab("ypath"))

        NSPLIT = int(os.environ.get('NSPLIT', '8'))

        def loadphase(dm, rf=False):
            if not rf:
                for x in dm:
                    k.e(x)
            for x in read_items(0, 0) + read_items(1, 1):
                k.e(x)
            if rf:
                for x in dm:
                    k.e(x)
            for x in setaddr_items():
                k.e(x)
            k.e("s_waitcnt lgkmcnt(0)")
        RFX = 'rfx' in EXP; RFY = 'rfy' in EXP

        def compphase(dm):
            mfmas(0, dm)
            mfmas(1)
        di = dma_items()
        ny = len(di) - NSPLIT
        loadphase(di[:NSPLIT], RFX)
        k.e("s_barrier")
        k.lab(lab("xloop"))
        compphase(di[NSPLIT:])
        k.e("s_waitcnt vmcnt(0)")
        k.e("s_barrier")
        loadphase(di[:NSPLIT], RFX)
        k.e("s_barrier")
        k.e("s_add_u32 s37, s37, 1")
        k.e("s_cmp_lt_u32 s37, %d" % nk)
        k.e("s_cbranch_scc1 %s" % lab("xloop"))
        k.e("s_branch %s" % lab("done"))
        k.lab(lab("ypath"))
        for x in di[:ny]:
            k.e(x)
        k.e("s_barrier")
        k.lab(lab("loop"))
        loadphase(di[ny:], RFY)
        k.e("s_waitcnt vmcnt(0)")
        k.e("s_barrier")
        compphase(di[:ny])
        k.e("s_barrier")
    else:
        dma()
        if ln == 'ws':
            ws_stats()
            zero_acc()
        stamp(k, 1)
        k.e("s_mov_b32 s38, 0")
        if not XORST:
            for x in setaddr_items():
                k.e(x)
        k.lab(lab("loop"))
        k.e("s_waitcnt vmcnt(0)")
        k.e("s_barrier")
        for x in read_items(0, 0):
            k.e(x)
        k.e("s_waitcnt lgkmcnt(0)")
        mfmas(0, read_items(1, 1) + dma_items(), stat_items(0))
        k.e("s_waitcnt lgkmcnt(0)")
        mfmas(1, setaddr_items(), stat_items(1))
    k.e("s_add_u32 s37, s37, 1")
    k.e("s_cmp_lt_u32 s37, %d" % nk)
    k.e("s_cbranch_scc1 %s" % lab("loop"))
    k.lab(lab("done"))
    k.e("s_waitcnt vmcnt(0) lgkmcnt(0)")
    if not NL:
        k.e("s_barrier")
    stamp(k, 3)
    k.e("s_nop 7")
    if ln == 'mfma':
        k.e("s_barrier")
        k.e("s_barrier")
        k.e("v_and_b32 v2, 15, v0")
        k.e("s_mul_i32 s25, s23, %d" % (RB * 16))
        k.e("v_add_u32 v2, s25, v2")
        k.e("v_lshlrev_b32 v2, 3, v2")
        for rb in range(RB):
            k.e("ds_read_b32 v%d, v2 offset:%d" % (vsum + rb, rb * 128))
            k.e("ds_read_b32 v%d, v2 offset:%d" % (vsq + rb, rb * 128 + 4))
        k.e("s_waitcnt lgkmcnt(0)")
        ln_finish(k, ctx, reduce=False)
    epi(k, ctx)
    stamp_store(k, 4, {'g1': 0, 'g2': 1, 'g3': 2, 'g4': 3}[name[:2]])
    k.lab(lab("end"))
    k.e("s_endpgm")
    return k


def row_base(k, c, ldc, va=1, vb=2):
    k.e("s_mul_i32 s25, s20, %d" % c["BM"])
    k.e("s_mul_i32 s26, s23, %d" % (c["RB"] * 16))
    k.e("s_add_u32 s25, s25, s26")
    k.e("v_and_b32 v%d, 15, v0" % va)
    k.e("v_add_u32 v%d, s25, v%d" % (va, va))
    k.e("s_mov_b32 s26, %d" % (ldc * 2))
    k.e("v_mul_lo_u32 v%d, v%d, s26" % (va, va))
    k.e("v_lshrrev_b32 v%d, 4, v0" % vb)
    k.e("v_lshlrev_b32 v%d, 3, v%d" % (vb, vb))
    k.e("v_add_u32 v%d, v%d, v%d" % (va, va, vb))


def col_off(k, c, cb, sreg, cmul):
    si, pmul, padd = c["colblocks"][cb]
    sb = sum(s[3] for s in c["subs"][:si])
    k.e("s_mul_i32 s%d, s21, %d" % (sreg, cmul * 2))
    k.e("s_mul_i32 s26, s24, %d" % (pmul * 32))
    k.e("s_add_u32 s%d, s%d, s26" % (sreg, sreg))
    k.e("s_add_u32 s%d, s%d, %d" % (sreg, sreg, (sb + padd * 16) * 2))


def res_prefetch(k, c, res):
    RB, CB = c["RB"], c["CB"]
    srd(k, 48, res[0], res[1], S * D * 2)
    t = c["vfr"]
    row_base(k, c, D, t, t + 1)
    tot = sum(s[3] for s in c["subs"])
    for cb in range(CB):
        col_off(k, c, cb, 25, tot)
        for rb in range(RB):
            k.e("v_add_u32 v%d, s25, v%d" % (t + 2, t))
            if rb:
                k.e("v_add_u32 v%d, %d, v%d" % (t + 2, rb * 16 * D * 2, t + 2))
            r = c["vres"] + 2 * (rb * CB + cb)
            k.e("buffer_load_dwordx2 v[%d:%d], v%d, s[48:51], 0 offen" % (r, r + 1, t + 2))


def ln_finish(k, c, reduce=True):
    RB = c["RB"]
    invK = {1024: "0x3a800000"}[c["Kdim"]]
    T = c.get("vtmp", 2)
    vs = [c["vsum"] + rb for rb in range(RB)] + [c["vsq"] + rb for rb in range(RB)]
    if reduce:
        for j, v in enumerate(vs):
            k.e("ds_swizzle_b32 v%d, v%d offset:0x401F" % (T + j, v))
        k.e("s_waitcnt lgkmcnt(0)")
        for j, v in enumerate(vs):
            k.e("v_add_f32 v%d, v%d, v%d" % (v, v, T + j))
        for j, v in enumerate(vs):
            k.e("v_mov_b32 v%d, v%d" % (T + j, v))
        k.e("s_nop 1")
        for j, v in enumerate(vs):
            k.e("v_permlane32_swap_b32 v%d, v%d" % (v, T + j))
        k.e("s_nop 1")
        for j, v in enumerate(vs):
            k.e("v_add_f32 v%d, v%d, v%d" % (v, v, T + j))
    R = range(RB)
    m = lambda rb: c["vsum"] + rb
    q = lambda rb: c["vsq"] + rb
    for rb in R:
        k.e("v_mul_f32 v%d, %s, v%d" % (m(rb), invK, m(rb)))
        k.e("v_mul_f32 v%d, %s, v%d" % (q(rb), invK, q(rb)))
    for rb in R:
        k.e("v_fma_f32 v%d, -v%d, v%d, v%d" % (q(rb), m(rb), m(rb), q(rb)))
    for rb in R:
        k.e("v_cvt_pk_bf16_f32 v%d, v%d, v%d" % (T + rb, m(rb), q(rb)))
    for rb in R:
        k.e("v_lshlrev_b32 v%d, 16, v%d" % (m(rb), T + rb))
        k.e("v_and_b32 v%d, 0xffff0000, v%d" % (q(rb), T + rb))
    for rb in R:
        k.e("v_add_f32 v%d, 0x3727c5ac, v%d" % (q(rb), q(rb)))
    for rb in R:
        k.e("v_cvt_pk_bf16_f32 v%d, v%d, v%d" % (T + rb, q(rb), q(rb)))
    for rb in R:
        k.e("v_lshlrev_b32 v%d, 16, v%d" % (q(rb), T + rb))
    for rb in R:
        k.e("v_sqrt_f32 v%d, v%d" % (q(rb), q(rb)))
    k.e("s_nop 0")
    for rb in R:
        k.e("v_cvt_pk_bf16_f32 v%d, v%d, v%d" % (T + rb, q(rb), q(rb)))
    for rb in R:
        k.e("v_lshlrev_b32 v%d, 16, v%d" % (q(rb), T + rb))
    for rb in R:
        k.e("v_rcp_f32 v%d, v%d" % (q(rb), q(rb)))
    k.e("s_nop 0")


def ln_apply(k, c, a, rb, cs):
    m = c["vsum"] + rb; q = c["vsq"] + rb
    for r in range(4):
        k.e("v_fma_f32 v%d, -v%d, v%d, v%d" % (a + r, m, cs + r, a + r))
    for r in range(4):
        k.e("v_mul_f32 v%d, v%d, v%d" % (a + r, a + r, q))


class LdsStore:
    def __init__(self, k, c, groups, ldc, srd_reg, NWC, vbase):
        self.k = k; self.c = c; self.groups = groups; self.ldc = ldc; self.srd = srd_reg
        self.off = []; o = 0
        for g in groups:
            self.off.append(o); o += 64 * len(g) * 32
        self.wbytes = o
        self.aw = {}
        v = vbase
        k.e("s_mul_i32 s27, s19, %d" % self.wbytes)
        for gi, g in enumerate(groups):
            CH = 2 * len(g); pitch = CH * 16
            for j, cb in enumerate(g):
                k.e("v_and_b32 v%d, 15, v0" % v)
                k.e("v_and_b32 v%d, %d, v0" % (v + 1, CH - 1))
                k.e("v_bfe_u32 v%d, v0, 5, 1" % (v + 2))
                k.e("v_or_b32 v%d, %d, v%d" % (v + 2, 2 * j, v + 2))
                k.e("v_xor_b32 v%d, v%d, v%d" % (v + 1, v + 1, v + 2))
                k.e("v_lshlrev_b32 v%d, 4, v%d" % (v + 1, v + 1))
                k.e("v_mul_u32_u24 v%d, %d, v%d" % (v, pitch, v))
                k.e("v_bfe_u32 v%d, v0, 4, 1" % (v + 2))
                k.e("v_lshlrev_b32 v%d, 3, v%d" % (v + 2, v + 2))
                k.e("v_add3_u32 v%d, v%d, v%d, v%d" % (v, v, v + 1, v + 2))
                k.e("v_add_u32 v%d, s27, v%d" % (v, v))
                self.aw[cb] = (v, gi, pitch); v += 1
        self.vfree = v + 2

    def put(self, rb, cb, a):
        v, gi, pitch = self.aw[cb]
        self.k.e("ds_write_b64 v%d, v[%d:%d] offset:%d" % (v, a, a + 1, self.off[gi] + rb * 16 * pitch))

    def flush(self, colbase_fn, vd):
        k = self.k; c = self.c
        k.e("s_waitcnt lgkmcnt(0)")
        v = self.vfree
        for gi, g in enumerate(self.groups):
            CH = 2 * len(g); pitch = CH * 16; rp = 64 // CH
            lg = CH.bit_length() - 1
            k.e("v_lshrrev_b32 v%d, %d, v0" % (v, lg))
            k.e("v_and_b32 v%d, %d, v0" % (v + 1, CH - 1))
            k.e("v_and_b32 v%d, %d, v%d" % (v + 2, CH - 1, v))
            k.e("v_xor_b32 v%d, v%d, v%d" % (v + 2, v + 2, v + 1))
            k.e("v_lshlrev_b32 v%d, 4, v%d" % (v + 2, v + 2))
            k.e("v_mul_u32_u24 v%d, %d, v%d" % (v + 3, pitch, v))
            k.e("v_add3_u32 v%d, v%d, v%d, s27" % (v + 2, v + 2, v + 3))
            k.e("s_mul_i32 s25, s20, %d" % c["BM"])
            k.e("s_mul_i32 s26, s23, %d" % (c["RB"] * 16))
            k.e("s_add_u32 s25, s25, s26")
            k.e("v_add_u32 v%d, s25, v%d" % (v, v))
            k.e("s_mov_b32 s26, %d" % (self.ldc * 2))
            k.e("v_mul_lo_u32 v%d, v%d, s26" % (v, v))
            k.e("v_lshlrev_b32 v%d, 4, v%d" % (v + 1, v + 1))
            colbase_fn(k, gi, 25)
            k.e("v_add3_u32 v%d, v%d, v%d, s25" % (v, v, v + 1))
            nj = 64 // rp
            for j in range(nj):
                k.e("ds_read_b128 v[%d:%d], v%d offset:%d" % (vd + 4 * j, vd + 4 * j + 3, v + 2, self.off[gi] + j * rp * pitch))
            for j in range(nj):
                k.e("s_waitcnt lgkmcnt(%d)" % (nj - 1 - j))
                if j:
                    k.e("v_add_u32 v%d, %d, v%d" % (v, rp * self.ldc * 2, v))
                k.e("buffer_store_dwordx4 v[%d:%d], v%d, s[%d:%d], 0 offen%s" % (vd + 4 * j, vd + 4 * j + 3, v, self.srd, self.srd + 3, STFLAG))
            k.e("s_nop 1")


def epi_store_factory(ldc, c_slot, c_off, c_bytes, part=False, groups=None):
    def epi(k, c):
        RB, CB, acc = c["RB"], c["CB"], c["acc"]
        srd(k, 40, c_slot, c_off, c_bytes)
        PS = c["vfr"]
        if groups:
            tot = sum(s[3] for s in c["subs"])
            k.e("s_barrier")
            ls = LdsStore(k, c, groups, ldc, 40, 4, c["vfr"])
            for cb in range(CB):
                for rb in range(RB):
                    a = acc(rb, cb)
                    if c["ln"]:
                        ln_apply(k, c, a, rb, c["vcs"] + 4 * cb)
                    k.e("v_cvt_pk_bf16_f32 v%d, v%d, v%d" % (a, a, a + 1))
                    k.e("v_cvt_pk_bf16_f32 v%d, v%d, v%d" % (a + 1, a + 2, a + 3))
                    ls.put(rb, cb, a)
            ls.flush(lambda k, gi, sreg: col_off(k, c, groups[gi][0], sreg, tot), c["vfr"] + 16)
            return
        if part:
            for rb in range(RB):
                k.e("v_mov_b32 v%d, 0" % (PS + 2 * rb))
                k.e("v_mov_b32 v%d, 0" % (PS + 1 + 2 * rb))
        row_base(k, c, ldc)
        tot = sum(s[3] for s in c["subs"])
        for cb in range(CB):
            col_off(k, c, cb, 25, tot)
            k.e("v_add_u32 v3, s25, v1")
            for rb in range(RB):
                a = acc(rb, cb)
                if c["ln"]:
                    ln_apply(k, c, a, rb, c["vcs"] + 4 * cb)
                k.e("v_cvt_pk_bf16_f32 v%d, v%d, v%d" % (a, a, a + 1))
                k.e("v_cvt_pk_bf16_f32 v%d, v%d, v%d" % (a + 1, a + 2, a + 3))
                if c["vres"] is not None:
                    r = c["vres"] + 2 * (rb * CB + cb)
                    for j in range(2):
                        k.e("v_lshlrev_b32 v6, 16, v%d" % (a + j))
                        k.e("v_and_b32 v7, 0xffff0000, v%d" % (a + j))
                        k.e("v_lshlrev_b32 v8, 16, v%d" % (r + j))
                        k.e("v_and_b32 v9, 0xffff0000, v%d" % (r + j))
                        k.e("v_add_f32 v6, v6, v8")
                        k.e("v_add_f32 v7, v7, v9")
                        k.e("v_cvt_pk_bf16_f32 v%d, v6, v7" % (a + j))
                        if part:
                            k.e("v_lshlrev_b32 v6, 16, v%d" % (a + j))
                            k.e("v_and_b32 v7, 0xffff0000, v%d" % (a + j))
                            k.e("v_add_f32 v%d, v%d, v6" % (PS + 2 * rb, PS + 2 * rb))
                            k.e("v_fmac_f32 v%d, v6, v6" % (PS + 1 + 2 * rb))
                            k.e("v_add_f32 v%d, v%d, v7" % (PS + 2 * rb, PS + 2 * rb))
                            k.e("v_fmac_f32 v%d, v7, v7" % (PS + 1 + 2 * rb))
                k.e("v_add_u32 v4, %d, v3" % (rb * 16 * ldc * 2))
                k.e("buffer_store_dwordx2 v[%d:%d], v4, s[40:43], 0 offen" % (a, a + 1))
        if part:
            srd(k, 44, KA_WS, WS_PART, S * 256)
            for v in range(PS, PS + 2 * RB):
                k.e("ds_swizzle_b32 v2, v%d offset:0x401F" % v)
                k.e("s_waitcnt lgkmcnt(0)")
                k.e("v_add_f32 v%d, v%d, v2" % (v, v))
                k.e("v_mov_b32 v2, v%d" % v)
                k.e("s_nop 1")
                k.e("v_permlane32_swap_b32 v%d, v2" % v)
                k.e("v_add_f32 v%d, v%d, v2" % (v, v))
            k.e("s_mul_i32 s25, s20, %d" % c["BM"])
            k.e("s_mul_i32 s26, s23, %d" % (RB * 16))
            k.e("s_add_u32 s25, s25, s26")
            k.e("v_add_u32 v1, s25, v0")
            k.e("v_lshlrev_b32 v1, 4, v1")
            k.e("s_lshl_b32 s25, s21, 15")
            k.e("s_lshl_b32 s26, s24, 3")
            k.e("s_add_u32 s25, s25, s26")
            k.e("v_add_u32 v1, s25, v1")
            k.e("v_cmp_gt_u32 vcc, 16, v0")
            k.e("s_and_saveexec_b64 s[52:53], vcc")
            for rb in range(RB):
                k.e("v_add_u32 v2, %d, v1" % (rb * 256))
                k.e("buffer_store_dwordx2 v[%d:%d], v2, s[44:47], 0 offen" % (PS + 2 * rb, PS + 1 + 2 * rb))
            k.e("s_mov_b64 exec, s[52:53]")
    return epi


def epi_swiglu(k, c):
    RB, CB, acc, colblocks, subs = c["RB"], c["CB"], c["acc"], c["colblocks"], c["subs"]
    ldc = F
    srd(k, 40, KA_WS, WS_ACT, S * F * 2)
    srd(k, 44, KA_WS, WS_CS, 2 * F * 4)
    half = CB // 2
    width = subs[0][3]
    vc = c["vfr"]
    assert 8 * half <= 32
    k.e("v_lshrrev_b32 v2, 4, v0")
    k.e("v_lshlrev_b32 v2, 4, v2")
    for cb in range(half):
        si, pmul, padd = colblocks[cb]
        assert si == 0 and colblocks[cb + half] == (1, pmul, padd)
        k.e("s_mul_i32 s25, s21, %d" % (width * 4))
        k.e("s_mul_i32 s26, s24, %d" % (pmul * 64))
        k.e("s_add_u32 s25, s25, s26")
        k.e("s_add_u32 s25, s25, %d" % (padd * 64))
        k.e("v_add_u32 v3, s25, v2")
        k.e("buffer_load_dwordx4 v[%d:%d], v3, s[44:47], 0 offen" % (vc + 8 * cb, vc + 8 * cb + 3))
        k.e("v_add_u32 v3, %d, v3" % (F * 4))
        k.e("buffer_load_dwordx4 v[%d:%d], v3, s[44:47], 0 offen" % (vc + 8 * cb + 4, vc + 8 * cb + 7))
    c["ws_stats"]()
    stamp(k, 2)
    ls = LdsStore(k, c, [list(range(half))], ldc, 40, 8, c["vfr"] + 40)
    vr = c["vfr"] + 32
    for rb in range(RB):
        k.e("v_mul_f32 v%d, 0xbfb8aa3b, v%d" % (vr + rb, c["vsq"] + rb))
    for cb in range(half):
        si, pmul, padd = colblocks[cb]
        k.e("s_mul_i32 s25, s21, %d" % (width * 2))
        k.e("s_mul_i32 s26, s24, %d" % (pmul * 32))
        k.e("s_add_u32 s25, s25, s26")
        k.e("s_add_u32 s25, s25, %d" % (padd * 32))
        for rb in range(RB):
            g = acc(rb, cb); u = acc(rb, cb + half)
            m = c["vsum"] + rb; q = c["vsq"] + rb
            cg = vc + 8 * cb; cu = cg + 4
            for r in range(4):
                k.e("v_fma_f32 v%d, -v%d, v%d, v%d" % (g + r, m, cg + r, g + r))
            for r in range(4):
                k.e("v_mul_f32 v%d, v%d, v%d" % (4 + r, g + r, vr + rb))
            for r in range(4):
                k.e("v_exp_f32 v%d, v%d" % (4 + r, 4 + r))
            for r in range(4):
                k.e("v_fma_f32 v%d, -v%d, v%d, v%d" % (u + r, m, cu + r, u + r))
            for r in range(4):
                k.e("v_add_f32 v%d, 1.0, v%d" % (4 + r, 4 + r))
            for r in range(4):
                k.e("v_rcp_f32 v%d, v%d" % (4 + r, 4 + r))
            for r in range(4):
                k.e("v_mul_f32 v%d, v%d, v%d" % (g + r, g + r, u + r))
            k.e("v_mul_f32 v8, v%d, v%d" % (q, q))
            for r in range(4):
                k.e("v_mul_f32 v%d, v%d, v%d" % (4 + r, 4 + r, 8))
            for r in range(4):
                k.e("v_mul_f32 v%d, v%d, v%d" % (g + r, g + r, 4 + r))
            k.e("v_cvt_pk_bf16_f32 v%d, v%d, v%d" % (g, g, g + 1))
            k.e("v_cvt_pk_bf16_f32 v%d, v%d, v%d" % (g + 1, g + 2, g + 3))
            ls.put(rb, cb, g)

    def colbase(k, gi, sreg):
        si, pmul, padd = colblocks[0]
        k.e("s_mul_i32 s%d, s21, %d" % (sreg, width * 2))
        k.e("s_mul_i32 s26, s24, %d" % (pmul * 32))
        k.e("s_add_u32 s%d, s%d, s26" % (sreg, sreg))
    ls.flush(colbase, c["vfr"] + 56)


def gen_attn(name):
    MIMIC = 'mimic' in EXP
    NATT = 512
    NCS = 2 * F // 64
    NPF = 32
    NH = NCS + NPF
    nwg = NATT + NH
    KV_ROWS = 384
    K_LDS = 0
    V_LDS = KV_ROWS * 64
    k = Kern(name, (nwg, 1, 1), (256, 1, 1), 2 * KV_ROWS * 64, 0)
    lab = lambda s: "%s_%s" % (name, s)
    k.e("s_cmp_ge_u32 s2, %d" % nwg)
    k.e("s_cbranch_scc1 %s" % lab("end"))
    load_ptrs(k)
    k.e("s_cmp_lt_u32 s2, %d" % NH)
    k.e("s_cbranch_scc1 %s" % lab("cs"))
    k.e("s_sub_u32 s2, s2, %d" % NH)
    stamp(k, 0)
    srd(k, 4, KA_WS, WS_QKV, S * 3 * D * 2)
    srd(k, 8, KA_WS, WS_O, S * D * 2)
    k.e("s_and_b32 s20, s2, 31")
    k.e("s_lshr_b32 s21, s2, 5")
    k.e("v_lshrrev_b32 v1, 6, v0")
    k.e("s_nop 0")
    k.e("v_readfirstlane_b32 s22, v1")
    k.e("v_and_b32 v0, 63, v0")
    k.e("""
    v_lshrrev_b32 v1, 2, v0
    v_and_b32 v2, 3, v0
    v_bfe_u32 v3, v0, 4, 2
    v_xor_b32 v2, v2, v3
    v_lshlrev_b32 v2, 4, v2
    s_lshl_b32 s23, s21, 7
    s_mul_i32 s24, s22, 96
    s_add_u32 s23, s23, s24
    s_sub_u32 s23, s23, 256
    v_add_u32 v1, s23, v1
    s_mov_b32 s24, %d
    v_mul_lo_u32 v1, v1, s24
    v_add_u32 v1, v1, v2
    s_lshl_b32 s24, s20, 6
    v_add_u32 v1, s24, v1
    s_mul_i32 s25, s22, 6144
    """ % (3 * D * 2))
    for mat, ldsb in ((1, K_LDS), (2, V_LDS)):
        for t in range(6):
            k.e("v_add_u32 v2, %d, v1" % (t * 16 * 3 * D * 2 + mat * D * 2))
            k.e("s_add_u32 m0, s25, %d" % (ldsb + t * 1024))
            k.e("s_nop 0")
            k.e("buffer_load_dwordx4 v2, s[4:7], 0 offen lds")
    k.e("""
    s_lshl_b32 s23, s21, 7
    s_lshl_b32 s24, s22, 5
    s_add_u32 s23, s23, s24
    v_and_b32 v1, 31, v0
    v_add_u32 v1, s23, v1
    s_mov_b32 s24, %d
    v_mul_lo_u32 v1, v1, s24
    v_lshrrev_b32 v2, 5, v0
    v_lshlrev_b32 v2, 4, v2
    s_lshl_b32 s24, s20, 6
    v_add3_u32 v1, v1, v2, s24
    buffer_load_dwordx4 v[4:7], v1, s[4:7], 0 offen
    buffer_load_dwordx4 v[8:11], v1, s[4:7], 0 offen offset:32
    v_and_b32 v1, 31, v0
    v_lshlrev_b32 v12, 6, v1
    v_bfe_u32 v2, v0, 2, 2
    v_lshrrev_b32 v3, 5, v0
    v_xor_b32 v13, v3, v2
    v_lshlrev_b32 v13, 4, v13
    v_add_u32 v13, v12, v13
    v_or_b32 v3, 2, v3
    v_xor_b32 v14, v3, v2
    v_lshlrev_b32 v14, 4, v14
    v_add_u32 v14, v12, v14
    s_lshl_b32 s24, s22, 11
    v_add_u32 v13, s24, v13
    v_add_u32 v14, s24, v14
    v_bfe_u32 v1, v0, 5, 1
    v_lshlrev_b32 v1, 2, v1
    v_bfe_u32 v2, v0, 2, 2
    v_add_u32 v1, v1, v2
    v_bfe_u32 v2, v0, 4, 1
    v_lshlrev_b32 v2, 1, v2
    v_bfe_u32 v3, v0, 1, 1
    v_or_b32 v2, v2, v3
    v_and_b32 v3, 1, v0
    v_lshlrev_b32 v3, 3, v3
    """ % (3 * D * 2))
    for j in range(4):
        k.e("v_add_u32 v19, %d, v1" % (8 * j))
        k.e("v_bfe_u32 v20, v19, 2, 2")
        k.e("v_xor_b32 v20, v20, v2")
        k.e("v_lshlrev_b32 v20, 4, v20")
        k.e("v_lshlrev_b32 v19, 6, v19")
        k.e("v_add3_u32 v%d, v19, v20, v3" % (15 + j))
        k.e("v_add_u32 v%d, s24, v%d" % (15 + j, 15 + j))
    k.e("s_waitcnt vmcnt(0)")
    k.e("s_barrier")
    stamp(k, 1)
    SB = 48
    k.e("ds_read_b128 v[20:23], v13 offset:%d" % K_LDS)
    k.e("ds_read_b128 v[24:27], v14 offset:%d" % K_LDS)
    for b in range(9):
        f = 20 + 8 * (b & 1); fn = 20 + 8 * ((b + 1) & 1)
        if b < 8:
            k.e("ds_read_b128 v[%d:%d], v13 offset:%d" % (fn, fn + 3, K_LDS + (b + 1) * 2048))
            k.e("ds_read_b128 v[%d:%d], v14 offset:%d" % (fn + 4, fn + 7, K_LDS + (b + 1) * 2048))
            k.e("s_waitcnt lgkmcnt(2)")
        else:
            k.e("s_waitcnt lgkmcnt(0)")
        s0 = SB + b * 16
        k.e("v_mfma_f32_32x32x16_bf16 v[%d:%d], v[%d:%d], v[4:7], 0" % (s0, s0 + 15, f, f + 3))
        k.e("v_mfma_f32_32x32x16_bf16 v[%d:%d], v[%d:%d], v[8:11], v[%d:%d]" % (s0, s0 + 15, f + 4, f + 7, s0, s0 + 15))
    k.e("s_nop 15")
    NSR = 144
    stamp(k, 2)
    if MIMIC:
        for r in range(0, NSR, 2):
            a = SB + r
            k.e("v_cvt_pk_bf16_f32 v36, v%d, v%d" % (a, a + 1))
            k.e("v_lshlrev_b32 v%d, 16, v36" % a)
            k.e("v_and_b32 v%d, 0xffff0000, v36" % (a + 1))
            k.e("v_mul_f32 v%d, 0x3e3504f3, v%d" % (a, a))
            k.e("v_mul_f32 v%d, 0x3e3504f3, v%d" % (a + 1, a + 1))
            k.e("v_cvt_pk_bf16_f32 v36, v%d, v%d" % (a, a + 1))
            k.e("v_lshlrev_b32 v%d, 16, v36" % a)
            k.e("v_and_b32 v%d, 0xffff0000, v36" % (a + 1))
        k.e("s_mov_b32 s26, 0x3fb8aa3b")
    else:
        k.e("s_mov_b32 s26, 0x3e8293ee")
    k.e("v_and_b32 v1, 31, v0")
    k.e("v_lshrrev_b32 v2, 5, v0")
    k.e("v_lshlrev_b32 v2, 2, v2")
    k.e("v_sub_u32 v1, v1, v2")
    k.e("v_mov_b32 v3, 0xce6e6b28")
    for r in range(16):
        c = (r & 3) + 8 * (r >> 2)
        k.e("v_cmp_ge_i32 vcc, v1, %d" % c)
        k.e("s_nop 1")
        k.e("v_cndmask_b32 v%d, v%d, v3, vcc" % (SB + r, SB + r))
        k.e("v_cndmask_b32 v%d, v3, v%d, vcc" % (SB + 128 + r, SB + 128 + r))
    k.e("s_lshl_b32 s23, s21, 2")
    k.e("s_add_u32 s23, s23, s22")
    k.e("s_cmp_ge_u32 s23, 8")
    k.e("s_cbranch_scc1 %s" % lab("nomask"))
    for b in range(8):
        k.e("s_cmp_lt_u32 s23, %d" % (8 - b))
        k.e("s_cbranch_scc0 %s" % lab("nm%d" % b))
        for r in range(16):
            k.e("v_mov_b32 v%d, v3" % (SB + b * 16 + r))
        k.lab(lab("nm%d" % b))
    k.lab(lab("nomask"))
    k.e("v_max_f32 v1, v%d, v%d" % (SB, SB + 1))
    for r in range(2, NSR, 2):
        k.e("v_max3_f32 v1, v1, v%d, v%d" % (SB + r, SB + r + 1))
    k.e("v_mov_b32 v2, v1")
    k.e("s_nop 1")
    k.e("v_permlane32_swap_b32 v1, v2")
    k.e("v_max_f32 v1, v1, v2")
    k.e("v_mul_f32 v1, s26, v1")
    k.e("v_mov_b32 v2, 0")
    k.e("v_mov_b32 v3, 0")
    PB = None
    for b in range(9):
        for r in range(16):
            a = SB + b * 16 + r
            k.e("v_fma_f32 v%d, v%d, s26, -v1" % (a, a))
            k.e("v_exp_f32 v%d, v%d" % (a, a))
        k.e("s_nop 0")
        if not MIMIC:
            for j in range(8):
                a = SB + b * 16 + 2 * j
                k.e("v_add_f32 v2, v2, v%d" % a)
                k.e("v_add_f32 v3, v3, v%d" % (a + 1))
                k.e("v_cvt_pk_bf16_f32 v%d, v%d, v%d" % (SB + b * 16 + j, a, a + 1))
    if MIMIC:
        for r in range(NSR):
            k.e("v_add_f32 v2, v2, v%d" % (SB + r))
    k.e("v_add_f32 v2, v2, v3")
    k.e("v_mov_b32 v3, v2")
    k.e("s_nop 1")
    k.e("v_permlane32_swap_b32 v2, v3")
    k.e("v_add_f32 v2, v2, v3")
    k.e("v_rcp_f32 v2, v2")
    k.e("s_nop 0")
    if MIMIC:
        for b in range(9):
            for j in range(8):
                a = SB + b * 16 + 2 * j
                k.e("v_mul_f32 v%d, v%d, v2" % (a, a))
                k.e("v_mul_f32 v%d, v%d, v2" % (a + 1, a + 1))
                k.e("v_cvt_pk_bf16_f32 v%d, v%d, v%d" % (SB + b * 16 + j, a, a + 1))
    OA = 192
    stamp(k, 3)
    for j in range(4):
        k.e("ds_read_b64_tr_b16 v[%d:%d], v%d offset:%d" % (20 + 2 * j, 21 + 2 * j, 15 + j, V_LDS))
    for b in range(9):
        f = 20 + 8 * (b & 1); fn = 20 + 8 * ((b + 1) & 1)
        if b < 8:
            for j in range(4):
                k.e("ds_read_b64_tr_b16 v[%d:%d], v%d offset:%d" % (fn + 2 * j, fn + 2 * j + 1, 15 + j, V_LDS + (b + 1) * 2048))
            k.e("s_waitcnt lgkmcnt(4)")
        else:
            k.e("s_waitcnt lgkmcnt(0)")
        p = SB + b * 16
        if b == 0:
            k.e("v_mfma_f32_32x32x16_bf16 v[%d:%d], v[%d:%d], v[%d:%d], 0" % (OA, OA + 15, f, f + 3, p, p + 3))
        else:
            k.e("v_mfma_f32_32x32x16_bf16 v[%d:%d], v[%d:%d], v[%d:%d], v[%d:%d]" % (OA, OA + 15, f, f + 3, p, p + 3, OA, OA + 15))
        k.e("v_mfma_f32_32x32x16_bf16 v[%d:%d], v[%d:%d], v[%d:%d], v[%d:%d]" % (OA, OA + 15, f + 4, f + 7, p + 4, p + 7, OA, OA + 15))
    k.e("""
    s_lshl_b32 s23, s21, 7
    s_lshl_b32 s24, s22, 5
    s_add_u32 s23, s23, s24
    v_and_b32 v1, 31, v0
    v_add_u32 v1, s23, v1
    v_lshlrev_b32 v1, 11, v1
    v_lshrrev_b32 v3, 5, v0
    v_lshlrev_b32 v3, 3, v3
    s_lshl_b32 s24, s20, 6
    v_add3_u32 v1, v1, v3, s24
    s_nop 7
    """)
    if not MIMIC:
        for r in range(16):
            k.e("v_mul_f32 v%d, v%d, v2" % (OA + r, OA + r))
    for j in range(4):
        k.e("v_cvt_pk_bf16_f32 v%d, v%d, v%d" % (208 + 2 * j, OA + 4 * j, OA + 1 + 4 * j))
        k.e("v_cvt_pk_bf16_f32 v%d, v%d, v%d" % (209 + 2 * j, OA + 2 + 4 * j, OA + 3 + 4 * j))
        k.e("buffer_store_dwordx2 v[%d:%d], v1, s[8:11], 0 offen offset:%d" % (208 + 2 * j, 209 + 2 * j, 16 * j))
    stamp_store(k, 4, 4)
    k.e("s_endpgm")
    k.lab(lab("cs"))
    k.e("s_cmp_ge_u32 s2, %d" % NCS)
    k.e("s_cbranch_scc1 %s" % lab("pf"))
    k.e("s_mov_b32 s20, s2")
    k.e("s_cmp_lt_u32 s20, 56")
    k.e("s_cselect_b32 s4, s%d, s%d" % (PTR0 + 2 * KA_W1, PTR0 + 2 * KA_W3))
    k.e("s_cselect_b32 s5, s%d, s%d" % (PTR0 + 2 * KA_W1 + 1, PTR0 + 2 * KA_W3 + 1))
    k.e("s_cselect_b32 s21, 0, 56")
    k.e("s_and_b32 s5, s5, 0xffff")
    k.e("s_mov_b32 s6, %d" % (D * F * 2))
    k.e("s_mov_b32 s7, 0x00020000")
    k.e("s_sub_u32 s21, s20, s21")
    srd(k, 8, KA_WS, WS_CS, 2 * F * 4)
    k.e("""
    v_lshrrev_b32 v1, 3, v0
    v_and_b32 v2, 7, v0
    s_mov_b32 s22, %d
    v_mul_lo_u32 v1, v1, s22
    v_lshlrev_b32 v2, 4, v2
    s_lshl_b32 s22, s21, 7
    v_add3_u32 v1, v1, v2, s22
    """ % (F * 2))
    for r in range(8):
        k.e("v_mov_b32 v%d, 0" % (8 + r))
    for half in range(1):
        for i in range(32):
            k.e("v_add_u32 v2, %d, v1" % (i * 32 * F * 2))
            k.e("buffer_load_dwordx4 v[%d:%d], v2, s[4:7], 0 offen" % (16 + 4 * i, 19 + 4 * i))
        for i in range(32):
            k.e("s_waitcnt vmcnt(%d)" % (31 - i))
            for j in range(4):
                k.e("v_lshlrev_b32 v3, 16, v%d" % (16 + 4 * i + j))
                k.e("v_and_b32 v4, 0xffff0000, v%d" % (16 + 4 * i + j))
                k.e("v_add_f32 v%d, v%d, v3" % (8 + 2 * j, 8 + 2 * j))
                k.e("v_add_f32 v%d, v%d, v4" % (9 + 2 * j, 9 + 2 * j))
    k.e("v_lshlrev_b32 v2, 5, v0")
    k.e("ds_write_b128 v2, v[8:11]")
    k.e("ds_write_b128 v2, v[12:15] offset:16")
    k.e("s_waitcnt lgkmcnt(0)")
    k.e("s_barrier")
    k.e("v_cmp_gt_u32 vcc, 64, v0")
    k.e("s_and_saveexec_b64 s[24:25], vcc")
    k.e("s_cbranch_execz %s" % lab("end"))
    k.e("v_lshlrev_b32 v2, 2, v0")
    for i in range(32):
        k.e("ds_read_b32 v%d, v2 offset:%d" % (16 + i, i * 256))
    k.e("s_waitcnt lgkmcnt(0)")
    for i in range(1, 32):
        k.e("v_add_f32 v16, v16, v%d" % (16 + i))
    k.e("s_lshl_b32 s22, s20, 8")
    k.e("v_add_u32 v2, s22, v2")
    k.e("buffer_store_dword v16, v2, s[8:11], 0 offen")
    k.e("s_endpgm")
    k.lab(lab("pf"))
    k.e("s_sub_u32 s20, s2, %d" % NCS)
    k.e("s_cmp_lt_u32 s20, 0")
    k.e("s_cselect_b32 s4, s%d, s%d" % (PTR0 + 2 * KA_W2, PTR0 + 2 * KA_WO))
    k.e("s_cselect_b32 s5, s%d, s%d" % (PTR0 + 2 * KA_W2 + 1, PTR0 + 2 * KA_WO + 1))
    k.e("s_mov_b32 s23, %d" % (D * D * 2))
    k.e("s_cselect_b32 s6, %d, s23" % (F * D * 2))
    k.e("s_cselect_b32 s21, 0, 0")
    k.e("s_mov_b32 s22, 65536")
    k.e("s_and_b32 s5, s5, 0xffff")
    k.e("s_mov_b32 s7, 0x00020000")
    k.e("s_sub_u32 s21, s20, s21")
    k.e("s_mul_i32 s21, s21, s22")
    k.e("v_lshlrev_b32 v1, 4, v0")
    k.e("v_add_u32 v1, s21, v1")
    for i in range(16):
        k.e("buffer_load_dwordx4 v[%d:%d], v1, s[4:7], 0 offen" % (8 + 4 * i, 11 + 4 * i))
        k.e("v_add_u32 v1, 4096, v1")
    k.e("s_waitcnt vmcnt(0)")
    k.lab(lab("end"))
    k.e("s_endpgm")
    k.nvgpr = 216
    return k


def gen_g3(name, npf=32):
    BM = 256; RB = 4; CB = 8; NWC = 8; R = 5; STAGE = 32768; nk = 32
    ntm, ntn = 8, 28
    nwg = ntm * ntn
    subs = [(KA_W1, 0, F, 128, 128), (KA_W3, 0, F, 128, 128)]
    colblocks = [(0, 4, j) for j in range(4)] + [(1, 4, j) for j in range(4)]
    sub_lds = [16384, 24576]
    k = Kern(name, (nwg + npf, 1, 1), (512, 1, 1), R * STAGE, 0)
    lab = lambda s: "%s_%s" % (name, s)
    k.e("s_cmp_ge_u32 s2, %d" % (nwg + npf))
    k.e("s_cbranch_scc1 %s" % lab("end"))
    stamp(k, 0)
    load_ptrs(k)
    k.e("s_cmp_lt_u32 s2, %d" % nwg)
    k.e("s_cbranch_scc1 %s" % lab("main"))
    srd(k, 4, KA_W2, 0, F * D * 2)
    per = F * D * 2 // npf
    k.e("s_sub_u32 s20, s2, %d" % nwg)
    k.e("s_mul_i32 s20, s20, %d" % per)
    k.e("v_lshlrev_b32 v1, 4, v0")
    k.e("v_add_u32 v1, s20, v1")
    for i in range(per // 8192):
        k.e("buffer_load_dwordx4 v[%d:%d], v1, s[4:7], 0 offen" % (8 + 4 * i, 11 + 4 * i))
        k.e("v_add_u32 v1, 8192, v1")
    k.e("s_waitcnt vmcnt(0)")
    k.e("s_endpgm")
    k.lab(lab("main"))
    srd(k, 4, KA_WS, WS_H, S * D * 2)
    srd(k, 8, KA_W1, 0, D * F * 2)
    srd(k, 12, KA_W3, 0, D * F * 2)
    k.e("""
    s_and_b32 s25, s2, 7
    s_lshr_b32 s26, s2, 3
    s_and_b32 s20, s25, 1
    s_mul_i32 s20, s20, 4
    s_and_b32 s27, s26, 3
    s_add_u32 s20, s20, s27
    s_lshr_b32 s21, s25, 1
    s_mul_i32 s21, s21, 7
    s_lshr_b32 s27, s26, 2
    s_add_u32 s21, s21, s27
    v_lshrrev_b32 v1, 6, v0
    s_nop 0
    v_readfirstlane_b32 s19, v1
    s_and_b32 s23, s19, 3
    s_lshr_b32 s24, s19, 2
    v_and_b32 v0, 63, v0
    """)
    vAd, vBd = 2, 4
    vAb = 6
    vAr = 15
    vsum, vsq = 24, 28
    vfr = 36
    vacc = vfr + 88
    T0, T1, T2 = vfr, vfr + 1, vfr + 2
    acc = lambda rb, cb: vacc + (rb * CB + cb) * 4
    vend = vacc + RB * CB * 4
    k.nvgpr = vend
    fA = lambda rb: vfr + 4 * rb
    fB = lambda cb: vfr + 16 + 4 * cb
    def sw(dst, rg, t):
        k.e("v_lshlrev_b32 v%d, 1, v%d" % (dst, rg))
        k.e("v_and_b32 v%d, 3, v%d" % (dst, dst))
        k.e("v_lshrrev_b32 v%d, 1, v%d" % (t, rg))
        k.e("v_mul_u32_u24 v%d, 3, v%d" % (t, t))
        k.e("v_xor_b32 v%d, v%d, v%d" % (dst, dst, t))
    k.e("v_bfe_u32 v1, v0, 4, 2")
    sw(T0, 1, T1)
    k.e("v_and_b32 v%d, 3, v0" % T1)
    k.e("v_xor_b32 v%d, v%d, v%d" % (T0, T0, T1))
    k.e("v_lshlrev_b32 v%d, 4, v%d" % (T0, T0))
    k.e("v_lshrrev_b32 v1, 2, v0")
    k.e("s_lshl_b32 s25, s19, 5")
    k.e("s_lshl_b32 s26, s20, 8")
    k.e("s_add_u32 s25, s25, s26")
    k.e("v_add_u32 v1, s25, v1")
    k.e("v_lshlrev_b32 v1, 11, v1")
    k.e("v_add_u32 v%d, v1, v%d" % (vAd, T0))
    k.e("v_add_u32 v%d, %d, v%d" % (vAd + 1, 16 * 2048, vAd))
    k.e("v_lshrrev_b32 v1, 4, v0")
    k.e("s_lshl_b32 s25, s19, 2")
    k.e("v_add_u32 v1, s25, v1")
    k.e("v_and_b32 v%d, 3, v1" % T0)
    k.e("v_lshrrev_b32 v%d, 1, v1" % T1)
    k.e("v_and_b32 v%d, 4, v%d" % (T1, T1))
    k.e("v_or_b32 v%d, v%d, v%d" % (T0, T0, T1))
    k.e("v_lshlrev_b32 v%d, 1, v%d" % (T0, T0))
    k.e("v_and_b32 v%d, 15, v0" % T1)
    k.e("v_xor_b32 v%d, v%d, v%d" % (T0, T0, T1))
    k.e("v_lshlrev_b32 v%d, 4, v%d" % (T0, T0))
    k.e("s_mov_b32 s26, %d" % (F * 2))
    k.e("v_mul_lo_u32 v1, v1, s26")
    k.e("s_lshl_b32 s26, s21, 8")
    k.e("v_add3_u32 v%d, v1, v%d, s26" % (vBd, T0))
    k.e("v_mov_b32 v%d, v%d" % (vBd + 1, vBd))
    k.e("v_bfe_u32 v1, v0, 2, 2")
    sw(T0, 1, T1)
    k.e("v_lshrrev_b32 v%d, 4, v0" % T1)
    k.e("v_xor_b32 v%d, v%d, v%d" % (T0, T0, T1))
    k.e("v_lshlrev_b32 v%d, 4, v%d" % (T0, T0))
    k.e("v_and_b32 v1, 15, v0")
    k.e("v_lshlrev_b32 v1, 6, v1")
    k.e("s_lshl_b32 s25, s23, 12")
    k.e("v_add3_u32 v%d, v1, v%d, s25" % (vAb, T0))
    for cb, (si, pmul, padd) in enumerate(colblocks):
        k.e("""
        v_lshrrev_b32 v1, 4, v0
        v_lshlrev_b32 v1, 3, v1
        v_bfe_u32 v%d, v0, 2, 2
        v_add_u32 v1, v1, v%d
        v_bfe_u32 v%d, v0, 4, 1
        v_lshlrev_b32 v%d, 2, v%d
        v_or_b32 v%d, v%d, v%d
        """ % (T0, T0, T1, T1, T1, T1, T1, T0))
        k.e("s_mul_i32 s25, s24, %d" % pmul)
        k.e("s_add_u32 s25, s25, %d" % padd)
        k.e("v_xor_b32 v%d, s25, v%d" % (T1, T1))
        k.e("v_lshlrev_b32 v%d, 5, v%d" % (T1, T1))
        k.e("v_lshlrev_b32 v1, 8, v1")
        k.e("v_and_b32 v%d, 3, v0" % T2)
        k.e("v_lshlrev_b32 v%d, 3, v%d" % (T2, T2))
        k.e("v_add3_u32 v%d, v1, v%d, v%d" % (vAb + 1 + cb, T1, T2))
        k.e("v_add_u32 v%d, %d, v%d" % (vAb + 1 + cb, sub_lds[si], vAb + 1 + cb))
    for r in range(vacc, vend):
        k.e("v_mov_b32 v%d, 0" % r)
    k.e("""
    s_mov_b32 s30, 0
    s_mov_b32 s31, 0
    s_mov_b32 s34, 0
    s_lshl_b32 s35, s19, 11
    s_lshl_b32 s44, s19, 10
    s_add_u32 s45, s44, 24576
    s_add_u32 s44, s44, 16384
    s_mov_b32 s37, 0
    s_mov_b32 s38, 0
    """)

    def dma():
        k.e("""
        s_add_u32 s36, s34, s35
        s_mov_b32 m0, s36
        s_nop 0
        buffer_load_dwordx4 v%d, s[4:7], s30 offen lds
        s_add_u32 m0, s36, 1024
        s_nop 0
        buffer_load_dwordx4 v%d, s[4:7], s30 offen lds
        s_add_u32 m0, s34, s44
        s_nop 0
        buffer_load_dwordx4 v%d, s[8:11], s31 offen lds
        s_add_u32 m0, s34, s45
        s_nop 0
        buffer_load_dwordx4 v%d, s[12:15], s31 offen lds
        s_add_u32 s30, s30, 64
        s_add_u32 s31, s31, %d
        s_add_u32 s34, s34, %d
        s_cmp_eq_u32 s34, %d
        s_cselect_b32 s34, 0, s34
        """ % (vAd, vAd + 1, vBd, vBd + 1, 32 * F * 2, STAGE, R * STAGE))

    def loadphase():
        dma()
        for r in range(9):
            k.e("v_add_u32 v%d, s38, v%d" % (vAr + r, vAb + r))
        k.e("s_add_u32 s38, s38, %d\ns_cmp_eq_u32 s38, %d\ns_cselect_b32 s38, 0, s38" % (STAGE, R * STAGE))
        for rb in range(RB):
            k.e("ds_read_b128 v[%d:%d], v%d offset:%d" % (fA(rb), fA(rb) + 3, vAr, rb * 1024))
        for cb in range(CB):
            k.e("ds_read_b64_tr_b16 v[%d:%d], v%d" % (fB(cb), fB(cb) + 1, vAr + 1 + cb))
            k.e("ds_read_b64_tr_b16 v[%d:%d], v%d offset:1024" % (fB(cb) + 2, fB(cb) + 3, vAr + 1 + cb))
        k.e("s_waitcnt lgkmcnt(0)")

    def compphase():
        for rb in range(RB):
            for cb in range(CB):
                a = acc(rb, cb)
                k.e("v_mfma_f32_16x16x32_bf16 v[%d:%d], v[%d:%d], v[%d:%d], v[%d:%d]" % (
                    a, a + 3, fB(cb), fB(cb) + 3, fA(rb), fA(rb) + 3, a, a + 3))

    for _ in range(4):
        dma()
    stamp(k, 1)
    k.e("s_waitcnt vmcnt(12)")
    k.e("s_barrier")
    k.e("s_cmp_ge_u32 s19, 4")
    k.e("s_cbranch_scc1 %s" % lab("ypath"))
    loadphase()
    k.e("s_barrier")
    k.lab(lab("xloop"))
    compphase()
    k.e("s_waitcnt vmcnt(12)")
    k.e("s_barrier")
    loadphase()
    k.e("s_barrier")
    k.e("s_add_u32 s37, s37, 1")
    k.e("s_cmp_lt_u32 s37, %d" % nk)
    k.e("s_cbranch_scc1 %s" % lab("xloop"))
    k.e("s_branch %s" % lab("done"))
    k.lab(lab("ypath"))
    k.e("s_barrier")
    k.lab(lab("loop"))
    loadphase()
    k.e("s_waitcnt vmcnt(12)")
    k.e("s_barrier")
    compphase()
    k.e("s_barrier")
    k.e("s_add_u32 s37, s37, 1")
    k.e("s_cmp_lt_u32 s37, %d" % nk)
    k.e("s_cbranch_scc1 %s" % lab("loop"))
    k.lab(lab("done"))
    k.e("s_waitcnt vmcnt(0) lgkmcnt(0)")
    k.e("s_barrier")
    stamp(k, 3)
    k.e("s_nop 7")
    ctx = dict(RB=RB, CB=CB, acc=acc, colblocks=colblocks, subs=subs, BM=BM, vend=vend, vres=None, ln='ws',
               vsum=vsum, vsq=vsq, vcs=None, Kdim=1024, lab=lab, vfr=vfr)

    def ws_stats():
        srd(k, 48, KA_WS, WS_PART, S * 256)
        t = vfr + 36
        dbase = [vfr + 40, vfr + 56, vfr + 72, 4]
        k.e("s_mul_i32 s25, s20, %d" % BM)
        k.e("s_mul_i32 s26, s23, %d" % (RB * 16))
        k.e("s_add_u32 s25, s25, s26")
        k.e("v_and_b32 v%d, 15, v0" % t)
        k.e("v_add_u32 v%d, s25, v%d" % (t, t))
        k.e("v_lshlrev_b32 v%d, 4, v%d" % (t, t))
        k.e("v_lshrrev_b32 v%d, 4, v0" % (t + 1))
        k.e("v_lshlrev_b32 v%d, 17, v%d" % (t + 1, t + 1))
        k.e("v_add_u32 v%d, v%d, v%d" % (t, t, t + 1))
        for j in range(4):
            if j:
                k.e("v_add_u32 v%d, 32768, v%d" % (t, t))
            for rb in range(RB):
                d = dbase[rb] + 4 * j
                k.e("buffer_load_dwordx4 v[%d:%d], v%d, s[48:51], 0 offen offset:%d" % (d, d + 3, t, 256 * rb))
        k.e("s_waitcnt vmcnt(0)")
        for rb in range(RB):
            d = dbase[rb]
            k.e("v_add_f32 v%d, v%d, v%d" % (vsum + rb, d, d + 2))
            k.e("v_add_f32 v%d, v%d, v%d" % (vsq + rb, d + 1, d + 3))
            for j in range(2, 8):
                k.e("v_add_f32 v%d, v%d, v%d" % (vsum + rb, vsum + rb, d + 2 * j))
                k.e("v_add_f32 v%d, v%d, v%d" % (vsq + rb, vsq + rb, d + 2 * j + 1))
        ctx["vtmp"] = vfr + 40
        ln_finish(k, ctx)
    ctx["ws_stats"] = ws_stats
    epi_swiglu(k, ctx)
    stamp_store(k, 4, 2)
    k.lab(lab("end"))
    k.e("s_endpgm")
    return k


def build():
    ks = []
    ks.append(gen_gemm("g1_kernel", 128, 2, 2, 1024, KA_X, 0,
                       [(KA_WQKV, 0, 3072, 128, 192), (KA_WQKV, 256, 3072, 64, 192)],
                       [(0, 4, 0), (0, 4, 1), (0, 4, 2), (0, 4, 3), (1, 2, 0), (1, 2, 1)], 16,
                       epi_store_factory(3072, KA_WS, WS_QKV, S * 3072 * 2, groups=[[0, 1, 2, 3], [4, 5]]), (4, 8), NL=4, ln='mfma'))
    ks.append(gen_attn("attn_kernel"))
    ks.append(gen_gemm("g2_kernel", 128, 2, 2, 1024, KA_WS, WS_O, [(KA_WO, 0, 1024, 64, 64)],
                       [(0, 2, 0), (0, 2, 1)], 16,
                       epi_store_factory(1024, KA_WS, WS_H, S * D * 2, part=True), (4, 8), NL=4, res=(KA_X, 0)))
    if 'newg3' not in EXP:
        ks.append(gen_gemm("g3_kernel", 256, 4, 2, 1024, KA_WS, WS_H,
                           [(KA_W1, 0, F, 128, 128), (KA_W3, 0, F, 128, 128)],
                           [(0, 4, j) for j in range(4)] + [(1, 4, j) for j in range(4)], 28, epi_swiglu, (4, 7), ln='ws', pp=True, npf=32))
    else:
        ks.append(gen_g3("g3_kernel"))
    ks.append(gen_gemm("g4_kernel", 128, 2, 2, F, KA_WS, WS_ACT, [(KA_W2, 0, 1024, 64, 64)],
                       [(0, 2, 0), (0, 2, 1)], 16,
                       epi_store_factory(1024, KA_OUT, 0, S * D * 2), (4, 8), NL=4, res=(KA_WS, WS_H)))
    return ks


def main():
    ks = build()
    out = [HEADER.rstrip()]
    for k in ks:
        out.append("; @launch kernel=%s grid=(%d,%d,%d) block=(%d,%d,%d) lds=%d" % ((k.name,) + k.grid + k.block + (k.lds,)))
    out.append('.amdgcn_target "amdgcn-amd-amdhsa--gfx950"')
    out.append(".text")
    for k in ks:
        out.append(k.text())
    out.append('.section .rodata,"a"')
    for k in ks:
        out.append(".p2align 6")
        out.append(k.desc())
    open(sys.argv[1] if len(sys.argv) > 1 else "sequential_preLN__sliding_block__glu_gated_swiglu__prompt.s", "w").write("\n".join(out) + "\n")


if __name__ == "__main__":
    main()
```

```python
import sys, os
EXP = os.environ.get('EXP', '')
STFLAG = ' sc1'

S = 2048; D = 1024; F = 3584
MB = 1 << 20
WS_QKV = 4 * MB
WS_O = 16 * MB
WS_H = 20 * MB
WS_ACT = 28 * MB
WS_PART = 49 * MB
WS_CS = 48 * MB

KA_X, KA_WQKV, KA_WO, KA_BX, KA_W1, KA_W3, KA_W2, KA_OUT, KA_DBG, KA_WS = range(10)
PTR0 = 64

HEADER = """; Kernarg layout for this problem (80 bytes, ptrs only, base s[0:1]):
;   offset  72: d_ws      268435456 bytes workspace
"""


class Kern:
    def __init__(self, name, grid, block, lds, nvgpr, nsgpr=100):
        self.name = name; self.grid = grid; self.block = block; self.lds = lds
        self.nvgpr = nvgpr; self.nsgpr = nsgpr
        self.lines = []

    def e(self, s):
        for ln in s.strip().split("\n"):
            if ln.strip():
                self.lines.append("    " + ln.strip())

    def lab(self, l):
        self.lines.append(l + ":")

    def text(self):
        out = [".globl %s" % self.name, ".p2align 8", ".type %s,@function" % self.name, "%s:" % self.name]
        return "\n".join(out + self.lines)

    def desc(self):
        nv = self.nvgpr
        return """.amdhsa_kernel %s
  .amdhsa_next_free_vgpr %d
  .amdhsa_next_free_sgpr %d
  .amdhsa_accum_offset %d
  .amdhsa_group_segment_fixed_size 0
  .amdhsa_kernarg_size 80
  .amdhsa_user_sgpr_count 2
  .amdhsa_user_sgpr_kernarg_segment_ptr 1
  .amdhsa_system_sgpr_workgroup_id_x 1
.end_amdhsa_kernel""" % (self.name, nv, self.nsgpr, (nv + 3) // 4 * 4)


def load_ptrs(k):
    k.e("s_load_dwordx16 s[64:79], s[0:1], 0")
    k.e("s_load_dwordx4 s[80:83], s[0:1], 64")
    k.e("s_waitcnt lgkmcnt(0)")


def srd(k, sreg, slot, off, nbytes):
    p = PTR0 + 2 * slot
    if off:
        k.e("s_add_u32 s%d, s%d, %d" % (sreg, p, off))
        k.e("s_addc_u32 s%d, s%d, 0" % (sreg + 1, p + 1))
        k.e("s_and_b32 s%d, s%d, 0xffff" % (sreg + 1, sreg + 1))
    else:
        k.e("s_mov_b32 s%d, s%d" % (sreg, p))
        k.e("s_and_b32 s%d, s%d, 0xffff" % (sreg + 1, p + 1))
    k.e("s_mov_b32 s%d, %d" % (sreg + 2, nbytes))
    k.e("s_mov_b32 s%d, 0x00020000" % (sreg + 3))


def stamp(k, i):
    if 'stamp' in EXP:
        k.e("s_memrealtime s[%d:%d]" % (86 + 2 * i, 87 + 2 * i))


def stamp_store(k, n, kidx):
    if 'stamp' not in EXP:
        return
    k.e("s_waitcnt vmcnt(0) lgkmcnt(0)")
    k.e("s_memrealtime s[%d:%d]" % (86 + 2 * n, 87 + 2 * n))
    k.e("s_waitcnt lgkmcnt(0)")
    srd(k, 56, KA_WS, 64 * MB + kidx * 65536, 65536)
    k.e("s_lshl_b32 s60, s2, 6")
    k.e("v_mov_b32 v1, s60")
    for i in range(n + 1):
        k.e("v_mov_b32 v2, s%d" % (86 + 2 * i))
        k.e("buffer_store_dword v2, v1, s[56:59], 0 offen offset:%d" % (4 * i))


def f3(k):
    return (k & 3) | ((k >> 1) & 4)


def gen_gemm(name, BM, WM, WN, Kdim, a_slot, a_off, subs, colblocks, ntn, epi, grp, nstages=6, NL=0, ln=None, res=None, pp=False, npf=0):
    NWC = WM * WN
    NW = NL if NL else NWC
    RB = BM // WM // 16
    CB = len(colblocks)
    ntm = S // BM
    nwg = ntm * ntn
    nk = Kdim // 64
    sub_lds = []
    o = BM * 128
    for sb in subs:
        sub_lds.append(o); o += 64 * sb[3] * 2
    STAGE = o
    NS = min(nstages, 163840 // STAGE)
    assert NS >= 2 and STAGE <= 65536
    k = Kern(name, (nwg + npf, 1, 1), (64 * (NWC + NL), 1, 1), NS * STAGE, 0)
    lab = lambda s: "%s_%s" % (name, s)
    k.e("s_cmp_ge_u32 s2, %d" % (nwg + npf))
    k.e("s_cbranch_scc1 %s" % lab("end"))
    stamp(k, 0)
    load_ptrs(k)
    if npf:
        k.e("s_cmp_lt_u32 s2, %d" % nwg)
        k.e("s_cbranch_scc1 %s" % lab("main"))
        srd(k, 4, KA_W2, 0, F * D * 2)
        per = F * D * 2 // npf
        nthr = 64 * (NWC + NL)
        assert per % (nthr * 16) == 0
        k.e("s_sub_u32 s20, s2, %d" % nwg)
        k.e("s_mul_i32 s20, s20, %d" % per)
        k.e("v_lshlrev_b32 v1, 4, v0")
        k.e("v_add_u32 v1, s20, v1")
        for i in range(per // (nthr * 16)):
            k.e("buffer_load_dwordx4 v[%d:%d], v1, s[4:7], 0 offen" % (8 + 4 * i, 11 + 4 * i))
            k.e("v_add_u32 v1, %d, v1" % (nthr * 16))
        k.e("s_waitcnt vmcnt(0)")
        k.e("s_endpgm")
        k.lab(lab("main"))
    srd(k, 4, a_slot, a_off, S * Kdim * 2)
    for i, sb in enumerate(subs):
        srd(k, 8 + 4 * i, sb[0], sb[1], Kdim * sb[2] * 2 - sb[1])
    gm, gn = grp
    assert gm * gn * 8 == nwg
    k.e("s_and_b32 s25, s2, 7")
    k.e("s_lshr_b32 s26, s2, 3")
    ng = ntm // gm
    k.e("s_and_b32 s20, s25, %d" % (ng - 1))
    k.e("s_mul_i32 s20, s20, %d" % gm)
    k.e("s_and_b32 s27, s26, %d" % (gm - 1))
    k.e("s_add_u32 s20, s20, s27")
    k.e("s_lshr_b32 s21, s25, %d" % (ng.bit_length() - 1))
    k.e("s_mul_i32 s21, s21, %d" % gn)
    k.e("s_lshr_b32 s27, s26, %d" % (gm.bit_length() - 1))
    k.e("s_add_u32 s21, s21, s27")
    k.e("v_lshrrev_b32 v1, 6, v0")
    k.e("s_nop 0")
    k.e("v_readfirstlane_b32 s19, v1")
    k.e("s_and_b32 s23, s19, %d" % (WM - 1))
    k.e("s_lshr_b32 s24, s19, %d" % (WM.bit_length() - 1))
    k.e("s_and_b32 s24, s24, %d" % (WN - 1))
    if NL:
        k.e("s_sub_u32 s22, s19, %d" % NWC)
        k.e("s_and_b32 s22, s22, %d" % (NL - 1))
    else:
        k.e("s_mov_b32 s22, s19")
    k.e("v_and_b32 v0, 63, v0")
    nA_w = BM // 8 // NW
    vA_dma = 2
    _nb = sum(64 * sb[3] * 2 // 1024 // NW for sb in subs)
    XORST = (NS == 2 and STAGE == 65536)
    _vx = vA_dma + nA_w + _nb + (1 if XORST else 2) * (2 + CB)
    if ln == 'mfma':
        _vx = (_vx + 2 * RB + 3) // 4 * 4 + 4 + 4 * CB
    elif ln:
        _vx = _vx + 2 * RB + 1
    if res:
        _vx = (_vx + 1) // 2 * 2 + 2 * RB * CB
    _vfr = (_vx + 3) // 4 * 4
    T0, T1, T2 = _vfr, _vfr + 1, _vfr + 2
    k.e("""
    v_lshrrev_b32 v1, 3, v0
    v_and_b32 v%d, 7, v0
    v_xor_b32 v%d, v%d, v1
    v_lshlrev_b32 v%d, 4, v%d
    """ % (T0, T0, T0, T0, T0))
    k.e("s_mul_i32 s25, s22, %d" % (nA_w * 8))
    k.e("s_mul_i32 s26, s20, %d" % BM)
    k.e("s_add_u32 s25, s25, s26")
    k.e("v_add_u32 v1, s25, v1")
    k.e("s_mov_b32 s26, %d" % (Kdim * 2))
    k.e("v_mul_lo_u32 v1, v1, s26")
    k.e("v_add_u32 v%d, v1, v%d" % (vA_dma, T0))
    for t in range(1, nA_w):
        k.e("v_add_u32 v%d, %d, v%d" % (vA_dma + t, t * 8 * Kdim * 2, vA_dma))
    bdma = []
    vb = vA_dma + nA_w
    for si, (slot, off, ldb, width, tnmul) in enumerate(subs):
        pitch = width * 2
        nB = 64 * pitch // 1024
        assert nB % NW == 0
        nB_w = nB // NW
        rows_per = 1024 // pitch
        cpr = pitch // 16
        for t in range(nB_w):
            k.e("s_mul_i32 s25, s22, %d" % (nB_w * rows_per))
            k.e("s_add_u32 s25, s25, %d" % (t * rows_per))
            k.e("v_lshrrev_b32 v1, %d, v0" % (cpr.bit_length() - 1))
            k.e("v_add_u32 v1, s25, v1")
            if pitch >= 256:
                k.e("v_and_b32 v%d, 3, v1" % T0)
                k.e("v_lshrrev_b32 v%d, 1, v1" % T1)
                k.e("v_and_b32 v%d, 4, v%d" % (T1, T1))
            else:
                k.e("v_bfe_u32 v%d, v1, 1, 1" % T0)
                k.e("v_lshrrev_b32 v%d, 2, v1" % T1)
                k.e("v_and_b32 v%d, 2, v%d" % (T1, T1))
            k.e("v_or_b32 v%d, v%d, v%d" % (T0, T0, T1))
            k.e("v_lshlrev_b32 v%d, 1, v%d" % (T0, T0))
            k.e("v_and_b32 v%d, %d, v0" % (T1, cpr - 1))
            k.e("v_xor_b32 v%d, v%d, v%d" % (T0, T0, T1))
            k.e("v_lshlrev_b32 v%d, 4, v%d" % (T0, T0))
            k.e("s_mov_b32 s26, %d" % (ldb * 2))
            k.e("v_mul_lo_u32 v1, v1, s26")
            k.e("v_add_u32 v1, v1, v%d" % T0)
            k.e("s_mul_i32 s26, s21, %d" % (tnmul * 2))
            k.e("v_add_u32 v%d, s26, v1" % vb)
            bdma.append((si, t, vb, nB_w))
            vb += 1
    NAD = 2 + CB
    vAb = vb
    vAr = vAb if XORST else vAb + NAD
    k.e("""
    v_and_b32 v1, 15, v0
    v_lshlrev_b32 v1, 7, v1
    v_lshrrev_b32 v%d, 4, v0
    v_and_b32 v%d, 7, v0
    """ % (T0, T1))
    k.e("s_mul_i32 s25, s23, %d" % (RB * 16 * 128))
    k.e("v_add_u32 v1, s25, v1")
    k.e("v_xor_b32 v%d, v%d, v%d" % (T2, T0, T1))
    k.e("v_lshlrev_b32 v%d, 4, v%d" % (T2, T2))
    k.e("v_add_u32 v%d, v1, v%d" % (vAb, T2))
    k.e("v_or_b32 v%d, 4, v%d" % (T0, T0))
    k.e("v_xor_b32 v%d, v%d, v%d" % (T2, T0, T1))
    k.e("v_lshlrev_b32 v%d, 4, v%d" % (T2, T2))
    k.e("v_add_u32 v%d, v1, v%d" % (vAb + 1, T2))
    for cb, (si, pmul, padd) in enumerate(colblocks):
        pitch = subs[si][3] * 2
        k.e("""
        v_lshrrev_b32 v1, 4, v0
        v_lshlrev_b32 v1, 3, v1
        v_bfe_u32 v%d, v0, 2, 2
        v_add_u32 v1, v1, v%d
        """ % (T0, T0))
        if pitch >= 256:
            k.e("v_bfe_u32 v%d, v0, 4, 1" % T1)
            k.e("v_lshlrev_b32 v%d, 2, v%d" % (T1, T1))
            k.e("v_or_b32 v%d, v%d, v%d" % (T1, T1, T0))
        else:
            k.e("v_bfe_u32 v%d, v0, 3, 1" % T1)
            k.e("v_bfe_u32 v%d, v0, 4, 1" % T2)
            k.e("v_lshlrev_b32 v%d, 1, v%d" % (T2, T2))
            k.e("v_or_b32 v%d, v%d, v%d" % (T1, T1, T2))
        k.e("s_mul_i32 s25, s24, %d" % pmul)
        k.e("s_add_u32 s25, s25, %d" % padd)
        k.e("v_xor_b32 v%d, s25, v%d" % (T1, T1))
        k.e("v_lshlrev_b32 v%d, 5, v%d" % (T1, T1))
        k.e("s_mov_b32 s26, %d" % pitch)
        k.e("v_mul_lo_u32 v1, v1, s26")
        k.e("v_and_b32 v%d, 3, v0" % T2)
        k.e("v_lshlrev_b32 v%d, 3, v%d" % (T2, T2))
        k.e("v_add3_u32 v%d, v1, v%d, v%d" % (vAb + 2 + cb, T1, T2))
    vBr = vAr + 2
    vx = vAr + NAD
    vsum = vsq = vones = vcs = vres = None
    if ln:
        vsum = vx; vsq = vx + RB; vx += 2 * RB
        if ln == 'mfma':
            vx = (vx + 3) // 4 * 4
            vones = vx; vx += 4
            vcs = vx; vx += 4 * CB
        else:
            vones = vx; vx += 1
    if res:
        vx = (vx + 1) // 2 * 2
        vres = vx; vx += 2 * RB * CB
    vfr = (vx + 3) // 4 * 4
    fA = lambda s, rb: vfr + (s * RB + rb) * 4
    fB = lambda s, cb: vfr + 2 * RB * 4 + (s * CB + cb) * 4
    vacc = vfr + 2 * RB * 4 + 2 * CB * 4
    assert vfr == _vfr
    acc = lambda rb, cb: vacc + (rb * CB + cb) * 4
    vend = vacc + RB * CB * 4
    k.nvgpr = vend
    assert vend <= 256
    ctx = dict(ws_stats=lambda: ws_stats(), RB=RB, CB=CB, acc=acc, colblocks=colblocks, subs=subs, BM=BM, vend=vend, vres=vres, ln=ln,
               vsum=vsum, vsq=vsq, vcs=vcs, Kdim=Kdim, lab=lab, vfr=vfr)
    def ws_stats():
        srd(k, 48, KA_WS, WS_PART, S * 256)
        t = vfr + 36
        dbase = [vfr + 40, vfr + 56, vfr + 72, 4]
        assert RB == 4 and vsum >= 20
        k.e("s_mul_i32 s25, s20, %d" % BM)
        k.e("s_mul_i32 s26, s23, %d" % (RB * 16))
        k.e("s_add_u32 s25, s25, s26")
        k.e("v_and_b32 v%d, 15, v0" % t)
        k.e("v_add_u32 v%d, s25, v%d" % (t, t))
        k.e("v_lshlrev_b32 v%d, 4, v%d" % (t, t))
        k.e("v_lshrrev_b32 v%d, 4, v0" % (t + 1))
        k.e("v_lshlrev_b32 v%d, 17, v%d" % (t + 1, t + 1))
        k.e("v_add_u32 v%d, v%d, v%d" % (t, t, t + 1))
        for j in range(4):
            if j:
                k.e("v_add_u32 v%d, 32768, v%d" % (t, t))
            for rb in range(RB):
                d = dbase[rb] + 4 * j
                k.e("buffer_load_dwordx4 v[%d:%d], v%d, s[48:51], 0 offen offset:%d" % (d, d + 3, t, 256 * rb))
        k.e("s_waitcnt vmcnt(0)")
        for rb in range(RB):
            d = dbase[rb]
            k.e("v_add_f32 v%d, v%d, v%d" % (vsum + rb, d, d + 2))
            k.e("v_add_f32 v%d, v%d, v%d" % (vsq + rb, d + 1, d + 3))
            for j in range(2, 8):
                k.e("v_add_f32 v%d, v%d, v%d" % (vsum + rb, vsum + rb, d + 2 * j))
                k.e("v_add_f32 v%d, v%d, v%d" % (vsq + rb, vsq + rb, d + 2 * j + 1))
        ctx["vtmp"] = vfr + 40
        ln_finish(k, ctx)

    def zero_acc():
        for r in range(vacc, vend):
            k.e("v_mov_b32 v%d, 0" % r)
    if ln != 'ws':
        zero_acc()
    if ln:
        for r in range(2 * RB if ln == 'mfma' else 0):
            k.e("v_mov_b32 v%d, 0" % (vsum + r))
        for r in range(4 if vcs else 1):
            k.e("v_mov_b32 v%d, 0x3f803f80" % (vones + r))
        if vcs:
            for r in range(4 * CB):
                k.e("v_mov_b32 v%d, 0" % (vcs + r))
    k.e("s_mov_b32 s30, 0")
    for i in range(len(subs)):
        k.e("s_mov_b32 s%d, 0" % (31 + i))
    k.e("s_mov_b32 s34, 0")
    k.e("s_mul_i32 s35, s22, %d" % (nA_w * 1024))
    for (si, t, vreg, nB_w) in bdma:
        if t == 0:
            k.e("s_mul_i32 s%d, s22, %d" % (44 + si, nB_w * 1024))
            k.e("s_add_u32 s%d, s%d, %d" % (44 + si, 44 + si, sub_lds[si]))
    nd = nA_w + len(bdma)

    def dma_items():
        it = []
        for t in range(nA_w):
            if t:
                pre = "s_add_u32 m0, s36, %d\ns_nop 0\n" % (t * 1024)
            else:
                pre = "s_add_u32 s36, s34, s35\ns_mov_b32 m0, s36\ns_nop 0\n"
            it.append(pre + "buffer_load_dwordx4 v%d, s[4:7], s30 offen lds" % (vA_dma + t))
        for (si, t, vreg, nB_w) in bdma:
            if t == 0:
                pre = "s_add_u32 s36, s34, s%d\ns_mov_b32 m0, s36\ns_nop 0\n" % (44 + si)
            else:
                pre = "s_add_u32 m0, s36, %d\ns_nop 0\n" % (t * 1024)
            it.append(pre + "buffer_load_dwordx4 v%d, s[%d:%d], s%d offen lds" % (vreg, 8 + 4 * si, 11 + 4 * si, 31 + si))
        tail = "s_add_u32 s30, s30, 128\n"
        for i, sb in enumerate(subs):
            tail += "s_add_u32 s%d, s%d, %d\n" % (31 + i, 31 + i, 64 * sb[2] * 2)
        tail += "s_add_u32 s34, s34, %d\ns_cmp_eq_u32 s34, %d\ns_cselect_b32 s34, 0, s34" % (STAGE, NS * STAGE)
        it[-1] += "\n" + tail
        return it

    def dma():
        for x in dma_items():
            k.e(x)

    def setaddr_items():
        if XORST:
            return ["v_xor_b32 v%d, %d, v%d" % (vAr + r, STAGE, vAr + r) for r in range(NAD)]
        it = ["v_add_u32 v%d, s38, v%d" % (vAr + r, vAb + r) for r in range(NAD)]
        it[-1] += "\ns_add_u32 s38, s38, %d\ns_cmp_eq_u32 s38, %d\ns_cselect_b32 s38, 0, s38" % (STAGE, NS * STAGE)
        return it

    def read_items(st, kk):
        it = []
        for rb in range(RB):
            it.append("ds_read_b128 v[%d:%d], v%d offset:%d" % (fA(st, rb), fA(st, rb) + 3, vAr + kk, rb * 2048))
        for cb, (si, pmul, padd) in enumerate(colblocks):
            pitch = subs[si][3] * 2
            base = sub_lds[si] + kk * 32 * pitch
            it.append("ds_read_b64_tr_b16 v[%d:%d], v%d offset:%d" % (fB(st, cb), fB(st, cb) + 1, vBr + cb, base))
            it.append("ds_read_b64_tr_b16 v[%d:%d], v%d offset:%d" % (fB(st, cb) + 2, fB(st, cb) + 3, vBr + cb, base + 4 * pitch))
        return it

    def stat_items(st):
        return []

    def mfmas(st, fill=(), late=()):
        fill = list(fill); late = list(late)
        ms = []
        for rb in range(RB):
            for cb in range(CB):
                a = acc(rb, cb)
                ms.append("v_mfma_f32_16x16x32_bf16 v[%d:%d], v[%d:%d], v[%d:%d], v[%d:%d]" % (
                    a, a + 3, fB(st, cb), fB(st, cb) + 3, fA(st, rb), fA(st, rb) + 3, a, a + 3))
        if vcs and 'nocs' not in EXP:
            for cb in range(CB):
                c = vcs + 4 * cb
                ms.append("v_mfma_f32_16x16x32_bf16 v[%d:%d], v[%d:%d], v[%d:%d], v[%d:%d]" % (
                    c, c + 3, fB(st, cb), fB(st, cb) + 3, vones, vones + 3, c, c + 3))
        n = len(ms)
        per = -(-len(fill) // n) if fill else 0
        perl = -(-len(late) // n) if late else 0
        for m in ms:
            k.e(m)
            for _ in range(per):
                if fill:
                    k.e(fill.pop(0))
            for _ in range(perl):
                if late:
                    k.e(late.pop(0))
        assert not fill and not late

    k.e("s_mov_b32 s37, 0")
    if NL:
        assert NS >= 3
        k.e("s_cmp_lt_u32 s19, %d" % NWC)
        k.e("s_cbranch_scc1 %s" % lab("comp"))
        if 'lprio' in EXP:
            k.e("s_setprio 2")
        for s_ in range(NS - 1):
            dma()
        LS = (ln == 'mfma')
        if LS:
            assert BM == 128 and NL == 4
            t = vfr
            k.e("v_lshrrev_b32 v%d, 1, v0" % (t + 22))
            k.e("s_lshl_b32 s25, s22, 5")
            k.e("v_add_u32 v%d, s25, v%d" % (t + 23, t + 22))
            k.e("v_lshlrev_b32 v%d, 7, v%d" % (t + 23, t + 23))
            k.e("v_and_b32 v%d, 1, v0" % (t + 24))
            k.e("v_lshlrev_b32 v%d, 6, v%d" % (t + 24, t + 24))
            k.e("v_add_u32 v%d, v%d, v%d" % (t + 23, t + 23, t + 24))
            k.e("v_lshrrev_b32 v%d, 1, v%d" % (t + 22, t + 22))
            for j in range(4):
                k.e("v_add_u32 v%d, %d, v%d" % (t + 24, j, t + 22))
                k.e("v_and_b32 v%d, 3, v%d" % (t + 24, t + 24))
                k.e("v_lshlrev_b32 v%d, 4, v%d" % (t + 24, t + 24))
                k.e("v_add_u32 v%d, v%d, v%d" % (t + 26 + j, t + 23, t + 24))
            k.e("v_mov_b32 v%d, 0" % (t + 20))
            k.e("v_mov_b32 v%d, 0" % (t + 21))
            k.e("s_mov_b32 s39, 0")

            def lstats():
                if 'nolstats' in EXP:
                    return
                for j in range(4):
                    k.e("v_add_u32 v%d, s39, v%d" % (t + j, t + 26 + j))
                for j in range(4):
                    k.e("ds_read_b128 v[%d:%d], v%d" % (t + 4 + 4 * j, t + 7 + 4 * j, t + j))
                k.e("s_add_u32 s39, s39, %d\ns_cmp_eq_u32 s39, %d\ns_cselect_b32 s39, 0, s39" % (STAGE, NS * STAGE))
                for j in range(16):
                    if j % 4 == 0:
                        k.e("s_waitcnt lgkmcnt(%d)" % (3 - j // 4))
                    d = t + 4 + j
                    k.e("v_dot2c_f32_bf16 v%d, v%d, v%d" % (t + 20, d, vones))
                    k.e("v_dot2c_f32_bf16 v%d, v%d, v%d" % (t + 21, d, d))
        k.e("s_waitcnt vmcnt(%d)" % ((NS - 2) * nd))
        k.e("s_barrier")
        if LS:
            lstats()
        k.lab(lab("lloop"))
        k.e("s_waitcnt vmcnt(%d)" % ((NS - 3) * nd))
        k.e("s_barrier")
        dma()
        k.e("s_add_u32 s37, s37, 1")
        k.e("s_cmp_lt_u32 s37, %d" % nk)
        if LS:
            k.e("s_cbranch_scc0 %s" % lab("ldone"))
            lstats()
            k.e("s_branch %s" % lab("lloop"))
            k.lab(lab("ldone"))
            k.e("s_waitcnt vmcnt(0)")
            for v in (t + 20, t + 21):
                k.e("ds_swizzle_b32 v%d, v%d offset:0x041F" % (t + 22, v))
                k.e("s_waitcnt lgkmcnt(0)")
                k.e("v_add_f32 v%d, v%d, v%d" % (v, v, t + 22))
            k.e("s_barrier")
            k.e("v_lshrrev_b32 v%d, 1, v0" % (t + 22))
            k.e("s_lshl_b32 s25, s22, 5")
            k.e("v_add_u32 v%d, s25, v%d" % (t + 22, t + 22))
            k.e("v_lshlrev_b32 v%d, 3, v%d" % (t + 22, t + 22))
            k.e("ds_write_b64 v%d, v[%d:%d]" % (t + 22, t + 20, t + 21))
            k.e("s_waitcnt lgkmcnt(0)")
            k.e("s_barrier")
        else:
            k.e("s_cbranch_scc1 %s" % lab("lloop"))
            k.e("s_waitcnt vmcnt(0)")
        k.e("s_endpgm")
        k.lab(lab("comp"))
        if 'prio' in EXP:
            k.e("s_setprio 2")
        if res:
            res_prefetch(k, ctx, res)
        stamp(k, 1)
        k.e("s_mov_b32 s38, 0")
        for x in setaddr_items():
            k.e(x)
        k.e("s_barrier")
        stamp(k, 2)
        for x in read_items(0, 0):
            k.e(x)
        k.lab(lab("loop"))
        k.e("s_waitcnt lgkmcnt(0)")
        mfmas(0, read_items(1, 1), stat_items(0))
        k.e("s_barrier")
        k.e("s_waitcnt lgkmcnt(0)")
        mfmas(1, setaddr_items() + read_items(0, 0), stat_items(1))
    elif pp:
        assert XORST and NWC == 8
        dma()
        zero_acc()
        stamp(k, 1)
        k.e("s_waitcnt vmcnt(0)")
        k.e("s_barrier")
        k.e("s_cmp_ge_u32 s19, 4")
        k.e("s_cbranch_scc1 %s" % lab("ypath"))

        NSPLIT = int(os.environ.get('NSPLIT', '8'))

        def loadphase(dm, rf=False):
            if not rf:
                for x in dm:
                    k.e(x)
            for x in read_items(0, 0) + read_items(1, 1):
                k.e(x)
            if rf:
                for x in dm:
                    k.e(x)
            for x in setaddr_items():
                k.e(x)
            k.e("s_waitcnt lgkmcnt(0)")
        RFX = 'rfx' in EXP; RFY = 'rfy' in EXP

        def compphase(dm):
            mfmas(0, dm)
            mfmas(1)
        di = dma_items()
        ny = len(di) - NSPLIT
        loadphase(di[:NSPLIT], RFX)
        k.e("s_barrier")
        k.lab(lab("xloop"))
        compphase(di[NSPLIT:])
        k.e("s_waitcnt vmcnt(0)")
        k.e("s_barrier")
        loadphase(di[:NSPLIT], RFX)
        k.e("s_barrier")
        k.e("s_add_u32 s37, s37, 1")
        k.e("s_cmp_lt_u32 s37, %d" % nk)
        k.e("s_cbranch_scc1 %s" % lab("xloop"))
        k.e("s_branch %s" % lab("done"))
        k.lab(lab("ypath"))
        for x in di[:ny]:
            k.e(x)
        k.e("s_barrier")
        k.lab(lab("loop"))
        loadphase(di[ny:], RFY)
        k.e("s_waitcnt vmcnt(0)")
        k.e("s_barrier")
        compphase(di[:ny])
        k.e("s_barrier")
    else:
        dma()
        if ln == 'ws':
            ws_stats()
            zero_acc()
        stamp(k, 1)
        k.e("s_mov_b32 s38, 0")
        if not XORST:
            for x in setaddr_items():
                k.e(x)
        k.lab(lab("loop"))
        k.e("s_waitcnt vmcnt(0)")
        k.e("s_barrier")
        for x in read_items(0, 0):
            k.e(x)
        k.e("s_waitcnt lgkmcnt(0)")
        mfmas(0, read_items(1, 1) + dma_items(), stat_items(0))
        k.e("s_waitcnt lgkmcnt(0)")
        mfmas(1, setaddr_items(), stat_items(1))
    k.e("s_add_u32 s37, s37, 1")
    k.e("s_cmp_lt_u32 s37, %d" % nk)
    k.e("s_cbranch_scc1 %s" % lab("loop"))
    k.lab(lab("done"))
    k.e("s_waitcnt vmcnt(0) lgkmcnt(0)")
    if not NL:
        k.e("s_barrier")
    stamp(k, 3)
    k.e("s_nop 7")
    if ln == 'mfma':
        k.e("s_barrier")
        k.e("s_barrier")
        k.e("v_and_b32 v2, 15, v0")
        k.e("s_mul_i32 s25, s23, %d" % (RB * 16))
        k.e("v_add_u32 v2, s25, v2")
        k.e("v_lshlrev_b32 v2, 3, v2")
        for rb in range(RB):
            k.e("ds_read_b32 v%d, v2 offset:%d" % (vsum + rb, rb * 128))
            k.e("ds_read_b32 v%d, v2 offset:%d" % (vsq + rb, rb * 128 + 4))
        k.e("s_waitcnt lgkmcnt(0)")
        ln_finish(k, ctx, reduce=False)
    epi(k, ctx)
    stamp_store(k, 4, {'g1': 0, 'g2': 1, 'g3': 2, 'g4': 3}[name[:2]])
    k.lab(lab("end"))
    k.e("s_endpgm")
    return k


def row_base(k, c, ldc, va=1, vb=2):
    k.e("s_mul_i32 s25, s20, %d" % c["BM"])
    k.e("s_mul_i32 s26, s23, %d" % (c["RB"] * 16))
    k.e("s_add_u32 s25, s25, s26")
    k.e("v_and_b32 v%d, 15, v0" % va)
    k.e("v_add_u32 v%d, s25, v%d" % (va, va))
    k.e("s_mov_b32 s26, %d" % (ldc * 2))
    k.e("v_mul_lo_u32 v%d, v%d, s26" % (va, va))
    k.e("v_lshrrev_b32 v%d, 4, v0" % vb)
    k.e("v_lshlrev_b32 v%d, 3, v%d" % (vb, vb))
    k.e("v_add_u32 v%d, v%d, v%d" % (va, va, vb))


def col_off(k, c, cb, sreg, cmul):
    si, pmul, padd = c["colblocks"][cb]
    sb = sum(s[3] for s in c["subs"][:si])
    k.e("s_mul_i32 s%d, s21, %d" % (sreg, cmul * 2))
    k.e("s_mul_i32 s26, s24, %d" % (pmul * 32))
    k.e("s_add_u32 s%d, s%d, s26" % (sreg, sreg))
    k.e("s_add_u32 s%d, s%d, %d" % (sreg, sreg, (sb + padd * 16) * 2))


def res_prefetch(k, c, res):
    RB, CB = c["RB"], c["CB"]
    srd(k, 48, res[0], res[1], S * D * 2)
    t = c["vfr"]
    row_base(k, c, D, t, t + 1)
    tot = sum(s[3] for s in c["subs"])
    for cb in range(CB):
        col_off(k, c, cb, 25, tot)
        for rb in range(RB):
            k.e("v_add_u32 v%d, s25, v%d" % (t + 2, t))
            if rb:
                k.e("v_add_u32 v%d, %d, v%d" % (t + 2, rb * 16 * D * 2, t + 2))
            r = c["vres"] + 2 * (rb * CB + cb)
            k.e("buffer_load_dwordx2 v[%d:%d], v%d, s[48:51], 0 offen" % (r, r + 1, t + 2))


def ln_finish(k, c, reduce=True):
    RB = c["RB"]
    invK = {1024: "0x3a800000"}[c["Kdim"]]
    T = c.get("vtmp", 2)
    vs = [c["vsum"] + rb for rb in range(RB)] + [c["vsq"] + rb for rb in range(RB)]
    if reduce:
        for j, v in enumerate(vs):
            k.e("ds_swizzle_b32 v%d, v%d offset:0x401F" % (T + j, v))
        k.e("s_waitcnt lgkmcnt(0)")
        for j, v in enumerate(vs):
            k.e("v_add_f32 v%d, v%d, v%d" % (v, v, T + j))
        for j, v in enumerate(vs):
            k.e("v_mov_b32 v%d, v%d" % (T + j, v))
        k.e("s_nop 1")
        for j, v in enumerate(vs):
            k.e("v_permlane32_swap_b32 v%d, v%d" % (v, T + j))
        k.e("s_nop 1")
        for j, v in enumerate(vs):
            k.e("v_add_f32 v%d, v%d, v%d" % (v, v, T + j))
    R = range(RB)
    m = lambda rb: c["vsum"] + rb
    q = lambda rb: c["vsq"] + rb
    for rb in R:
        k.e("v_mul_f32 v%d, %s, v%d" % (m(rb), invK, m(rb)))
        k.e("v_mul_f32 v%d, %s, v%d" % (q(rb), invK, q(rb)))
    for rb in R:
        k.e("v_fma_f32 v%d, -v%d, v%d, v%d" % (q(rb), m(rb), m(rb), q(rb)))
    for rb in R:
        k.e("v_cvt_pk_bf16_f32 v%d, v%d, v%d" % (T + rb, m(rb), q(rb)))
    for rb in R:
        k.e("v_lshlrev_b32 v%d, 16, v%d" % (m(rb), T + rb))
        k.e("v_and_b32 v%d, 0xffff0000, v%d" % (q(rb), T + rb))
    for rb in R:
        k.e("v_add_f32 v%d, 0x3727c5ac, v%d" % (q(rb), q(rb)))
    for rb in R:
        k.e("v_cvt_pk_bf16_f32 v%d, v%d, v%d" % (T + rb, q(rb), q(rb)))
    for rb in R:
        k.e("v_lshlrev_b32 v%d, 16, v%d" % (q(rb), T + rb))
    for rb in R:
        k.e("v_sqrt_f32 v%d, v%d" % (q(rb), q(rb)))
    k.e("s_nop 0")
    for rb in R:
        k.e("v_cvt_pk_bf16_f32 v%d, v%d, v%d" % (T + rb, q(rb), q(rb)))
    for rb in R:
        k.e("v_lshlrev_b32 v%d, 16, v%d" % (q(rb), T + rb))
    for rb in R:
        k.e("v_rcp_f32 v%d, v%d" % (q(rb), q(rb)))
    k.e("s_nop 0")


def ln_apply(k, c, a, rb, cs):
    m = c["vsum"] + rb; q = c["vsq"] + rb
    for r in range(4):
        k.e("v_fma_f32 v%d, -v%d, v%d, v%d" % (a + r, m, cs + r, a + r))
    for r in range(4):
        k.e("v_mul_f32 v%d, v%d, v%d" % (a + r, a + r, q))


class LdsStore:
    def __init__(self, k, c, groups, ldc, srd_reg, NWC, vbase):
        self.k = k; self.c = c; self.groups = groups; self.ldc = ldc; self.srd = srd_reg
        self.off = []; o = 0
        for g in groups:
            self.off.append(o); o += 64 * len(g) * 32
        self.wbytes = o
        self.aw = {}
        v = vbase
        k.e("s_mul_i32 s27, s19, %d" % self.wbytes)
        for gi, g in enumerate(groups):
            CH = 2 * len(g); pitch = CH * 16
            for j, cb in enumerate(g):
                k.e("v_and_b32 v%d, 15, v0" % v)
                k.e("v_and_b32 v%d, %d, v0" % (v + 1, CH - 1))
                k.e("v_bfe_u32 v%d, v0, 5, 1" % (v + 2))
                k.e("v_or_b32 v%d, %d, v%d" % (v + 2, 2 * j, v + 2))
                k.e("v_xor_b32 v%d, v%d, v%d" % (v + 1, v + 1, v + 2))
                k.e("v_lshlrev_b32 v%d, 4, v%d" % (v + 1, v + 1))
                k.e("v_mul_u32_u24 v%d, %d, v%d" % (v, pitch, v))
                k.e("v_bfe_u32 v%d, v0, 4, 1" % (v + 2))
                k.e("v_lshlrev_b32 v%d, 3, v%d" % (v + 2, v + 2))
                k.e("v_add3_u32 v%d, v%d, v%d, v%d" % (v, v, v + 1, v + 2))
                k.e("v_add_u32 v%d, s27, v%d" % (v, v))
                self.aw[cb] = (v, gi, pitch); v += 1
        self.vfree = v + 2

    def put(self, rb, cb, a):
        v, gi, pitch = self.aw[cb]
        self.k.e("ds_write_b64 v%d, v[%d:%d] offset:%d" % (v, a, a + 1, self.off[gi] + rb * 16 * pitch))

    def flush(self, colbase_fn, vd):
        k = self.k; c = self.c
        k.e("s_waitcnt lgkmcnt(0)")
        v = self.vfree
        for gi, g in enumerate(self.groups):
            CH = 2 * len(g); pitch = CH * 16; rp = 64 // CH
            lg = CH.bit_length() - 1
            k.e("v_lshrrev_b32 v%d, %d, v0" % (v, lg))
            k.e("v_and_b32 v%d, %d, v0" % (v + 1, CH - 1))
            k.e("v_and_b32 v%d, %d, v%d" % (v + 2, CH - 1, v))
            k.e("v_xor_b32 v%d, v%d, v%d" % (v + 2, v + 2, v + 1))
            k.e("v_lshlrev_b32 v%d, 4, v%d" % (v + 2, v + 2))
            k.e("v_mul_u32_u24 v%d, %d, v%d" % (v + 3, pitch, v))
            k.e("v_add3_u32 v%d, v%d, v%d, s27" % (v + 2, v + 2, v + 3))
            k.e("s_mul_i32 s25, s20, %d" % c["BM"])
            k.e("s_mul_i32 s26, s23, %d" % (c["RB"] * 16))
            k.e("s_add_u32 s25, s25, s26")
            k.e("v_add_u32 v%d, s25, v%d" % (v, v))
            k.e("s_mov_b32 s26, %d" % (self.ldc * 2))
            k.e("v_mul_lo_u32 v%d, v%d, s26" % (v, v))
            k.e("v_lshlrev_b32 v%d, 4, v%d" % (v + 1, v + 1))
            colbase_fn(k, gi, 25)
            k.e("v_add3_u32 v%d, v%d, v%d, s25" % (v, v, v + 1))
            nj = 64 // rp
            for j in range(nj):
                k.e("ds_read_b128 v[%d:%d], v%d offset:%d" % (vd + 4 * j, vd + 4 * j + 3, v + 2, self.off[gi] + j * rp * pitch))
            for j in range(nj):
                k.e("s_waitcnt lgkmcnt(%d)" % (nj - 1 - j))
                if j:
                    k.e("v_add_u32 v%d, %d, v%d" % (v, rp * self.ldc * 2, v))
                k.e("buffer_store_dwordx4 v[%d:%d], v%d, s[%d:%d], 0 offen%s" % (vd + 4 * j, vd + 4 * j + 3, v, self.srd, self.srd + 3, STFLAG))
            k.e("s_nop 1")


def epi_store_factory(ldc, c_slot, c_off, c_bytes, part=False, groups=None):
    def epi(k, c):
        RB, CB, acc = c["RB"], c["CB"], c["acc"]
        srd(k, 40, c_slot, c_off, c_bytes)
        PS = c["vfr"]
        if groups:
            tot = sum(s[3] for s in c["subs"])
            k.e("s_barrier")
            ls = LdsStore(k, c, groups, ldc, 40, 4, c["vfr"])
            for cb in range(CB):
                for rb in range(RB):
                    a = acc(rb, cb)
                    if c["ln"]:
                        ln_apply(k, c, a, rb, c["vcs"] + 4 * cb)
                    k.e("v_cvt_pk_bf16_f32 v%d, v%d, v%d" % (a, a, a + 1))
                    k.e("v_cvt_pk_bf16_f32 v%d, v%d, v%d" % (a + 1, a + 2, a + 3))
                    ls.put(rb, cb, a)
            ls.flush(lambda k, gi, sreg: col_off(k, c, groups[gi][0], sreg, tot), c["vfr"] + 16)
            return
        if part:
            for rb in range(RB):
                k.e("v_mov_b32 v%d, 0" % (PS + 2 * rb))
                k.e("v_mov_b32 v%d, 0" % (PS + 1 + 2 * rb))
        row_base(k, c, ldc)
        tot = sum(s[3] for s in c["subs"])
        for cb in range(CB):
            col_off(k, c, cb, 25, tot)
            k.e("v_add_u32 v3, s25, v1")
            for rb in range(RB):
                a = acc(rb, cb)
                if c["ln"]:
                    ln_apply(k, c, a, rb, c["vcs"] + 4 * cb)
                k.e("v_cvt_pk_bf16_f32 v%d, v%d, v%d" % (a, a, a + 1))
                k.e("v_cvt_pk_bf16_f32 v%d, v%d, v%d" % (a + 1, a + 2, a + 3))
                if c["vres"] is not None:
                    r = c["vres"] + 2 * (rb * CB + cb)
                    for j in range(2):
                        k.e("v_lshlrev_b32 v6, 16, v%d" % (a + j))
                        k.e("v_and_b32 v7, 0xffff0000, v%d" % (a + j))
                        k.e("v_lshlrev_b32 v8, 16, v%d" % (r + j))
                        k.e("v_and_b32 v9, 0xffff0000, v%d" % (r + j))
                        k.e("v_add_f32 v6, v6, v8")
                        k.e("v_add_f32 v7, v7, v9")
                        k.e("v_cvt_pk_bf16_f32 v%d, v6, v7" % (a + j))
                        if part:
                            k.e("v_lshlrev_b32 v6, 16, v%d" % (a + j))
                            k.e("v_and_b32 v7, 0xffff0000, v%d" % (a + j))
                            k.e("v_add_f32 v%d, v%d, v6" % (PS + 2 * rb, PS + 2 * rb))
                            k.e("v_fmac_f32 v%d, v6, v6" % (PS + 1 + 2 * rb))
                            k.e("v_add_f32 v%d, v%d, v7" % (PS + 2 * rb, PS + 2 * rb))
                            k.e("v_fmac_f32 v%d, v7, v7" % (PS + 1 + 2 * rb))
                k.e("v_add_u32 v4, %d, v3" % (rb * 16 * ldc * 2))
                k.e("buffer_store_dwordx2 v[%d:%d], v4, s[40:43], 0 offen" % (a, a + 1))
        if part:
            srd(k, 44, KA_WS, WS_PART, S * 256)
            for v in range(PS, PS + 2 * RB):
                k.e("ds_swizzle_b32 v2, v%d offset:0x401F" % v)
                k.e("s_waitcnt lgkmcnt(0)")
                k.e("v_add_f32 v%d, v%d, v2" % (v, v))
                k.e("v_mov_b32 v2, v%d" % v)
                k.e("s_nop 1")
                k.e("v_permlane32_swap_b32 v%d, v2" % v)
                k.e("v_add_f32 v%d, v%d, v2" % (v, v))
            k.e("s_mul_i32 s25, s20, %d" % c["BM"])
            k.e("s_mul_i32 s26, s23, %d" % (RB * 16))
            k.e("s_add_u32 s25, s25, s26")
            k.e("v_add_u32 v1, s25, v0")
            k.e("v_lshlrev_b32 v1, 4, v1")
            k.e("s_lshl_b32 s25, s21, 15")
            k.e("s_lshl_b32 s26, s24, 3")
            k.e("s_add_u32 s25, s25, s26")
            k.e("v_add_u32 v1, s25, v1")
            k.e("v_cmp_gt_u32 vcc, 16, v0")
            k.e("s_and_saveexec_b64 s[52:53], vcc")
            for rb in range(RB):
                k.e("v_add_u32 v2, %d, v1" % (rb * 256))
                k.e("buffer_store_dwordx2 v[%d:%d], v2, s[44:47], 0 offen" % (PS + 2 * rb, PS + 1 + 2 * rb))
            k.e("s_mov_b64 exec, s[52:53]")
    return epi


def epi_swiglu(k, c):
    RB, CB, acc, colblocks, subs = c["RB"], c["CB"], c["acc"], c["colblocks"], c["subs"]
    ldc = F
    srd(k, 40, KA_WS, WS_ACT, S * F * 2)
    srd(k, 44, KA_WS, WS_CS, 2 * F * 4)
    half = CB // 2
    width = subs[0][3]
    vc = c["vfr"]
    assert 8 * half <= 32
    k.e("v_lshrrev_b32 v2, 4, v0")
    k.e("v_lshlrev_b32 v2, 4, v2")
    for cb in range(half):
        si, pmul, padd = colblocks[cb]
        assert si == 0 and colblocks[cb + half] == (1, pmul, padd)
        k.e("s_mul_i32 s25, s21, %d" % (width * 4))
        k.e("s_mul_i32 s26, s24, %d" % (pmul * 64))
        k.e("s_add_u32 s25, s25, s26")
        k.e("s_add_u32 s25, s25, %d" % (padd * 64))
        k.e("v_add_u32 v3, s25, v2")
        k.e("buffer_load_dwordx4 v[%d:%d], v3, s[44:47], 0 offen" % (vc + 8 * cb, vc + 8 * cb + 3))
        k.e("v_add_u32 v3, %d, v3" % (F * 4))
        k.e("buffer_load_dwordx4 v[%d:%d], v3, s[44:47], 0 offen" % (vc + 8 * cb + 4, vc + 8 * cb + 7))
    c["ws_stats"]()
    stamp(k, 2)
    ls = LdsStore(k, c, [list(range(half))], ldc, 40, 8, c["vfr"] + 40)
    vr = c["vfr"] + 32
    for rb in range(RB):
        k.e("v_mul_f32 v%d, 0xbfb8aa3b, v%d" % (vr + rb, c["vsq"] + rb))
    for cb in range(half):
        si, pmul, padd = colblocks[cb]
        k.e("s_mul_i32 s25, s21, %d" % (width * 2))
        k.e("s_mul_i32 s26, s24, %d" % (pmul * 32))
        k.e("s_add_u32 s25, s25, s26")
        k.e("s_add_u32 s25, s25, %d" % (padd * 32))
        for rb in range(RB):
            g = acc(rb, cb); u = acc(rb, cb + half)
            m = c["vsum"] + rb; q = c["vsq"] + rb
            cg = vc + 8 * cb; cu = cg + 4
            for r in range(4):
                k.e("v_fma_f32 v%d, -v%d, v%d, v%d" % (g + r, m, cg + r, g + r))
            for r in range(4):
                k.e("v_mul_f32 v%d, v%d, v%d" % (4 + r, g + r, vr + rb))
            for r in range(4):
                k.e("v_exp_f32 v%d, v%d" % (4 + r, 4 + r))
            for r in range(4):
                k.e("v_fma_f32 v%d, -v%d, v%d, v%d" % (u + r, m, cu + r, u + r))
            for r in range(4):
                k.e("v_add_f32 v%d, 1.0, v%d" % (4 + r, 4 + r))
            for r in range(4):
                k.e("v_rcp_f32 v%d, v%d" % (4 + r, 4 + r))
            for r in range(4):
                k.e("v_mul_f32 v%d, v%d, v%d" % (g + r, g + r, u + r))
            k.e("v_mul_f32 v8, v%d, v%d" % (q, q))
            for r in range(4):
                k.e("v_mul_f32 v%d, v%d, v%d" % (4 + r, 4 + r, 8))
            for r in range(4):
                k.e("v_mul_f32 v%d, v%d, v%d" % (g + r, g + r, 4 + r))
            k.e("v_cvt_pk_bf16_f32 v%d, v%d, v%d" % (g, g, g + 1))
            k.e("v_cvt_pk_bf16_f32 v%d, v%d, v%d" % (g + 1, g + 2, g + 3))
            ls.put(rb, cb, g)

    def colbase(k, gi, sreg):
        si, pmul, padd = colblocks[0]
        k.e("s_mul_i32 s%d, s21, %d" % (sreg, width * 2))
        k.e("s_mul_i32 s26, s24, %d" % (pmul * 32))
        k.e("s_add_u32 s%d, s%d, s26" % (sreg, sreg))
    ls.flush(colbase, c["vfr"] + 56)


def gen_attn(name):
    MIMIC = 'mimic' in EXP
    NATT = 512
    NCS = 2 * F // 64
    NPF = 32
    NH = NCS + NPF
    nwg = NATT + NH
    KV_ROWS = 384
    K_LDS = 0
    V_LDS = KV_ROWS * 64
    k = Kern(name, (nwg, 1, 1), (256, 1, 1), 2 * KV_ROWS * 64, 0)
    lab = lambda s: "%s_%s" % (name, s)
    k.e("s_cmp_ge_u32 s2, %d" % nwg)
    k.e("s_cbranch_scc1 %s" % lab("end"))
    load_ptrs(k)
    if 'hlast' in EXP:
        k.e("s_sub_u32 s2, s2, %d" % NATT)
        k.e("s_cmp_lt_u32 s2, %d" % NH)
        k.e("s_cbranch_scc1 %s" % lab("cs"))
        k.e("s_add_u32 s2, s2, %d" % NATT)
    else:
        k.e("s_cmp_lt_u32 s2, %d" % NH)
        k.e("s_cbranch_scc1 %s" % lab("cs"))
        k.e("s_sub_u32 s2, s2, %d" % NH)
    stamp(k, 0)
    srd(k, 4, KA_WS, WS_QKV, S * 3 * D * 2)
    srd(k, 8, KA_WS, WS_O, S * D * 2)
    k.e("s_and_b32 s20, s2, 31")
    k.e("s_lshr_b32 s21, s2, 5")
    k.e("v_lshrrev_b32 v1, 6, v0")
    k.e("s_nop 0")
    k.e("v_readfirstlane_b32 s22, v1")
    k.e("v_and_b32 v0, 63, v0")
    k.e("""
    v_lshrrev_b32 v1, 2, v0
    v_and_b32 v2, 3, v0
    v_bfe_u32 v3, v0, 4, 2
    v_xor_b32 v2, v2, v3
    v_lshlrev_b32 v2, 4, v2
    s_lshl_b32 s23, s21, 7
    s_mul_i32 s24, s22, 96
    s_add_u32 s23, s23, s24
    s_sub_u32 s23, s23, 256
    v_add_u32 v1, s23, v1
    s_mov_b32 s24, %d
    v_mul_lo_u32 v1, v1, s24
    v_add_u32 v1, v1, v2
    s_lshl_b32 s24, s20, 6
    v_add_u32 v1, s24, v1
    s_mul_i32 s25, s22, 6144
    """ % (3 * D * 2))
    for mat, ldsb in ((1, K_LDS), (2, V_LDS)):
        for t in range(6):
            k.e("v_add_u32 v2, %d, v1" % (t * 16 * 3 * D * 2 + mat * D * 2))
            k.e("s_add_u32 m0, s25, %d" % (ldsb + t * 1024))
            k.e("s_nop 0")
            k.e("buffer_load_dwordx4 v2, s[4:7], 0 offen lds")
    k.e("""
    s_lshl_b32 s23, s21, 7
    s_lshl_b32 s24, s22, 5
    s_add_u32 s23, s23, s24
    v_and_b32 v1, 31, v0
    v_add_u32 v1, s23, v1
    s_mov_b32 s24, %d
    v_mul_lo_u32 v1, v1, s24
    v_lshrrev_b32 v2, 5, v0
    v_lshlrev_b32 v2, 4, v2
    s_lshl_b32 s24, s20, 6
    v_add3_u32 v1, v1, v2, s24
    buffer_load_dwordx4 v[4:7], v1, s[4:7], 0 offen
    buffer_load_dwordx4 v[8:11], v1, s[4:7], 0 offen offset:32
    v_and_b32 v1, 31, v0
    v_lshlrev_b32 v12, 6, v1
    v_bfe_u32 v2, v0, 2, 2
    v_lshrrev_b32 v3, 5, v0
    v_xor_b32 v13, v3, v2
    v_lshlrev_b32 v13, 4, v13
    v_add_u32 v13, v12, v13
    v_or_b32 v3, 2, v3
    v_xor_b32 v14, v3, v2
    v_lshlrev_b32 v14, 4, v14
    v_add_u32 v14, v12, v14
    s_lshl_b32 s24, s22, 11
    v_add_u32 v13, s24, v13
    v_add_u32 v14, s24, v14
    v_bfe_u32 v1, v0, 5, 1
    v_lshlrev_b32 v1, 2, v1
    v_bfe_u32 v2, v0, 2, 2
    v_add_u32 v1, v1, v2
    v_bfe_u32 v2, v0, 4, 1
    v_lshlrev_b32 v2, 1, v2
    v_bfe_u32 v3, v0, 1, 1
    v_or_b32 v2, v2, v3
    v_and_b32 v3, 1, v0
    v_lshlrev_b32 v3, 3, v3
    """ % (3 * D * 2))
    for j in range(4):
        k.e("v_add_u32 v19, %d, v1" % (8 * j))
        k.e("v_bfe_u32 v20, v19, 2, 2")
        k.e("v_xor_b32 v20, v20, v2")
        k.e("v_lshlrev_b32 v20, 4, v20")
        k.e("v_lshlrev_b32 v19, 6, v19")
        k.e("v_add3_u32 v%d, v19, v20, v3" % (15 + j))
        k.e("v_add_u32 v%d, s24, v%d" % (15 + j, 15 + j))
    k.e("s_waitcnt vmcnt(0)")
    k.e("s_barrier")
    stamp(k, 1)
    SB = 48
    k.e("ds_read_b128 v[20:23], v13 offset:%d" % K_LDS)
    k.e("ds_read_b128 v[24:27], v14 offset:%d" % K_LDS)
    for b in range(9):
        f = 20 + 8 * (b & 1); fn = 20 + 8 * ((b + 1) & 1)
        if b < 8:
            k.e("ds_read_b128 v[%d:%d], v13 offset:%d" % (fn, fn + 3, K_LDS + (b + 1) * 2048))
            k.e("ds_read_b128 v[%d:%d], v14 offset:%d" % (fn + 4, fn + 7, K_LDS + (b + 1) * 2048))
            k.e("s_waitcnt lgkmcnt(2)")
        else:
            k.e("s_waitcnt lgkmcnt(0)")
        s0 = SB + b * 16
        k.e("v_mfma_f32_32x32x16_bf16 v[%d:%d], v[%d:%d], v[4:7], 0" % (s0, s0 + 15, f, f + 3))
        k.e("v_mfma_f32_32x32x16_bf16 v[%d:%d], v[%d:%d], v[8:11], v[%d:%d]" % (s0, s0 + 15, f + 4, f + 7, s0, s0 + 15))
    k.e("s_nop 15")
    NSR = 144
    stamp(k, 2)
    if MIMIC:
        for r in range(0, NSR, 2):
            a = SB + r
            k.e("v_cvt_pk_bf16_f32 v36, v%d, v%d" % (a, a + 1))
            k.e("v_lshlrev_b32 v%d, 16, v36" % a)
            k.e("v_and_b32 v%d, 0xffff0000, v36" % (a + 1))
            k.e("v_mul_f32 v%d, 0x3e3504f3, v%d" % (a, a))
            k.e("v_mul_f32 v%d, 0x3e3504f3, v%d" % (a + 1, a + 1))
            k.e("v_cvt_pk_bf16_f32 v36, v%d, v%d" % (a, a + 1))
            k.e("v_lshlrev_b32 v%d, 16, v36" % a)
            k.e("v_and_b32 v%d, 0xffff0000, v36" % (a + 1))
        k.e("s_mov_b32 s26, 0x3fb8aa3b")
    else:
        k.e("s_mov_b32 s26, 0x3e8293ee")
    k.e("v_and_b32 v1, 31, v0")
    k.e("v_lshrrev_b32 v2, 5, v0")
    k.e("v_lshlrev_b32 v2, 2, v2")
    k.e("v_sub_u32 v1, v1, v2")
    k.e("v_mov_b32 v3, 0xce6e6b28")
    for r in range(16):
        c = (r & 3) + 8 * (r >> 2)
        k.e("v_cmp_ge_i32 vcc, v1, %d" % c)
        k.e("s_nop 1")
        k.e("v_cndmask_b32 v%d, v%d, v3, vcc" % (SB + r, SB + r))
        k.e("v_cndmask_b32 v%d, v3, v%d, vcc" % (SB + 128 + r, SB + 128 + r))
    k.e("s_lshl_b32 s23, s21, 2")
    k.e("s_add_u32 s23, s23, s22")
    k.e("s_cmp_ge_u32 s23, 8")
    k.e("s_cbranch_scc1 %s" % lab("nomask"))
    for b in range(8):
        k.e("s_cmp_lt_u32 s23, %d" % (8 - b))
        k.e("s_cbranch_scc0 %s" % lab("nm%d" % b))
        for r in range(16):
            k.e("v_mov_b32 v%d, v3" % (SB + b * 16 + r))
        k.lab(lab("nm%d" % b))
    k.lab(lab("nomask"))
    k.e("v_max_f32 v1, v%d, v%d" % (SB, SB + 1))
    for r in range(2, NSR, 2):
        k.e("v_max3_f32 v1, v1, v%d, v%d" % (SB + r, SB + r + 1))
    k.e("v_mov_b32 v2, v1")
    k.e("s_nop 1")
    k.e("v_permlane32_swap_b32 v1, v2")
    k.e("v_max_f32 v1, v1, v2")
    k.e("v_mul_f32 v1, s26, v1")
    k.e("v_mov_b32 v2, 0")
    k.e("v_mov_b32 v3, 0")
    PB = None
    for b in range(9):
        for r in range(16):
            a = SB + b * 16 + r
            k.e("v_fma_f32 v%d, v%d, s26, -v1" % (a, a))
            k.e("v_exp_f32 v%d, v%d" % (a, a))
        k.e("s_nop 0")
        if not MIMIC:
            for j in range(8):
                a = SB + b * 16 + 2 * j
                k.e("v_add_f32 v2, v2, v%d" % a)
                k.e("v_add_f32 v3, v3, v%d" % (a + 1))
                k.e("v_cvt_pk_bf16_f32 v%d, v%d, v%d" % (SB + b * 16 + j, a, a + 1))
    if MIMIC:
        for r in range(NSR):
            k.e("v_add_f32 v2, v2, v%d" % (SB + r))
    k.e("v_add_f32 v2, v2, v3")
    k.e("v_mov_b32 v3, v2")
    k.e("s_nop 1")
    k.e("v_permlane32_swap_b32 v2, v3")
    k.e("v_add_f32 v2, v2, v3")
    k.e("v_rcp_f32 v2, v2")
    k.e("s_nop 0")
    if MIMIC:
        for b in range(9):
            for j in range(8):
                a = SB + b * 16 + 2 * j
                k.e("v_mul_f32 v%d, v%d, v2" % (a, a))
                k.e("v_mul_f32 v%d, v%d, v2" % (a + 1, a + 1))
                k.e("v_cvt_pk_bf16_f32 v%d, v%d, v%d" % (SB + b * 16 + j, a, a + 1))
    OA = 192
    stamp(k, 3)
    for j in range(4):
        k.e("ds_read_b64_tr_b16 v[%d:%d], v%d offset:%d" % (20 + 2 * j, 21 + 2 * j, 15 + j, V_LDS))
    for b in range(9):
        f = 20 + 8 * (b & 1); fn = 20 + 8 * ((b + 1) & 1)
        if b < 8:
            for j in range(4):
                k.e("ds_read_b64_tr_b16 v[%d:%d], v%d offset:%d" % (fn + 2 * j, fn + 2 * j + 1, 15 + j, V_LDS + (b + 1) * 2048))
            k.e("s_waitcnt lgkmcnt(4)")
        else:
            k.e("s_waitcnt lgkmcnt(0)")
        p = SB + b * 16
        if b == 0:
            k.e("v_mfma_f32_32x32x16_bf16 v[%d:%d], v[%d:%d], v[%d:%d], 0" % (OA, OA + 15, f, f + 3, p, p + 3))
        else:
            k.e("v_mfma_f32_32x32x16_bf16 v[%d:%d], v[%d:%d], v[%d:%d], v[%d:%d]" % (OA, OA + 15, f, f + 3, p, p + 3, OA, OA + 15))
        k.e("v_mfma_f32_32x32x16_bf16 v[%d:%d], v[%d:%d], v[%d:%d], v[%d:%d]" % (OA, OA + 15, f + 4, f + 7, p + 4, p + 7, OA, OA + 15))
    k.e("""
    s_lshl_b32 s23, s21, 7
    s_lshl_b32 s24, s22, 5
    s_add_u32 s23, s23, s24
    v_and_b32 v1, 31, v0
    v_add_u32 v1, s23, v1
    v_lshlrev_b32 v1, 11, v1
    v_lshrrev_b32 v3, 5, v0
    v_lshlrev_b32 v3, 3, v3
    s_lshl_b32 s24, s20, 6
    v_add3_u32 v1, v1, v3, s24
    s_nop 7
    """)
    if not MIMIC:
        for r in range(16):
            k.e("v_mul_f32 v%d, v%d, v2" % (OA + r, OA + r))
    for j in range(4):
        k.e("v_cvt_pk_bf16_f32 v%d, v%d, v%d" % (208 + 2 * j, OA + 4 * j, OA + 1 + 4 * j))
        k.e("v_cvt_pk_bf16_f32 v%d, v%d, v%d" % (209 + 2 * j, OA + 2 + 4 * j, OA + 3 + 4 * j))
        k.e("buffer_store_dwordx2 v[%d:%d], v1, s[8:11], 0 offen offset:%d" % (208 + 2 * j, 209 + 2 * j, 16 * j))
    stamp_store(k, 4, 4)
    k.e("s_endpgm")
    k.lab(lab("cs"))
    k.e("s_cmp_ge_u32 s2, %d" % NCS)
    k.e("s_cbranch_scc1 %s" % lab("pf"))
    k.e("s_mov_b32 s20, s2")
    k.e("s_cmp_lt_u32 s20, 56")
    k.e("s_cselect_b32 s4, s%d, s%d" % (PTR0 + 2 * KA_W1, PTR0 + 2 * KA_W3))
    k.e("s_cselect_b32 s5, s%d, s%d" % (PTR0 + 2 * KA_W1 + 1, PTR0 + 2 * KA_W3 + 1))
    k.e("s_cselect_b32 s21, 0, 56")
    k.e("s_and_b32 s5, s5, 0xffff")
    k.e("s_mov_b32 s6, %d" % (D * F * 2))
    k.e("s_mov_b32 s7, 0x00020000")
    k.e("s_sub_u32 s21, s20, s21")
    srd(k, 8, KA_WS, WS_CS, 2 * F * 4)
    k.e("""
    v_lshrrev_b32 v1, 3, v0
    v_and_b32 v2, 7, v0
    s_mov_b32 s22, %d
    v_mul_lo_u32 v1, v1, s22
    v_lshlrev_b32 v2, 4, v2
    s_lshl_b32 s22, s21, 7
    v_add3_u32 v1, v1, v2, s22
    """ % (F * 2))
    for r in range(8):
        k.e("v_mov_b32 v%d, 0" % (8 + r))
    for half in range(1):
        for i in range(32):
            k.e("v_add_u32 v2, %d, v1" % (i * 32 * F * 2))
            k.e("buffer_load_dwordx4 v[%d:%d], v2, s[4:7], 0 offen" % (16 + 4 * i, 19 + 4 * i))
        for i in range(32):
            k.e("s_waitcnt vmcnt(%d)" % (31 - i))
            for j in range(4):
                k.e("v_lshlrev_b32 v3, 16, v%d" % (16 + 4 * i + j))
                k.e("v_and_b32 v4, 0xffff0000, v%d" % (16 + 4 * i + j))
                k.e("v_add_f32 v%d, v%d, v3" % (8 + 2 * j, 8 + 2 * j))
                k.e("v_add_f32 v%d, v%d, v4" % (9 + 2 * j, 9 + 2 * j))
    k.e("v_lshlrev_b32 v2, 5, v0")
    k.e("ds_write_b128 v2, v[8:11]")
    k.e("ds_write_b128 v2, v[12:15] offset:16")
    k.e("s_waitcnt lgkmcnt(0)")
    k.e("s_barrier")
    k.e("v_cmp_gt_u32 vcc, 64, v0")
    k.e("s_and_saveexec_b64 s[24:25], vcc")
    k.e("s_cbranch_execz %s" % lab("end"))
    k.e("v_lshlrev_b32 v2, 2, v0")
    for i in range(32):
        k.e("ds_read_b32 v%d, v2 offset:%d" % (16 + i, i * 256))
    k.e("s_waitcnt lgkmcnt(0)")
    for i in range(1, 32):
        k.e("v_add_f32 v16, v16, v%d" % (16 + i))
    k.e("s_lshl_b32 s22, s20, 8")
    k.e("v_add_u32 v2, s22, v2")
    k.e("buffer_store_dword v16, v2, s[8:11], 0 offen")
    k.e("s_endpgm")
    k.lab(lab("pf"))
    k.e("s_sub_u32 s20, s2, %d" % NCS)
    k.e("s_cmp_lt_u32 s20, 0")
    k.e("s_cselect_b32 s4, s%d, s%d" % (PTR0 + 2 * KA_W2, PTR0 + 2 * KA_WO))
    k.e("s_cselect_b32 s5, s%d, s%d" % (PTR0 + 2 * KA_W2 + 1, PTR0 + 2 * KA_WO + 1))
    k.e("s_mov_b32 s23, %d" % (D * D * 2))
    k.e("s_cselect_b32 s6, %d, s23" % (F * D * 2))
    k.e("s_cselect_b32 s21, 0, 0")
    k.e("s_mov_b32 s22, 65536")
    k.e("s_and_b32 s5, s5, 0xffff")
    k.e("s_mov_b32 s7, 0x00020000")
    k.e("s_sub_u32 s21, s20, s21")
    k.e("s_mul_i32 s21, s21, s22")
    k.e("v_lshlrev_b32 v1, 4, v0")
    k.e("v_add_u32 v1, s21, v1")
    for i in range(16):
        k.e("buffer_load_dwordx4 v[%d:%d], v1, s[4:7], 0 offen" % (8 + 4 * i, 11 + 4 * i))
        k.e("v_add_u32 v1, 4096, v1")
    k.e("s_waitcnt vmcnt(0)")
    k.lab(lab("end"))
    k.e("s_endpgm")
    k.nvgpr = 216
    return k


def gen_g3(name, npf=32):
    BM = 256; RB = 4; CB = 8; NWC = 8; R = 5; STAGE = 32768; nk = 32
    ntm, ntn = 8, 28
    nwg = ntm * ntn
    subs = [(KA_W1, 0, F, 128, 128), (KA_W3, 0, F, 128, 128)]
    colblocks = [(0, 4, j) for j in range(4)] + [(1, 4, j) for j in range(4)]
    sub_lds = [16384, 24576]
    k = Kern(name, (nwg + npf, 1, 1), (512, 1, 1), R * STAGE, 0)
    lab = lambda s: "%s_%s" % (name, s)
    k.e("s_cmp_ge_u32 s2, %d" % (nwg + npf))
    k.e("s_cbranch_scc1 %s" % lab("end"))
    stamp(k, 0)
    load_ptrs(k)
    k.e("s_cmp_lt_u32 s2, %d" % nwg)
    k.e("s_cbranch_scc1 %s" % lab("main"))
    srd(k, 4, KA_W2, 0, F * D * 2)
    per = F * D * 2 // npf
    k.e("s_sub_u32 s20, s2, %d" % nwg)
    k.e("s_mul_i32 s20, s20, %d" % per)
    k.e("v_lshlrev_b32 v1, 4, v0")
    k.e("v_add_u32 v1, s20, v1")
    for i in range(per // 8192):
        k.e("buffer_load_dwordx4 v[%d:%d], v1, s[4:7], 0 offen" % (8 + 4 * i, 11 + 4 * i))
        k.e("v_add_u32 v1, 8192, v1")
    k.e("s_waitcnt vmcnt(0)")
    k.e("s_endpgm")
    k.lab(lab("main"))
    srd(k, 4, KA_WS, WS_H, S * D * 2)
    srd(k, 8, KA_W1, 0, D * F * 2)
    srd(k, 12, KA_W3, 0, D * F * 2)
    k.e("""
    s_and_b32 s25, s2, 7
    s_lshr_b32 s26, s2, 3
    s_and_b32 s20, s25, 1
    s_mul_i32 s20, s20, 4
    s_and_b32 s27, s26, 3
    s_add_u32 s20, s20, s27
    s_lshr_b32 s21, s25, 1
    s_mul_i32 s21, s21, 7
    s_lshr_b32 s27, s26, 2
    s_add_u32 s21, s21, s27
    v_lshrrev_b32 v1, 6, v0
    s_nop 0
    v_readfirstlane_b32 s19, v1
    s_and_b32 s23, s19, 3
    s_lshr_b32 s24, s19, 2
    v_and_b32 v0, 63, v0
    """)
    vAd, vBd = 2, 4
    vAb = 6
    vAr = 15
    vsum, vsq = 24, 28
    vfr = 36
    vacc = vfr + 88
    T0, T1, T2 = vfr, vfr + 1, vfr + 2
    acc = lambda rb, cb: vacc + (rb * CB + cb) * 4
    vend = vacc + RB * CB * 4
    k.nvgpr = vend
    fA = lambda rb: vfr + 4 * rb
    fB = lambda cb: vfr + 16 + 4 * cb
    def sw(dst, rg, t):
        k.e("v_lshlrev_b32 v%d, 1, v%d" % (dst, rg))
        k.e("v_and_b32 v%d, 3, v%d" % (dst, dst))
        k.e("v_lshrrev_b32 v%d, 1, v%d" % (t, rg))
        k.e("v_mul_u32_u24 v%d, 3, v%d" % (t, t))
        k.e("v_xor_b32 v%d, v%d, v%d" % (dst, dst, t))
    k.e("v_bfe_u32 v1, v0, 4, 2")
    sw(T0, 1, T1)
    k.e("v_and_b32 v%d, 3, v0" % T1)
    k.e("v_xor_b32 v%d, v%d, v%d" % (T0, T0, T1))
    k.e("v_lshlrev_b32 v%d, 4, v%d" % (T0, T0))
    k.e("v_lshrrev_b32 v1, 2, v0")
    k.e("s_lshl_b32 s25, s19, 5")
    k.e("s_lshl_b32 s26, s20, 8")
    k.e("s_add_u32 s25, s25, s26")
    k.e("v_add_u32 v1, s25, v1")
    k.e("v_lshlrev_b32 v1, 11, v1")
    k.e("v_add_u32 v%d, v1, v%d" % (vAd, T0))
    k.e("v_add_u32 v%d, %d, v%d" % (vAd + 1, 16 * 2048, vAd))
    k.e("v_lshrrev_b32 v1, 4, v0")
    k.e("s_lshl_b32 s25, s19, 2")
    k.e("v_add_u32 v1, s25, v1")
    k.e("v_and_b32 v%d, 3, v1" % T0)
    k.e("v_lshrrev_b32 v%d, 1, v1" % T1)
    k.e("v_and_b32 v%d, 4, v%d" % (T1, T1))
    k.e("v_or_b32 v%d, v%d, v%d" % (T0, T0, T1))
    k.e("v_lshlrev_b32 v%d, 1, v%d" % (T0, T0))
    k.e("v_and_b32 v%d, 15, v0" % T1)
    k.e("v_xor_b32 v%d, v%d, v%d" % (T0, T0, T1))
    k.e("v_lshlrev_b32 v%d, 4, v%d" % (T0, T0))
    k.e("s_mov_b32 s26, %d" % (F * 2))
    k.e("v_mul_lo_u32 v1, v1, s26")
    k.e("s_lshl_b32 s26, s21, 8")
    k.e("v_add3_u32 v%d, v1, v%d, s26" % (vBd, T0))
    k.e("v_mov_b32 v%d, v%d" % (vBd + 1, vBd))
    k.e("v_bfe_u32 v1, v0, 2, 2")
    sw(T0, 1, T1)
    k.e("v_lshrrev_b32 v%d, 4, v0" % T1)
    k.e("v_xor_b32 v%d, v%d, v%d" % (T0, T0, T1))
    k.e("v_lshlrev_b32 v%d, 4, v%d" % (T0, T0))
    k.e("v_and_b32 v1, 15, v0")
    k.e("v_lshlrev_b32 v1, 6, v1")
    k.e("s_lshl_b32 s25, s23, 12")
    k.e("v_add3_u32 v%d, v1, v%d, s25" % (vAb, T0))
    for cb, (si, pmul, padd) in enumerate(colblocks):
        k.e("""
        v_lshrrev_b32 v1, 4, v0
        v_lshlrev_b32 v1, 3, v1
        v_bfe_u32 v%d, v0, 2, 2
        v_add_u32 v1, v1, v%d
        v_bfe_u32 v%d, v0, 4, 1
        v_lshlrev_b32 v%d, 2, v%d
        v_or_b32 v%d, v%d, v%d
        """ % (T0, T0, T1, T1, T1, T1, T1, T0))
        k.e("s_mul_i32 s25, s24, %d" % pmul)
        k.e("s_add_u32 s25, s25, %d" % padd)
        k.e("v_xor_b32 v%d, s25, v%d" % (T1, T1))
        k.e("v_lshlrev_b32 v%d, 5, v%d" % (T1, T1))
        k.e("v_lshlrev_b32 v1, 8, v1")
        k.e("v_and_b32 v%d, 3, v0" % T2)
        k.e("v_lshlrev_b32 v%d, 3, v%d" % (T2, T2))
        k.e("v_add3_u32 v%d, v1, v%d, v%d" % (vAb + 1 + cb, T1, T2))
        k.e("v_add_u32 v%d, %d, v%d" % (vAb + 1 + cb, sub_lds[si], vAb + 1 + cb))
    for r in range(vacc, vend):
        k.e("v_mov_b32 v%d, 0" % r)
    k.e("""
    s_mov_b32 s30, 0
    s_mov_b32 s31, 0
    s_mov_b32 s34, 0
    s_lshl_b32 s35, s19, 11
    s_lshl_b32 s44, s19, 10
    s_add_u32 s45, s44, 24576
    s_add_u32 s44, s44, 16384
    s_mov_b32 s37, 0
    s_mov_b32 s38, 0
    """)

    def dma():
        k.e("""
        s_add_u32 s36, s34, s35
        s_mov_b32 m0, s36
        s_nop 0
        buffer_load_dwordx4 v%d, s[4:7], s30 offen lds
        s_add_u32 m0, s36, 1024
        s_nop 0
        buffer_load_dwordx4 v%d, s[4:7], s30 offen lds
        s_add_u32 m0, s34, s44
        s_nop 0
        buffer_load_dwordx4 v%d, s[8:11], s31 offen lds
        s_add_u32 m0, s34, s45
        s_nop 0
        buffer_load_dwordx4 v%d, s[12:15], s31 offen lds
        s_add_u32 s30, s30, 64
        s_add_u32 s31, s31, %d
        s_add_u32 s34, s34, %d
        s_cmp_eq_u32 s34, %d
        s_cselect_b32 s34, 0, s34
        """ % (vAd, vAd + 1, vBd, vBd + 1, 32 * F * 2, STAGE, R * STAGE))

    def loadphase():
        dma()
        for r in range(9):
            k.e("v_add_u32 v%d, s38, v%d" % (vAr + r, vAb + r))
        k.e("s_add_u32 s38, s38, %d\ns_cmp_eq_u32 s38, %d\ns_cselect_b32 s38, 0, s38" % (STAGE, R * STAGE))
        for rb in range(RB):
            k.e("ds_read_b128 v[%d:%d], v%d offset:%d" % (fA(rb), fA(rb) + 3, vAr, rb * 1024))
        for cb in range(CB):
            k.e("ds_read_b64_tr_b16 v[%d:%d], v%d" % (fB(cb), fB(cb) + 1, vAr + 1 + cb))
            k.e("ds_read_b64_tr_b16 v[%d:%d], v%d offset:1024" % (fB(cb) + 2, fB(cb) + 3, vAr + 1 + cb))
        k.e("s_waitcnt lgkmcnt(0)")

    def compphase():
        for rb in range(RB):
            for cb in range(CB):
                a = acc(rb, cb)
                k.e("v_mfma_f32_16x16x32_bf16 v[%d:%d], v[%d:%d], v[%d:%d], v[%d:%d]" % (
                    a, a + 3, fB(cb), fB(cb) + 3, fA(rb), fA(rb) + 3, a, a + 3))

    for _ in range(4):
        dma()
    stamp(k, 1)
    k.e("s_waitcnt vmcnt(12)")
    k.e("s_barrier")
    k.e("s_cmp_ge_u32 s19, 4")
    k.e("s_cbranch_scc1 %s" % lab("ypath"))
    loadphase()
    k.e("s_barrier")
    k.lab(lab("xloop"))
    compphase()
    k.e("s_waitcnt vmcnt(12)")
    k.e("s_barrier")
    loadphase()
    k.e("s_barrier")
    k.e("s_add_u32 s37, s37, 1")
    k.e("s_cmp_lt_u32 s37, %d" % nk)
    k.e("s_cbranch_scc1 %s" % lab("xloop"))
    k.e("s_branch %s" % lab("done"))
    k.lab(lab("ypath"))
    k.e("s_barrier")
    k.lab(lab("loop"))
    loadphase()
    k.e("s_waitcnt vmcnt(12)")
    k.e("s_barrier")
    compphase()
    k.e("s_barrier")
    k.e("s_add_u32 s37, s37, 1")
    k.e("s_cmp_lt_u32 s37, %d" % nk)
    k.e("s_cbranch_scc1 %s" % lab("loop"))
    k.lab(lab("done"))
    k.e("s_waitcnt vmcnt(0) lgkmcnt(0)")
    k.e("s_barrier")
    stamp(k, 3)
    k.e("s_nop 7")
    ctx = dict(RB=RB, CB=CB, acc=acc, colblocks=colblocks, subs=subs, BM=BM, vend=vend, vres=None, ln='ws',
               vsum=vsum, vsq=vsq, vcs=None, Kdim=1024, lab=lab, vfr=vfr)

    def ws_stats():
        srd(k, 48, KA_WS, WS_PART, S * 256)
        t = vfr + 36
        dbase = [vfr + 40, vfr + 56, vfr + 72, 4]
        k.e("s_mul_i32 s25, s20, %d" % BM)
        k.e("s_mul_i32 s26, s23, %d" % (RB * 16))
        k.e("s_add_u32 s25, s25, s26")
        k.e("v_and_b32 v%d, 15, v0" % t)
        k.e("v_add_u32 v%d, s25, v%d" % (t, t))
        k.e("v_lshlrev_b32 v%d, 4, v%d" % (t, t))
        k.e("v_lshrrev_b32 v%d, 4, v0" % (t + 1))
        k.e("v_lshlrev_b32 v%d, 17, v%d" % (t + 1, t + 1))
        k.e("v_add_u32 v%d, v%d, v%d" % (t, t, t + 1))
        for j in range(4):
            if j:
                k.e("v_add_u32 v%d, 32768, v%d" % (t, t))
            for rb in range(RB):
                d = dbase[rb] + 4 * j
                k.e("buffer_load_dwordx4 v[%d:%d], v%d, s[48:51], 0 offen offset:%d" % (d, d + 3, t, 256 * rb))
        k.e("s_waitcnt vmcnt(0)")
        for rb in range(RB):
            d = dbase[rb]
            k.e("v_add_f32 v%d, v%d, v%d" % (vsum + rb, d, d + 2))
            k.e("v_add_f32 v%d, v%d, v%d" % (vsq + rb, d + 1, d + 3))
            for j in range(2, 8):
                k.e("v_add_f32 v%d, v%d, v%d" % (vsum + rb, vsum + rb, d + 2 * j))
                k.e("v_add_f32 v%d, v%d, v%d" % (vsq + rb, vsq + rb, d + 2 * j + 1))
        ctx["vtmp"] = vfr + 40
        ln_finish(k, ctx)
    ctx["ws_stats"] = ws_stats
    epi_swiglu(k, ctx)
    stamp_store(k, 4, 2)
    k.lab(lab("end"))
    k.e("s_endpgm")
    return k


def build():
    ks = []
    ks.append(gen_gemm("g1_kernel", 128, 2, 2, 1024, KA_X, 0,
                       [(KA_WQKV, 0, 3072, 128, 192), (KA_WQKV, 256, 3072, 64, 192)],
                       [(0, 4, 0), (0, 4, 1), (0, 4, 2), (0, 4, 3), (1, 2, 0), (1, 2, 1)], 16,
                       epi_store_factory(3072, KA_WS, WS_QKV, S * 3072 * 2, groups=[[0, 1, 2, 3], [4, 5]]), (4, 8), NL=4, ln='mfma'))
    ks.append(gen_attn("attn_kernel"))
    ks.append(gen_gemm("g2_kernel", 128, 2, 2, 1024, KA_WS, WS_O, [(KA_WO, 0, 1024, 64, 64)],
                       [(0, 2, 0), (0, 2, 1)], 16,
                       epi_store_factory(1024, KA_WS, WS_H, S * D * 2, part=True), (4, 8), NL=int(os.environ.get('NL24', '4')), res=(KA_X, 0)))
    if 'newg3' not in EXP:
        ks.append(gen_gemm("g3_kernel", 256, 4, 2, 1024, KA_WS, WS_H,
                           [(KA_W1, 0, F, 128, 128), (KA_W3, 0, F, 128, 128)],
                           [(0, 4, j) for j in range(4)] + [(1, 4, j) for j in range(4)], 28, epi_swiglu, (4, 7), ln='ws', pp=True, npf=32))
    else:
        ks.append(gen_g3("g3_kernel"))
    ks.append(gen_gemm("g4_kernel", 128, 2, 2, F, KA_WS, WS_ACT, [(KA_W2, 0, 1024, 64, 64)],
                       [(0, 2, 0), (0, 2, 1)], 16,
                       epi_store_factory(1024, KA_OUT, 0, S * D * 2), (4, 8), NL=int(os.environ.get('NL24', '4')), res=(KA_WS, WS_H)))
    return ks


def main():
    ks = build()
    out = [HEADER.rstrip()]
    for k in ks:
        out.append("; @launch kernel=%s grid=(%d,%d,%d) block=(%d,%d,%d) lds=%d" % ((k.name,) + k.grid + k.block + (k.lds,)))
    out.append('.amdgcn_target "amdgcn-amd-amdhsa--gfx950"')
    out.append(".text")
    for k in ks:
        out.append(k.text())
    out.append('.section .rodata,"a"')
    for k in ks:
        out.append(".p2align 6")
        out.append(k.desc())
    open(sys.argv[1] if len(sys.argv) > 1 else "sequential_preLN__sliding_block__glu_gated_swiglu__prompt.s", "w").write("\n".join(out) + "\n")


if __name__ == "__main__":
    main()
```

```python
import sys, os
EXP = os.environ.get('EXP', '')
STFLAG = ' sc1'

S = 2048; D = 1024; F = 3584
MB = 1 << 20
WS_QKV = 4 * MB
WS_O = 16 * MB
WS_H = 20 * MB
WS_ACT = 28 * MB
WS_PART = 49 * MB
WS_CS = 48 * MB

KA_X, KA_WQKV, KA_WO, KA_BX, KA_W1, KA_W3, KA_W2, KA_OUT, KA_DBG, KA_WS = range(10)
PTR0 = 64

HEADER = """; Kernarg layout for this problem (80 bytes, ptrs only, base s[0:1]):
;   offset  72: d_ws      268435456 bytes workspace
"""


class Kern:
    def __init__(self, name, grid, block, lds, nvgpr, nsgpr=100):
        self.name = name; self.grid = grid; self.block = block; self.lds = lds
        self.nvgpr = nvgpr; self.nsgpr = nsgpr
        self.lines = []

    def e(self, s):
        for ln in s.strip().split("\n"):
            if ln.strip():
                self.lines.append("    " + ln.strip())

    def lab(self, l):
        self.lines.append(l + ":")

    def text(self):
        out = [".globl %s" % self.name, ".p2align 8", ".type %s,@function" % self.name, "%s:" % self.name]
        return "\n".join(out + self.lines)

    def desc(self):
        nv = self.nvgpr
        return """.amdhsa_kernel %s
  .amdhsa_next_free_vgpr %d
  .amdhsa_next_free_sgpr %d
  .amdhsa_accum_offset %d
  .amdhsa_group_segment_fixed_size 0
  .amdhsa_kernarg_size 80
  .amdhsa_user_sgpr_count 2
  .amdhsa_user_sgpr_kernarg_segment_ptr 1
  .amdhsa_system_sgpr_workgroup_id_x 1
.end_amdhsa_kernel""" % (self.name, nv, self.nsgpr, (nv + 3) // 4 * 4)


def load_ptrs(k):
    k.e("s_load_dwordx16 s[64:79], s[0:1], 0")
    k.e("s_load_dwordx4 s[80:83], s[0:1], 64")
    k.e("s_waitcnt lgkmcnt(0)")


def srd(k, sreg, slot, off, nbytes):
    p = PTR0 + 2 * slot
    if off:
        k.e("s_add_u32 s%d, s%d, %d" % (sreg, p, off))
        k.e("s_addc_u32 s%d, s%d, 0" % (sreg + 1, p + 1))
        k.e("s_and_b32 s%d, s%d, 0xffff" % (sreg + 1, sreg + 1))
    else:
        k.e("s_mov_b32 s%d, s%d" % (sreg, p))
        k.e("s_and_b32 s%d, s%d, 0xffff" % (sreg + 1, p + 1))
    k.e("s_mov_b32 s%d, %d" % (sreg + 2, nbytes))
    k.e("s_mov_b32 s%d, 0x00020000" % (sreg + 3))


def stamp(k, i):
    if 'stamp' in EXP:
        k.e("s_memrealtime s[%d:%d]" % (86 + 2 * i, 87 + 2 * i))


def stamp_store(k, n, kidx):
    if 'stamp' not in EXP:
        return
    k.e("s_waitcnt vmcnt(0) lgkmcnt(0)")
    k.e("s_memrealtime s[%d:%d]" % (86 + 2 * n, 87 + 2 * n))
    k.e("s_waitcnt lgkmcnt(0)")
    srd(k, 56, KA_WS, 64 * MB + kidx * 65536, 65536)
    k.e("s_lshl_b32 s60, s2, 6")
    k.e("v_mov_b32 v1, s60")
    for i in range(n + 1):
        k.e("v_mov_b32 v2, s%d" % (86 + 2 * i))
        k.e("buffer_store_dword v2, v1, s[56:59], 0 offen offset:%d" % (4 * i))


def f3(k):
    return (k & 3) | ((k >> 1) & 4)


def gen_gemm(name, BM, WM, WN, Kdim, a_slot, a_off, subs, colblocks, ntn, epi, grp, nstages=6, NL=0, ln=None, res=None, pp=False, npf=0):
    NWC = WM * WN
    NW = NL if NL else NWC
    RB = BM // WM // 16
    CB = len(colblocks)
    ntm = S // BM
    nwg = ntm * ntn
    nk = Kdim // 64
    sub_lds = []
    o = BM * 128
    for sb in subs:
        sub_lds.append(o); o += 64 * sb[3] * 2
    STAGE = o
    NS = min(nstages, 163840 // STAGE)
    assert NS >= 2 and STAGE <= 65536
    k = Kern(name, (nwg + npf, 1, 1), (64 * (NWC + NL), 1, 1), NS * STAGE, 0)
    lab = lambda s: "%s_%s" % (name, s)
    k.e("s_cmp_ge_u32 s2, %d" % (nwg + npf))
    k.e("s_cbranch_scc1 %s" % lab("end"))
    stamp(k, 0)
    load_ptrs(k)
    if npf:
        k.e("s_cmp_lt_u32 s2, %d" % nwg)
        k.e("s_cbranch_scc1 %s" % lab("main"))
        srd(k, 4, KA_W2, 0, F * D * 2)
        per = F * D * 2 // npf
        nthr = 64 * (NWC + NL)
        assert per % (nthr * 16) == 0
        k.e("s_sub_u32 s20, s2, %d" % nwg)
        k.e("s_mul_i32 s20, s20, %d" % per)
        k.e("v_lshlrev_b32 v1, 4, v0")
        k.e("v_add_u32 v1, s20, v1")
        for i in range(per // (nthr * 16)):
            k.e("buffer_load_dwordx4 v[%d:%d], v1, s[4:7], 0 offen" % (8 + 4 * i, 11 + 4 * i))
            k.e("v_add_u32 v1, %d, v1" % (nthr * 16))
        k.e("s_waitcnt vmcnt(0)")
        k.e("s_endpgm")
        k.lab(lab("main"))
    srd(k, 4, a_slot, a_off, S * Kdim * 2)
    for i, sb in enumerate(subs):
        srd(k, 8 + 4 * i, sb[0], sb[1], Kdim * sb[2] * 2 - sb[1])
    gm, gn = grp
    assert gm * gn * 8 == nwg
    k.e("s_and_b32 s25, s2, 7")
    k.e("s_lshr_b32 s26, s2, 3")
    ng = ntm // gm
    k.e("s_and_b32 s20, s25, %d" % (ng - 1))
    k.e("s_mul_i32 s20, s20, %d" % gm)
    k.e("s_and_b32 s27, s26, %d" % (gm - 1))
    k.e("s_add_u32 s20, s20, s27")
    k.e("s_lshr_b32 s21, s25, %d" % (ng.bit_length() - 1))
    k.e("s_mul_i32 s21, s21, %d" % gn)
    k.e("s_lshr_b32 s27, s26, %d" % (gm.bit_length() - 1))
    k.e("s_add_u32 s21, s21, s27")
    k.e("v_lshrrev_b32 v1, 6, v0")
    k.e("s_nop 0")
    k.e("v_readfirstlane_b32 s19, v1")
    k.e("s_and_b32 s23, s19, %d" % (WM - 1))
    k.e("s_lshr_b32 s24, s19, %d" % (WM.bit_length() - 1))
    k.e("s_and_b32 s24, s24, %d" % (WN - 1))
    if NL:
        k.e("s_sub_u32 s22, s19, %d" % NWC)
        k.e("s_and_b32 s22, s22, %d" % (NL - 1))
    else:
        k.e("s_mov_b32 s22, s19")
    k.e("v_and_b32 v0, 63, v0")
    nA_w = BM // 8 // NW
    vA_dma = 2
    _nb = sum(64 * sb[3] * 2 // 1024 // NW for sb in subs)
    XORST = (NS == 2 and STAGE == 65536)
    _vx = vA_dma + nA_w + _nb + (1 if XORST else 2) * (2 + CB)
    if ln == 'mfma':
        _vx = (_vx + 2 * RB + 3) // 4 * 4 + 4 + 4 * CB
    elif ln:
        _vx = _vx + 2 * RB + 1
    if res:
        _vx = (_vx + 1) // 2 * 2 + 2 * RB * CB
    _vfr = (_vx + 3) // 4 * 4
    T0, T1, T2 = _vfr, _vfr + 1, _vfr + 2
    k.e("""
    v_lshrrev_b32 v1, 3, v0
    v_and_b32 v%d, 7, v0
    v_xor_b32 v%d, v%d, v1
    v_lshlrev_b32 v%d, 4, v%d
    """ % (T0, T0, T0, T0, T0))
    k.e("s_mul_i32 s25, s22, %d" % (nA_w * 8))
    k.e("s_mul_i32 s26, s20, %d" % BM)
    k.e("s_add_u32 s25, s25, s26")
    k.e("v_add_u32 v1, s25, v1")
    k.e("s_mov_b32 s26, %d" % (Kdim * 2))
    k.e("v_mul_lo_u32 v1, v1, s26")
    k.e("v_add_u32 v%d, v1, v%d" % (vA_dma, T0))
    for t in range(1, nA_w):
        k.e("v_add_u32 v%d, %d, v%d" % (vA_dma + t, t * 8 * Kdim * 2, vA_dma))
    bdma = []
    vb = vA_dma + nA_w
    for si, (slot, off, ldb, width, tnmul) in enumerate(subs):
        pitch = width * 2
        nB = 64 * pitch // 1024
        assert nB % NW == 0
        nB_w = nB // NW
        rows_per = 1024 // pitch
        cpr = pitch // 16
        for t in range(nB_w):
            k.e("s_mul_i32 s25, s22, %d" % (nB_w * rows_per))
            k.e("s_add_u32 s25, s25, %d" % (t * rows_per))
            k.e("v_lshrrev_b32 v1, %d, v0" % (cpr.bit_length() - 1))
            k.e("v_add_u32 v1, s25, v1")
            if pitch >= 256:
                k.e("v_and_b32 v%d, 3, v1" % T0)
                k.e("v_lshrrev_b32 v%d, 1, v1" % T1)
                k.e("v_and_b32 v%d, 4, v%d" % (T1, T1))
            else:
                k.e("v_bfe_u32 v%d, v1, 1, 1" % T0)
                k.e("v_lshrrev_b32 v%d, 2, v1" % T1)
                k.e("v_and_b32 v%d, 2, v%d" % (T1, T1))
            k.e("v_or_b32 v%d, v%d, v%d" % (T0, T0, T1))
            k.e("v_lshlrev_b32 v%d, 1, v%d" % (T0, T0))
            k.e("v_and_b32 v%d, %d, v0" % (T1, cpr - 1))
            k.e("v_xor_b32 v%d, v%d, v%d" % (T0, T0, T1))
            k.e("v_lshlrev_b32 v%d, 4, v%d" % (T0, T0))
            k.e("s_mov_b32 s26, %d" % (ldb * 2))
            k.e("v_mul_lo_u32 v1, v1, s26")
            k.e("v_add_u32 v1, v1, v%d" % T0)
            k.e("s_mul_i32 s26, s21, %d" % (tnmul * 2))
            k.e("v_add_u32 v%d, s26, v1" % vb)
            bdma.append((si, t, vb, nB_w))
            vb += 1
    _iB0 = len(k.lines)
    NAD = 2 + CB
    vAb = vb
    vAr = vAb if XORST else vAb + NAD
    k.e("""
    v_and_b32 v1, 15, v0
    v_lshlrev_b32 v1, 7, v1
    v_lshrrev_b32 v%d, 4, v0
    v_and_b32 v%d, 7, v0
    """ % (T0, T1))
    k.e("s_mul_i32 s25, s23, %d" % (RB * 16 * 128))
    k.e("v_add_u32 v1, s25, v1")
    k.e("v_xor_b32 v%d, v%d, v%d" % (T2, T0, T1))
    k.e("v_lshlrev_b32 v%d, 4, v%d" % (T2, T2))
    k.e("v_add_u32 v%d, v1, v%d" % (vAb, T2))
    k.e("v_or_b32 v%d, 4, v%d" % (T0, T0))
    k.e("v_xor_b32 v%d, v%d, v%d" % (T2, T0, T1))
    k.e("v_lshlrev_b32 v%d, 4, v%d" % (T2, T2))
    k.e("v_add_u32 v%d, v1, v%d" % (vAb + 1, T2))
    for cb, (si, pmul, padd) in enumerate(colblocks):
        pitch = subs[si][3] * 2
        k.e("""
        v_lshrrev_b32 v1, 4, v0
        v_lshlrev_b32 v1, 3, v1
        v_bfe_u32 v%d, v0, 2, 2
        v_add_u32 v1, v1, v%d
        """ % (T0, T0))
        if pitch >= 256:
            k.e("v_bfe_u32 v%d, v0, 4, 1" % T1)
            k.e("v_lshlrev_b32 v%d, 2, v%d" % (T1, T1))
            k.e("v_or_b32 v%d, v%d, v%d" % (T1, T1, T0))
        else:
            k.e("v_bfe_u32 v%d, v0, 3, 1" % T1)
            k.e("v_bfe_u32 v%d, v0, 4, 1" % T2)
            k.e("v_lshlrev_b32 v%d, 1, v%d" % (T2, T2))
            k.e("v_or_b32 v%d, v%d, v%d" % (T1, T1, T2))
        k.e("s_mul_i32 s25, s24, %d" % pmul)
        k.e("s_add_u32 s25, s25, %d" % padd)
        k.e("v_xor_b32 v%d, s25, v%d" % (T1, T1))
        k.e("v_lshlrev_b32 v%d, 5, v%d" % (T1, T1))
        k.e("s_mov_b32 s26, %d" % pitch)
        k.e("v_mul_lo_u32 v1, v1, s26")
        k.e("v_and_b32 v%d, 3, v0" % T2)
        k.e("v_lshlrev_b32 v%d, 3, v%d" % (T2, T2))
        k.e("v_add3_u32 v%d, v1, v%d, v%d" % (vAb + 2 + cb, T1, T2))
    vBr = vAr + 2
    vx = vAr + NAD
    vsum = vsq = vones = vcs = vres = None
    if ln:
        vsum = vx; vsq = vx + RB; vx += 2 * RB
        if ln == 'mfma':
            vx = (vx + 3) // 4 * 4
            vones = vx; vx += 4
            vcs = vx; vx += 4 * CB
        else:
            vones = vx; vx += 1
    if res:
        vx = (vx + 1) // 2 * 2
        vres = vx; vx += 2 * RB * CB
    vfr = (vx + 3) // 4 * 4
    fA = lambda s, rb: vfr + (s * RB + rb) * 4
    fB = lambda s, cb: vfr + 2 * RB * 4 + (s * CB + cb) * 4
    vacc = vfr + 2 * RB * 4 + 2 * CB * 4
    assert vfr == _vfr
    acc = lambda rb, cb: vacc + (rb * CB + cb) * 4
    vend = vacc + RB * CB * 4
    k.nvgpr = vend
    assert vend <= 256
    ctx = dict(ws_stats=lambda: ws_stats(), RB=RB, CB=CB, acc=acc, colblocks=colblocks, subs=subs, BM=BM, vend=vend, vres=vres, ln=ln,
               vsum=vsum, vsq=vsq, vcs=vcs, Kdim=Kdim, lab=lab, vfr=vfr)
    def ws_stats():
        srd(k, 48, KA_WS, WS_PART, S * 256)
        t = vfr + 36
        dbase = [vfr + 40, vfr + 56, vfr + 72, 4]
        assert RB == 4 and vsum >= 20
        k.e("s_mul_i32 s25, s20, %d" % BM)
        k.e("s_mul_i32 s26, s23, %d" % (RB * 16))
        k.e("s_add_u32 s25, s25, s26")
        k.e("v_and_b32 v%d, 15, v0" % t)
        k.e("v_add_u32 v%d, s25, v%d" % (t, t))
        k.e("v_lshlrev_b32 v%d, 4, v%d" % (t, t))
        k.e("v_lshrrev_b32 v%d, 4, v0" % (t + 1))
        k.e("v_lshlrev_b32 v%d, 17, v%d" % (t + 1, t + 1))
        k.e("v_add_u32 v%d, v%d, v%d" % (t, t, t + 1))
        for j in range(4):
            if j:
                k.e("v_add_u32 v%d, 32768, v%d" % (t, t))
            for rb in range(RB):
                d = dbase[rb] + 4 * j
                k.e("buffer_load_dwordx4 v[%d:%d], v%d, s[48:51], 0 offen offset:%d" % (d, d + 3, t, 256 * rb))
        k.e("s_waitcnt vmcnt(0)")
        for rb in range(RB):
            d = dbase[rb]
            k.e("v_add_f32 v%d, v%d, v%d" % (vsum + rb, d, d + 2))
            k.e("v_add_f32 v%d, v%d, v%d" % (vsq + rb, d + 1, d + 3))
            for j in range(2, 8):
                k.e("v_add_f32 v%d, v%d, v%d" % (vsum + rb, vsum + rb, d + 2 * j))
                k.e("v_add_f32 v%d, v%d, v%d" % (vsq + rb, vsq + rb, d + 2 * j + 1))
        ctx["vtmp"] = vfr + 40
        ln_finish(k, ctx)

    def zero_acc():
        for r in range(vacc, vend):
            k.e("v_mov_b32 v%d, 0" % r)
    if ln != 'ws':
        zero_acc()
    if ln:
        for r in range(2 * RB if ln == 'mfma' else 0):
            k.e("v_mov_b32 v%d, 0" % (vsum + r))
        for r in range(4 if vcs else 1):
            k.e("v_mov_b32 v%d, 0x3f803f80" % (vones + r))
        if vcs:
            for r in range(4 * CB):
                k.e("v_mov_b32 v%d, 0" % (vcs + r))
    partB = k.lines[_iB0:]
    del k.lines[_iB0:]
    k.e("s_mov_b32 s30, 0")
    for i in range(len(subs)):
        k.e("s_mov_b32 s%d, 0" % (31 + i))
    k.e("s_mov_b32 s34, 0")
    k.e("s_mul_i32 s35, s22, %d" % (nA_w * 1024))
    for (si, t, vreg, nB_w) in bdma:
        if t == 0:
            k.e("s_mul_i32 s%d, s22, %d" % (44 + si, nB_w * 1024))
            k.e("s_add_u32 s%d, s%d, %d" % (44 + si, 44 + si, sub_lds[si]))
    nd = nA_w + len(bdma)

    def dma_items():
        it = []
        for t in range(nA_w):
            if t:
                pre = "s_add_u32 m0, s36, %d\ns_nop 0\n" % (t * 1024)
            else:
                pre = "s_add_u32 s36, s34, s35\ns_mov_b32 m0, s36\ns_nop 0\n"
            it.append(pre + "buffer_load_dwordx4 v%d, s[4:7], s30 offen lds" % (vA_dma + t))
        for (si, t, vreg, nB_w) in bdma:
            if t == 0:
                pre = "s_add_u32 s36, s34, s%d\ns_mov_b32 m0, s36\ns_nop 0\n" % (44 + si)
            else:
                pre = "s_add_u32 m0, s36, %d\ns_nop 0\n" % (t * 1024)
            it.append(pre + "buffer_load_dwordx4 v%d, s[%d:%d], s%d offen lds" % (vreg, 8 + 4 * si, 11 + 4 * si, 31 + si))
        tail = "s_add_u32 s30, s30, 128\n"
        for i, sb in enumerate(subs):
            tail += "s_add_u32 s%d, s%d, %d\n" % (31 + i, 31 + i, 64 * sb[2] * 2)
        tail += "s_add_u32 s34, s34, %d\ns_cmp_eq_u32 s34, %d\ns_cselect_b32 s34, 0, s34" % (STAGE, NS * STAGE)
        it[-1] += "\n" + tail
        return it

    def dma():
        for x in dma_items():
            k.e(x)

    def setaddr_items():
        if XORST:
            return ["v_xor_b32 v%d, %d, v%d" % (vAr + r, STAGE, vAr + r) for r in range(NAD)]
        it = ["v_add_u32 v%d, s38, v%d" % (vAr + r, vAb + r) for r in range(NAD)]
        it[-1] += "\ns_add_u32 s38, s38, %d\ns_cmp_eq_u32 s38, %d\ns_cselect_b32 s38, 0, s38" % (STAGE, NS * STAGE)
        return it

    def read_items(st, kk):
        it = []
        for rb in range(RB):
            it.append("ds_read_b128 v[%d:%d], v%d offset:%d" % (fA(st, rb), fA(st, rb) + 3, vAr + kk, rb * 2048))
        for cb, (si, pmul, padd) in enumerate(colblocks):
            pitch = subs[si][3] * 2
            base = sub_lds[si] + kk * 32 * pitch
            it.append("ds_read_b64_tr_b16 v[%d:%d], v%d offset:%d" % (fB(st, cb), fB(st, cb) + 1, vBr + cb, base))
            it.append("ds_read_b64_tr_b16 v[%d:%d], v%d offset:%d" % (fB(st, cb) + 2, fB(st, cb) + 3, vBr + cb, base + 4 * pitch))
        return it

    def stat_items(st):
        return []

    def mfmas(st, fill=(), late=()):
        fill = list(fill); late = list(late)
        ms = []
        for rb in range(RB):
            for cb in range(CB):
                a = acc(rb, cb)
                ms.append("v_mfma_f32_16x16x32_bf16 v[%d:%d], v[%d:%d], v[%d:%d], v[%d:%d]" % (
                    a, a + 3, fB(st, cb), fB(st, cb) + 3, fA(st, rb), fA(st, rb) + 3, a, a + 3))
        if vcs and 'nocs' not in EXP:
            for cb in range(CB):
                c = vcs + 4 * cb
                ms.append("v_mfma_f32_16x16x32_bf16 v[%d:%d], v[%d:%d], v[%d:%d], v[%d:%d]" % (
                    c, c + 3, fB(st, cb), fB(st, cb) + 3, vones, vones + 3, c, c + 3))
        n = len(ms)
        per = -(-len(fill) // n) if fill else 0
        perl = -(-len(late) // n) if late else 0
        for m in ms:
            k.e(m)
            for _ in range(per):
                if fill:
                    k.e(fill.pop(0))
            for _ in range(perl):
                if late:
                    k.e(late.pop(0))
        assert not fill and not late

    k.e("s_mov_b32 s37, 0")
    if NL:
        assert NS >= 3
        k.e("s_cmp_lt_u32 s19, %d" % NWC)
        k.e("s_cbranch_scc1 %s" % lab("comp"))
        if 'lprio' in EXP:
            k.e("s_setprio 2")
        for s_ in range(NS - 1):
            dma()
        LS = (ln == 'mfma')
        if LS:
            assert BM == 128 and NL == 4
            t = vfr
            k.e("v_lshrrev_b32 v%d, 1, v0" % (t + 22))
            k.e("s_lshl_b32 s25, s22, 5")
            k.e("v_add_u32 v%d, s25, v%d" % (t + 23, t + 22))
            k.e("v_lshlrev_b32 v%d, 7, v%d" % (t + 23, t + 23))
            k.e("v_and_b32 v%d, 1, v0" % (t + 24))
            k.e("v_lshlrev_b32 v%d, 6, v%d" % (t + 24, t + 24))
            k.e("v_add_u32 v%d, v%d, v%d" % (t + 23, t + 23, t + 24))
            k.e("v_lshrrev_b32 v%d, 1, v%d" % (t + 22, t + 22))
            for j in range(4):
                k.e("v_add_u32 v%d, %d, v%d" % (t + 24, j, t + 22))
                k.e("v_and_b32 v%d, 3, v%d" % (t + 24, t + 24))
                k.e("v_lshlrev_b32 v%d, 4, v%d" % (t + 24, t + 24))
                k.e("v_add_u32 v%d, v%d, v%d" % (t + 26 + j, t + 23, t + 24))
            k.e("v_mov_b32 v%d, 0" % (t + 20))
            k.e("v_mov_b32 v%d, 0" % (t + 21))
            k.e("v_mov_b32 v%d, 0x3f803f80" % vones)
            k.e("s_mov_b32 s39, 0")

            def lstats():
                if 'nolstats' in EXP:
                    return
                for j in range(4):
                    k.e("v_add_u32 v%d, s39, v%d" % (t + j, t + 26 + j))
                for j in range(4):
                    k.e("ds_read_b128 v[%d:%d], v%d" % (t + 4 + 4 * j, t + 7 + 4 * j, t + j))
                k.e("s_add_u32 s39, s39, %d\ns_cmp_eq_u32 s39, %d\ns_cselect_b32 s39, 0, s39" % (STAGE, NS * STAGE))
                for j in range(16):
                    if j % 4 == 0:
                        k.e("s_waitcnt lgkmcnt(%d)" % (3 - j // 4))
                    d = t + 4 + j
                    k.e("v_dot2c_f32_bf16 v%d, v%d, v%d" % (t + 20, d, vones))
                    k.e("v_dot2c_f32_bf16 v%d, v%d, v%d" % (t + 21, d, d))
        k.e("s_waitcnt vmcnt(%d)" % ((NS - 2) * nd))
        k.e("s_barrier")
        if LS:
            lstats()
        k.lab(lab("lloop"))
        k.e("s_waitcnt vmcnt(%d)" % ((NS - 3) * nd))
        k.e("s_barrier")
        dma()
        k.e("s_add_u32 s37, s37, 1")
        k.e("s_cmp_lt_u32 s37, %d" % nk)
        if LS:
            k.e("s_cbranch_scc0 %s" % lab("ldone"))
            lstats()
            k.e("s_branch %s" % lab("lloop"))
            k.lab(lab("ldone"))
            k.e("s_waitcnt vmcnt(0)")
            for v in (t + 20, t + 21):
                k.e("ds_swizzle_b32 v%d, v%d offset:0x041F" % (t + 22, v))
                k.e("s_waitcnt lgkmcnt(0)")
                k.e("v_add_f32 v%d, v%d, v%d" % (v, v, t + 22))
            k.e("s_barrier")
            k.e("v_lshrrev_b32 v%d, 1, v0" % (t + 22))
            k.e("s_lshl_b32 s25, s22, 5")
            k.e("v_add_u32 v%d, s25, v%d" % (t + 22, t + 22))
            k.e("v_lshlrev_b32 v%d, 3, v%d" % (t + 22, t + 22))
            k.e("ds_write_b64 v%d, v[%d:%d]" % (t + 22, t + 20, t + 21))
            k.e("s_waitcnt lgkmcnt(0)")
            k.e("s_barrier")
        else:
            k.e("s_cbranch_scc1 %s" % lab("lloop"))
            k.e("s_waitcnt vmcnt(0)")
        k.e("s_endpgm")
        k.lab(lab("comp"))
        k.lines.extend(partB)
        if 'prio' in EXP:
            k.e("s_setprio 2")
        if res:
            res_prefetch(k, ctx, res)
        stamp(k, 1)
        k.e("s_mov_b32 s38, 0")
        for x in setaddr_items():
            k.e(x)
        k.e("s_barrier")
        stamp(k, 2)
        for x in read_items(0, 0):
            k.e(x)
        k.lab(lab("loop"))
        k.e("s_waitcnt lgkmcnt(0)")
        mfmas(0, read_items(1, 1), stat_items(0))
        k.e("s_barrier")
        k.e("s_waitcnt lgkmcnt(0)")
        mfmas(1, setaddr_items() + read_items(0, 0), stat_items(1))
    elif pp:
        assert XORST and NWC == 8
        dma()
        k.lines.extend(partB)
        zero_acc()
        stamp(k, 1)
        k.e("s_waitcnt vmcnt(0)")
        k.e("s_barrier")
        k.e("s_cmp_ge_u32 s19, 4")
        k.e("s_cbranch_scc1 %s" % lab("ypath"))

        NSPLIT = int(os.environ.get('NSPLIT', '8'))

        def loadphase(dm, rf=False):
            if not rf:
                for x in dm:
                    k.e(x)
            for x in read_items(0, 0) + read_items(1, 1):
                k.e(x)
            if rf:
                for x in dm:
                    k.e(x)
            for x in setaddr_items():
                k.e(x)
            k.e("s_waitcnt lgkmcnt(0)")
        RFX = 'rfx' in EXP; RFY = 'rfy' in EXP

        def compphase(dm):
            mfmas(0, dm)
            mfmas(1)
        di = dma_items()
        ny = len(di) - NSPLIT
        loadphase(di[:NSPLIT], RFX)
        k.e("s_barrier")
        k.lab(lab("xloop"))
        compphase(di[NSPLIT:])
        k.e("s_waitcnt vmcnt(0)")
        k.e("s_barrier")
        loadphase(di[:NSPLIT], RFX)
        k.e("s_barrier")
        k.e("s_add_u32 s37, s37, 1")
        k.e("s_cmp_lt_u32 s37, %d" % nk)
        k.e("s_cbranch_scc1 %s" % lab("xloop"))
        k.e("s_branch %s" % lab("done"))
        k.lab(lab("ypath"))
        for x in di[:ny]:
            k.e(x)
        k.e("s_barrier")
        k.lab(lab("loop"))
        loadphase(di[ny:], RFY)
        k.e("s_waitcnt vmcnt(0)")
        k.e("s_barrier")
        compphase(di[:ny])
        k.e("s_barrier")
    else:
        dma()
        if ln == 'ws':
            ws_stats()
            zero_acc()
        stamp(k, 1)
        k.e("s_mov_b32 s38, 0")
        if not XORST:
            for x in setaddr_items():
                k.e(x)
        k.lab(lab("loop"))
        k.e("s_waitcnt vmcnt(0)")
        k.e("s_barrier")
        for x in read_items(0, 0):
            k.e(x)
        k.e("s_waitcnt lgkmcnt(0)")
        mfmas(0, read_items(1, 1) + dma_items(), stat_items(0))
        k.e("s_waitcnt lgkmcnt(0)")
        mfmas(1, setaddr_items(), stat_items(1))
    k.e("s_add_u32 s37, s37, 1")
    k.e("s_cmp_lt_u32 s37, %d" % nk)
    k.e("s_cbranch_scc1 %s" % lab("loop"))
    k.lab(lab("done"))
    k.e("s_waitcnt vmcnt(0) lgkmcnt(0)")
    if not NL:
        k.e("s_barrier")
    stamp(k, 3)
    k.e("s_nop 7")
    if ln == 'mfma':
        k.e("s_barrier")
        k.e("s_barrier")
        k.e("v_and_b32 v2, 15, v0")
        k.e("s_mul_i32 s25, s23, %d" % (RB * 16))
        k.e("v_add_u32 v2, s25, v2")
        k.e("v_lshlrev_b32 v2, 3, v2")
        for rb in range(RB):
            k.e("ds_read_b32 v%d, v2 offset:%d" % (vsum + rb, rb * 128))
            k.e("ds_read_b32 v%d, v2 offset:%d" % (vsq + rb, rb * 128 + 4))
        k.e("s_waitcnt lgkmcnt(0)")
        ln_finish(k, ctx, reduce=False)
    epi(k, ctx)
    stamp_store(k, 4, {'g1': 0, 'g2': 1, 'g3': 2, 'g4': 3}[name[:2]])
    k.lab(lab("end"))
    k.e("s_endpgm")
    return k


def row_base(k, c, ldc, va=1, vb=2):
    k.e("s_mul_i32 s25, s20, %d" % c["BM"])
    k.e("s_mul_i32 s26, s23, %d" % (c["RB"] * 16))
    k.e("s_add_u32 s25, s25, s26")
    k.e("v_and_b32 v%d, 15, v0" % va)
    k.e("v_add_u32 v%d, s25, v%d" % (va, va))
    k.e("s_mov_b32 s26, %d" % (ldc * 2))
    k.e("v_mul_lo_u32 v%d, v%d, s26" % (va, va))
    k.e("v_lshrrev_b32 v%d, 4, v0" % vb)
    k.e("v_lshlrev_b32 v%d, 3, v%d" % (vb, vb))
    k.e("v_add_u32 v%d, v%d, v%d" % (va, va, vb))


def col_off(k, c, cb, sreg, cmul):
    si, pmul, padd = c["colblocks"][cb]
    sb = sum(s[3] for s in c["subs"][:si])
    k.e("s_mul_i32 s%d, s21, %d" % (sreg, cmul * 2))
    k.e("s_mul_i32 s26, s24, %d" % (pmul * 32))
    k.e("s_add_u32 s%d, s%d, s26" % (sreg, sreg))
    k.e("s_add_u32 s%d, s%d, %d" % (sreg, sreg, (sb + padd * 16) * 2))


def res_prefetch(k, c, res):
    RB, CB = c["RB"], c["CB"]
    srd(k, 48, res[0], res[1], S * D * 2)
    t = c["vfr"]
    row_base(k, c, D, t, t + 1)
    tot = sum(s[3] for s in c["subs"])
    for cb in range(CB):
        col_off(k, c, cb, 25, tot)
        for rb in range(RB):
            k.e("v_add_u32 v%d, s25, v%d" % (t + 2, t))
            if rb:
                k.e("v_add_u32 v%d, %d, v%d" % (t + 2, rb * 16 * D * 2, t + 2))
            r = c["vres"] + 2 * (rb * CB + cb)
            k.e("buffer_load_dwordx2 v[%d:%d], v%d, s[48:51], 0 offen" % (r, r + 1, t + 2))


def ln_finish(k, c, reduce=True):
    RB = c["RB"]
    invK = {1024: "0x3a800000"}[c["Kdim"]]
    T = c.get("vtmp", 2)
    vs = [c["vsum"] + rb for rb in range(RB)] + [c["vsq"] + rb for rb in range(RB)]
    if reduce:
        for j, v in enumerate(vs):
            k.e("ds_swizzle_b32 v%d, v%d offset:0x401F" % (T + j, v))
        k.e("s_waitcnt lgkmcnt(0)")
        for j, v in enumerate(vs):
            k.e("v_add_f32 v%d, v%d, v%d" % (v, v, T + j))
        for j, v in enumerate(vs):
            k.e("v_mov_b32 v%d, v%d" % (T + j, v))
        k.e("s_nop 1")
        for j, v in enumerate(vs):
            k.e("v_permlane32_swap_b32 v%d, v%d" % (v, T + j))
        k.e("s_nop 1")
        for j, v in enumerate(vs):
            k.e("v_add_f32 v%d, v%d, v%d" % (v, v, T + j))
    R = range(RB)
    m = lambda rb: c["vsum"] + rb
    q = lambda rb: c["vsq"] + rb
    for rb in R:
        k.e("v_mul_f32 v%d, %s, v%d" % (m(rb), invK, m(rb)))
        k.e("v_mul_f32 v%d, %s, v%d" % (q(rb), invK, q(rb)))
    for rb in R:
        k.e("v_fma_f32 v%d, -v%d, v%d, v%d" % (q(rb), m(rb), m(rb), q(rb)))
    for rb in R:
        k.e("v_cvt_pk_bf16_f32 v%d, v%d, v%d" % (T + rb, m(rb), q(rb)))
    for rb in R:
        k.e("v_lshlrev_b32 v%d, 16, v%d" % (m(rb), T + rb))
        k.e("v_and_b32 v%d, 0xffff0000, v%d" % (q(rb), T + rb))
    for rb in R:
        k.e("v_add_f32 v%d, 0x3727c5ac, v%d" % (q(rb), q(rb)))
    for rb in R:
        k.e("v_cvt_pk_bf16_f32 v%d, v%d, v%d" % (T + rb, q(rb), q(rb)))
    for rb in R:
        k.e("v_lshlrev_b32 v%d, 16, v%d" % (q(rb), T + rb))
    for rb in R:
        k.e("v_sqrt_f32 v%d, v%d" % (q(rb), q(rb)))
    k.e("s_nop 0")
    for rb in R:
        k.e("v_cvt_pk_bf16_f32 v%d, v%d, v%d" % (T + rb, q(rb), q(rb)))
    for rb in R:
        k.e("v_lshlrev_b32 v%d, 16, v%d" % (q(rb), T + rb))
    for rb in R:
        k.e("v_rcp_f32 v%d, v%d" % (q(rb), q(rb)))
    k.e("s_nop 0")


def ln_apply(k, c, a, rb, cs):
    m = c["vsum"] + rb; q = c["vsq"] + rb
    for r in range(4):
        k.e("v_fma_f32 v%d, -v%d, v%d, v%d" % (a + r, m, cs + r, a + r))
    for r in range(4):
        k.e("v_mul_f32 v%d, v%d, v%d" % (a + r, a + r, q))


class LdsStore:
    def __init__(self, k, c, groups, ldc, srd_reg, NWC, vbase):
        self.k = k; self.c = c; self.groups = groups; self.ldc = ldc; self.srd = srd_reg
        self.off = []; o = 0
        for g in groups:
            self.off.append(o); o += 64 * len(g) * 32
        self.wbytes = o
        self.aw = {}
        v = vbase
        k.e("s_mul_i32 s27, s19, %d" % self.wbytes)
        for gi, g in enumerate(groups):
            CH = 2 * len(g); pitch = CH * 16
            for j, cb in enumerate(g):
                k.e("v_and_b32 v%d, 15, v0" % v)
                k.e("v_and_b32 v%d, %d, v0" % (v + 1, CH - 1))
                k.e("v_bfe_u32 v%d, v0, 5, 1" % (v + 2))
                k.e("v_or_b32 v%d, %d, v%d" % (v + 2, 2 * j, v + 2))
                k.e("v_xor_b32 v%d, v%d, v%d" % (v + 1, v + 1, v + 2))
                k.e("v_lshlrev_b32 v%d, 4, v%d" % (v + 1, v + 1))
                k.e("v_mul_u32_u24 v%d, %d, v%d" % (v, pitch, v))
                k.e("v_bfe_u32 v%d, v0, 4, 1" % (v + 2))
                k.e("v_lshlrev_b32 v%d, 3, v%d" % (v + 2, v + 2))
                k.e("v_add3_u32 v%d, v%d, v%d, v%d" % (v, v, v + 1, v + 2))
                k.e("v_add_u32 v%d, s27, v%d" % (v, v))
                self.aw[cb] = (v, gi, pitch); v += 1
        self.vfree = v + 2

    def put(self, rb, cb, a):
        v, gi, pitch = self.aw[cb]
        self.k.e("ds_write_b64 v%d, v[%d:%d] offset:%d" % (v, a, a + 1, self.off[gi] + rb * 16 * pitch))

    def flush(self, colbase_fn, vd):
        k = self.k; c = self.c
        k.e("s_waitcnt lgkmcnt(0)")
        v = self.vfree
        for gi, g in enumerate(self.groups):
            CH = 2 * len(g); pitch = CH * 16; rp = 64 // CH
            lg = CH.bit_length() - 1
            k.e("v_lshrrev_b32 v%d, %d, v0" % (v, lg))
            k.e("v_and_b32 v%d, %d, v0" % (v + 1, CH - 1))
            k.e("v_and_b32 v%d, %d, v%d" % (v + 2, CH - 1, v))
            k.e("v_xor_b32 v%d, v%d, v%d" % (v + 2, v + 2, v + 1))
            k.e("v_lshlrev_b32 v%d, 4, v%d" % (v + 2, v + 2))
            k.e("v_mul_u32_u24 v%d, %d, v%d" % (v + 3, pitch, v))
            k.e("v_add3_u32 v%d, v%d, v%d, s27" % (v + 2, v + 2, v + 3))
            k.e("s_mul_i32 s25, s20, %d" % c["BM"])
            k.e("s_mul_i32 s26, s23, %d" % (c["RB"] * 16))
            k.e("s_add_u32 s25, s25, s26")
            k.e("v_add_u32 v%d, s25, v%d" % (v, v))
            k.e("s_mov_b32 s26, %d" % (self.ldc * 2))
            k.e("v_mul_lo_u32 v%d, v%d, s26" % (v, v))
            k.e("v_lshlrev_b32 v%d, 4, v%d" % (v + 1, v + 1))
            colbase_fn(k, gi, 25)
            k.e("v_add3_u32 v%d, v%d, v%d, s25" % (v, v, v + 1))
            nj = 64 // rp
            for j in range(nj):
                k.e("ds_read_b128 v[%d:%d], v%d offset:%d" % (vd + 4 * j, vd + 4 * j + 3, v + 2, self.off[gi] + j * rp * pitch))
            for j in range(nj):
                k.e("s_waitcnt lgkmcnt(%d)" % (nj - 1 - j))
                if j:
                    k.e("v_add_u32 v%d, %d, v%d" % (v, rp * self.ldc * 2, v))
                k.e("buffer_store_dwordx4 v[%d:%d], v%d, s[%d:%d], 0 offen%s" % (vd + 4 * j, vd + 4 * j + 3, v, self.srd, self.srd + 3, STFLAG))
            k.e("s_nop 1")


def epi_store_factory(ldc, c_slot, c_off, c_bytes, part=False, groups=None):
    def epi(k, c):
        RB, CB, acc = c["RB"], c["CB"], c["acc"]
        srd(k, 40, c_slot, c_off, c_bytes)
        PS = c["vfr"]
        if groups:
            tot = sum(s[3] for s in c["subs"])
            k.e("s_barrier")
            ls = LdsStore(k, c, groups, ldc, 40, 4, c["vfr"])
            for cb in range(CB):
                for rb in range(RB):
                    a = acc(rb, cb)
                    if c["ln"]:
                        ln_apply(k, c, a, rb, c["vcs"] + 4 * cb)
                    k.e("v_cvt_pk_bf16_f32 v%d, v%d, v%d" % (a, a, a + 1))
                    k.e("v_cvt_pk_bf16_f32 v%d, v%d, v%d" % (a + 1, a + 2, a + 3))
                    ls.put(rb, cb, a)
            ls.flush(lambda k, gi, sreg: col_off(k, c, groups[gi][0], sreg, tot), c["vfr"] + 16)
            return
        if part:
            for rb in range(RB):
                k.e("v_mov_b32 v%d, 0" % (PS + 2 * rb))
                k.e("v_mov_b32 v%d, 0" % (PS + 1 + 2 * rb))
        row_base(k, c, ldc)
        tot = sum(s[3] for s in c["subs"])
        for cb in range(CB):
            col_off(k, c, cb, 25, tot)
            k.e("v_add_u32 v3, s25, v1")
            for rb in range(RB):
                a = acc(rb, cb)
                if c["ln"]:
                    ln_apply(k, c, a, rb, c["vcs"] + 4 * cb)
                k.e("v_cvt_pk_bf16_f32 v%d, v%d, v%d" % (a, a, a + 1))
                k.e("v_cvt_pk_bf16_f32 v%d, v%d, v%d" % (a + 1, a + 2, a + 3))
                if c["vres"] is not None:
                    r = c["vres"] + 2 * (rb * CB + cb)
                    for j in range(2):
                        k.e("v_lshlrev_b32 v6, 16, v%d" % (a + j))
                        k.e("v_and_b32 v7, 0xffff0000, v%d" % (a + j))
                        k.e("v_lshlrev_b32 v8, 16, v%d" % (r + j))
                        k.e("v_and_b32 v9, 0xffff0000, v%d" % (r + j))
                        k.e("v_add_f32 v6, v6, v8")
                        k.e("v_add_f32 v7, v7, v9")
                        k.e("v_cvt_pk_bf16_f32 v%d, v6, v7" % (a + j))
                        if part:
                            k.e("v_lshlrev_b32 v6, 16, v%d" % (a + j))
                            k.e("v_and_b32 v7, 0xffff0000, v%d" % (a + j))
                            k.e("v_add_f32 v%d, v%d, v6" % (PS + 2 * rb, PS + 2 * rb))
                            k.e("v_fmac_f32 v%d, v6, v6" % (PS + 1 + 2 * rb))
                            k.e("v_add_f32 v%d, v%d, v7" % (PS + 2 * rb, PS + 2 * rb))
                            k.e("v_fmac_f32 v%d, v7, v7" % (PS + 1 + 2 * rb))
                k.e("v_add_u32 v4, %d, v3" % (rb * 16 * ldc * 2))
                k.e("buffer_store_dwordx2 v[%d:%d], v4, s[40:43], 0 offen" % (a, a + 1))
        if part:
            srd(k, 44, KA_WS, WS_PART, S * 256)
            for v in range(PS, PS + 2 * RB):
                k.e("ds_swizzle_b32 v2, v%d offset:0x401F" % v)
                k.e("s_waitcnt lgkmcnt(0)")
                k.e("v_add_f32 v%d, v%d, v2" % (v, v))
                k.e("v_mov_b32 v2, v%d" % v)
                k.e("s_nop 1")
                k.e("v_permlane32_swap_b32 v%d, v2" % v)
                k.e("v_add_f32 v%d, v%d, v2" % (v, v))
            k.e("s_mul_i32 s25, s20, %d" % c["BM"])
            k.e("s_mul_i32 s26, s23, %d" % (RB * 16))
            k.e("s_add_u32 s25, s25, s26")
            k.e("v_add_u32 v1, s25, v0")
            k.e("v_lshlrev_b32 v1, 4, v1")
            k.e("s_lshl_b32 s25, s21, 15")
            k.e("s_lshl_b32 s26, s24, 3")
            k.e("s_add_u32 s25, s25, s26")
            k.e("v_add_u32 v1, s25, v1")
            k.e("v_cmp_gt_u32 vcc, 16, v0")
            k.e("s_and_saveexec_b64 s[52:53], vcc")
            for rb in range(RB):
                k.e("v_add_u32 v2, %d, v1" % (rb * 256))
                k.e("buffer_store_dwordx2 v[%d:%d], v2, s[44:47], 0 offen" % (PS + 2 * rb, PS + 1 + 2 * rb))
            k.e("s_mov_b64 exec, s[52:53]")
    return epi


def epi_swiglu(k, c):
    RB, CB, acc, colblocks, subs = c["RB"], c["CB"], c["acc"], c["colblocks"], c["subs"]
    ldc = F
    srd(k, 40, KA_WS, WS_ACT, S * F * 2)
    srd(k, 44, KA_WS, WS_CS, 2 * F * 4)
    half = CB // 2
    width = subs[0][3]
    vc = c["vfr"]
    assert 8 * half <= 32
    k.e("v_lshrrev_b32 v2, 4, v0")
    k.e("v_lshlrev_b32 v2, 4, v2")
    for cb in range(half):
        si, pmul, padd = colblocks[cb]
        assert si == 0 and colblocks[cb + half] == (1, pmul, padd)
        k.e("s_mul_i32 s25, s21, %d" % (width * 4))
        k.e("s_mul_i32 s26, s24, %d" % (pmul * 64))
        k.e("s_add_u32 s25, s25, s26")
        k.e("s_add_u32 s25, s25, %d" % (padd * 64))
        k.e("v_add_u32 v3, s25, v2")
        k.e("buffer_load_dwordx4 v[%d:%d], v3, s[44:47], 0 offen" % (vc + 8 * cb, vc + 8 * cb + 3))
        k.e("v_add_u32 v3, %d, v3" % (F * 4))
        k.e("buffer_load_dwordx4 v[%d:%d], v3, s[44:47], 0 offen" % (vc + 8 * cb + 4, vc + 8 * cb + 7))
    c["ws_stats"]()
    stamp(k, 2)
    ls = LdsStore(k, c, [list(range(half))], ldc, 40, 8, c["vfr"] + 40)
    vr = c["vfr"] + 32
    for rb in range(RB):
        k.e("v_mul_f32 v%d, 0xbfb8aa3b, v%d" % (vr + rb, c["vsq"] + rb))
    for cb in range(half):
        si, pmul, padd = colblocks[cb]
        k.e("s_mul_i32 s25, s21, %d" % (width * 2))
        k.e("s_mul_i32 s26, s24, %d" % (pmul * 32))
        k.e("s_add_u32 s25, s25, s26")
        k.e("s_add_u32 s25, s25, %d" % (padd * 32))
        for rb in range(RB):
            g = acc(rb, cb); u = acc(rb, cb + half)
            m = c["vsum"] + rb; q = c["vsq"] + rb
            cg = vc + 8 * cb; cu = cg + 4
            for r in range(4):
                k.e("v_fma_f32 v%d, -v%d, v%d, v%d" % (g + r, m, cg + r, g + r))
            for r in range(4):
                k.e("v_mul_f32 v%d, v%d, v%d" % (4 + r, g + r, vr + rb))
            for r in range(4):
                k.e("v_exp_f32 v%d, v%d" % (4 + r, 4 + r))
            for r in range(4):
                k.e("v_fma_f32 v%d, -v%d, v%d, v%d" % (u + r, m, cu + r, u + r))
            for r in range(4):
                k.e("v_add_f32 v%d, 1.0, v%d" % (4 + r, 4 + r))
            for r in range(4):
                k.e("v_rcp_f32 v%d, v%d" % (4 + r, 4 + r))
            for r in range(4):
                k.e("v_mul_f32 v%d, v%d, v%d" % (g + r, g + r, u + r))
            k.e("v_mul_f32 v8, v%d, v%d" % (q, q))
            for r in range(4):
                k.e("v_mul_f32 v%d, v%d, v%d" % (4 + r, 4 + r, 8))
            for r in range(4):
                k.e("v_mul_f32 v%d, v%d, v%d" % (g + r, g + r, 4 + r))
            k.e("v_cvt_pk_bf16_f32 v%d, v%d, v%d" % (g, g, g + 1))
            k.e("v_cvt_pk_bf16_f32 v%d, v%d, v%d" % (g + 1, g + 2, g + 3))
            ls.put(rb, cb, g)

    def colbase(k, gi, sreg):
        si, pmul, padd = colblocks[0]
        k.e("s_mul_i32 s%d, s21, %d" % (sreg, width * 2))
        k.e("s_mul_i32 s26, s24, %d" % (pmul * 32))
        k.e("s_add_u32 s%d, s%d, s26" % (sreg, sreg))
    ls.flush(colbase, c["vfr"] + 56)


def gen_attn(name):
    MIMIC = 'mimic' in EXP
    NATT = 512
    NCS = 2 * F // 64
    NPF = 32
    NH = NCS + NPF
    nwg = NATT + NH
    KV_ROWS = 384
    K_LDS = 0
    V_LDS = KV_ROWS * 64
    k = Kern(name, (nwg, 1, 1), (256, 1, 1), 2 * KV_ROWS * 64, 0)
    lab = lambda s: "%s_%s" % (name, s)
    k.e("s_cmp_ge_u32 s2, %d" % nwg)
    k.e("s_cbranch_scc1 %s" % lab("end"))
    load_ptrs(k)
    if 'hlast' in EXP:
        k.e("s_sub_u32 s2, s2, %d" % NATT)
        k.e("s_cmp_lt_u32 s2, %d" % NH)
        k.e("s_cbranch_scc1 %s" % lab("cs"))
        k.e("s_add_u32 s2, s2, %d" % NATT)
    else:
        k.e("s_cmp_lt_u32 s2, %d" % NH)
        k.e("s_cbranch_scc1 %s" % lab("cs"))
        k.e("s_sub_u32 s2, s2, %d" % NH)
    stamp(k, 0)
    srd(k, 4, KA_WS, WS_QKV, S * 3 * D * 2)
    srd(k, 8, KA_WS, WS_O, S * D * 2)
    k.e("s_and_b32 s20, s2, 31")
    k.e("s_lshr_b32 s21, s2, 5")
    k.e("v_lshrrev_b32 v1, 6, v0")
    k.e("s_nop 0")
    k.e("v_readfirstlane_b32 s22, v1")
    k.e("v_and_b32 v0, 63, v0")
    k.e("""
    v_lshrrev_b32 v1, 2, v0
    v_and_b32 v2, 3, v0
    v_bfe_u32 v3, v0, 4, 2
    v_xor_b32 v2, v2, v3
    v_lshlrev_b32 v2, 4, v2
    s_lshl_b32 s23, s21, 7
    s_mul_i32 s24, s22, 96
    s_add_u32 s23, s23, s24
    s_sub_u32 s23, s23, 256
    v_add_u32 v1, s23, v1
    s_mov_b32 s24, %d
    v_mul_lo_u32 v1, v1, s24
    v_add_u32 v1, v1, v2
    s_lshl_b32 s24, s20, 6
    v_add_u32 v1, s24, v1
    s_mul_i32 s25, s22, 6144
    """ % (3 * D * 2))
    for mat, ldsb in ((1, K_LDS), (2, V_LDS)):
        for t in range(6):
            k.e("v_add_u32 v2, %d, v1" % (t * 16 * 3 * D * 2 + mat * D * 2))
            k.e("s_add_u32 m0, s25, %d" % (ldsb + t * 1024))
            k.e("s_nop 0")
            k.e("buffer_load_dwordx4 v2, s[4:7], 0 offen lds")
    k.e("""
    s_lshl_b32 s23, s21, 7
    s_lshl_b32 s24, s22, 5
    s_add_u32 s23, s23, s24
    v_and_b32 v1, 31, v0
    v_add_u32 v1, s23, v1
    s_mov_b32 s24, %d
    v_mul_lo_u32 v1, v1, s24
    v_lshrrev_b32 v2, 5, v0
    v_lshlrev_b32 v2, 4, v2
    s_lshl_b32 s24, s20, 6
    v_add3_u32 v1, v1, v2, s24
    buffer_load_dwordx4 v[4:7], v1, s[4:7], 0 offen
    buffer_load_dwordx4 v[8:11], v1, s[4:7], 0 offen offset:32
    v_and_b32 v1, 31, v0
    v_lshlrev_b32 v12, 6, v1
    v_bfe_u32 v2, v0, 2, 2
    v_lshrrev_b32 v3, 5, v0
    v_xor_b32 v13, v3, v2
    v_lshlrev_b32 v13, 4, v13
    v_add_u32 v13, v12, v13
    v_or_b32 v3, 2, v3
    v_xor_b32 v14, v3, v2
    v_lshlrev_b32 v14, 4, v14
    v_add_u32 v14, v12, v14
    s_lshl_b32 s24, s22, 11
    v_add_u32 v13, s24, v13
    v_add_u32 v14, s24, v14
    v_bfe_u32 v1, v0, 5, 1
    v_lshlrev_b32 v1, 2, v1
    v_bfe_u32 v2, v0, 2, 2
    v_add_u32 v1, v1, v2
    v_bfe_u32 v2, v0, 4, 1
    v_lshlrev_b32 v2, 1, v2
    v_bfe_u32 v3, v0, 1, 1
    v_or_b32 v2, v2, v3
    v_and_b32 v3, 1, v0
    v_lshlrev_b32 v3, 3, v3
    """ % (3 * D * 2))
    for j in range(4):
        k.e("v_add_u32 v19, %d, v1" % (8 * j))
        k.e("v_bfe_u32 v20, v19, 2, 2")
        k.e("v_xor_b32 v20, v20, v2")
        k.e("v_lshlrev_b32 v20, 4, v20")
        k.e("v_lshlrev_b32 v19, 6, v19")
        k.e("v_add3_u32 v%d, v19, v20, v3" % (15 + j))
        k.e("v_add_u32 v%d, s24, v%d" % (15 + j, 15 + j))
    k.e("s_waitcnt vmcnt(0)")
    k.e("s_barrier")
    stamp(k, 1)
    SB = 48
    k.e("ds_read_b128 v[20:23], v13 offset:%d" % K_LDS)
    k.e("ds_read_b128 v[24:27], v14 offset:%d" % K_LDS)
    for b in range(9):
        f = 20 + 8 * (b & 1); fn = 20 + 8 * ((b + 1) & 1)
        if b < 8:
            k.e("ds_read_b128 v[%d:%d], v13 offset:%d" % (fn, fn + 3, K_LDS + (b + 1) * 2048))
            k.e("ds_read_b128 v[%d:%d], v14 offset:%d" % (fn + 4, fn + 7, K_LDS + (b + 1) * 2048))
            k.e("s_waitcnt lgkmcnt(2)")
        else:
            k.e("s_waitcnt lgkmcnt(0)")
        s0 = SB + b * 16
        k.e("v_mfma_f32_32x32x16_bf16 v[%d:%d], v[%d:%d], v[4:7], 0" % (s0, s0 + 15, f, f + 3))
        k.e("v_mfma_f32_32x32x16_bf16 v[%d:%d], v[%d:%d], v[8:11], v[%d:%d]" % (s0, s0 + 15, f + 4, f + 7, s0, s0 + 15))
    k.e("s_nop 15")
    NSR = 144
    stamp(k, 2)
    if MIMIC:
        for r in range(0, NSR, 2):
            a = SB + r
            k.e("v_cvt_pk_bf16_f32 v36, v%d, v%d" % (a, a + 1))
            k.e("v_lshlrev_b32 v%d, 16, v36" % a)
            k.e("v_and_b32 v%d, 0xffff0000, v36" % (a + 1))
            k.e("v_mul_f32 v%d, 0x3e3504f3, v%d" % (a, a))
            k.e("v_mul_f32 v%d, 0x3e3504f3, v%d" % (a + 1, a + 1))
            k.e("v_cvt_pk_bf16_f32 v36, v%d, v%d" % (a, a + 1))
            k.e("v_lshlrev_b32 v%d, 16, v36" % a)
            k.e("v_and_b32 v%d, 0xffff0000, v36" % (a + 1))
        k.e("s_mov_b32 s26, 0x3fb8aa3b")
    else:
        k.e("s_mov_b32 s26, 0x3e8293ee")
    k.e("v_and_b32 v1, 31, v0")
    k.e("v_lshrrev_b32 v2, 5, v0")
    k.e("v_lshlrev_b32 v2, 2, v2")
    k.e("v_sub_u32 v1, v1, v2")
    k.e("v_mov_b32 v3, 0xce6e6b28")
    for r in range(16):
        c = (r & 3) + 8 * (r >> 2)
        k.e("v_cmp_ge_i32 vcc, v1, %d" % c)
        k.e("s_nop 1")
        k.e("v_cndmask_b32 v%d, v%d, v3, vcc" % (SB + r, SB + r))
        k.e("v_cndmask_b32 v%d, v3, v%d, vcc" % (SB + 128 + r, SB + 128 + r))
    k.e("s_lshl_b32 s23, s21, 2")
    k.e("s_add_u32 s23, s23, s22")
    k.e("s_cmp_ge_u32 s23, 8")
    k.e("s_cbranch_scc1 %s" % lab("nomask"))
    for b in range(8):
        k.e("s_cmp_lt_u32 s23, %d" % (8 - b))
        k.e("s_cbranch_scc0 %s" % lab("nm%d" % b))
        for r in range(16):
            k.e("v_mov_b32 v%d, v3" % (SB + b * 16 + r))
        k.lab(lab("nm%d" % b))
    k.lab(lab("nomask"))
    k.e("v_max_f32 v1, v%d, v%d" % (SB, SB + 1))
    for r in range(2, NSR, 2):
        k.e("v_max3_f32 v1, v1, v%d, v%d" % (SB + r, SB + r + 1))
    k.e("v_mov_b32 v2, v1")
    k.e("s_nop 1")
    k.e("v_permlane32_swap_b32 v1, v2")
    k.e("v_max_f32 v1, v1, v2")
    k.e("v_mul_f32 v1, s26, v1")
    k.e("v_mov_b32 v2, 0")
    k.e("v_mov_b32 v3, 0")
    PB = None
    for b in range(9):
        for r in range(16):
            a = SB + b * 16 + r
            k.e("v_fma_f32 v%d, v%d, s26, -v1" % (a, a))
            k.e("v_exp_f32 v%d, v%d" % (a, a))
        k.e("s_nop 0")
        if not MIMIC:
            for j in range(8):
                a = SB + b * 16 + 2 * j
                k.e("v_add_f32 v2, v2, v%d" % a)
                k.e("v_add_f32 v3, v3, v%d" % (a + 1))
                k.e("v_cvt_pk_bf16_f32 v%d, v%d, v%d" % (SB + b * 16 + j, a, a + 1))
    if MIMIC:
        for r in range(NSR):
            k.e("v_add_f32 v2, v2, v%d" % (SB + r))
    k.e("v_add_f32 v2, v2, v3")
    k.e("v_mov_b32 v3, v2")
    k.e("s_nop 1")
    k.e("v_permlane32_swap_b32 v2, v3")
    k.e("v_add_f32 v2, v2, v3")
    k.e("v_rcp_f32 v2, v2")
    k.e("s_nop 0")
    if MIMIC:
        for b in range(9):
            for j in range(8):
                a = SB + b * 16 + 2 * j
                k.e("v_mul_f32 v%d, v%d, v2" % (a, a))
                k.e("v_mul_f32 v%d, v%d, v2" % (a + 1, a + 1))
                k.e("v_cvt_pk_bf16_f32 v%d, v%d, v%d" % (SB + b * 16 + j, a, a + 1))
    OA = 192
    stamp(k, 3)
    for j in range(4):
        k.e("ds_read_b64_tr_b16 v[%d:%d], v%d offset:%d" % (20 + 2 * j, 21 + 2 * j, 15 + j, V_LDS))
    for b in range(9):
        f = 20 + 8 * (b & 1); fn = 20 + 8 * ((b + 1) & 1)
        if b < 8:
            for j in range(4):
                k.e("ds_read_b64_tr_b16 v[%d:%d], v%d offset:%d" % (fn + 2 * j, fn + 2 * j + 1, 15 + j, V_LDS + (b + 1) * 2048))
            k.e("s_waitcnt lgkmcnt(4)")
        else:
            k.e("s_waitcnt lgkmcnt(0)")
        p = SB + b * 16
        if b == 0:
            k.e("v_mfma_f32_32x32x16_bf16 v[%d:%d], v[%d:%d], v[%d:%d], 0" % (OA, OA + 15, f, f + 3, p, p + 3))
        else:
            k.e("v_mfma_f32_32x32x16_bf16 v[%d:%d], v[%d:%d], v[%d:%d], v[%d:%d]" % (OA, OA + 15, f, f + 3, p, p + 3, OA, OA + 15))
        k.e("v_mfma_f32_32x32x16_bf16 v[%d:%d], v[%d:%d], v[%d:%d], v[%d:%d]" % (OA, OA + 15, f + 4, f + 7, p + 4, p + 7, OA, OA + 15))
    k.e("""
    s_lshl_b32 s23, s21, 7
    s_lshl_b32 s24, s22, 5
    s_add_u32 s23, s23, s24
    v_and_b32 v1, 31, v0
    v_add_u32 v1, s23, v1
    v_lshlrev_b32 v1, 11, v1
    v_lshrrev_b32 v3, 5, v0
    v_lshlrev_b32 v3, 3, v3
    s_lshl_b32 s24, s20, 6
    v_add3_u32 v1, v1, v3, s24
    s_nop 7
    """)
    if not MIMIC:
        for r in range(16):
            k.e("v_mul_f32 v%d, v%d, v2" % (OA + r, OA + r))
    for j in range(4):
        k.e("v_cvt_pk_bf16_f32 v%d, v%d, v%d" % (208 + 2 * j, OA + 4 * j, OA + 1 + 4 * j))
        k.e("v_cvt_pk_bf16_f32 v%d, v%d, v%d" % (209 + 2 * j, OA + 2 + 4 * j, OA + 3 + 4 * j))
        k.e("buffer_store_dwordx2 v[%d:%d], v1, s[8:11], 0 offen offset:%d" % (208 + 2 * j, 209 + 2 * j, 16 * j))
    stamp_store(k, 4, 4)
    k.e("s_endpgm")
    k.lab(lab("cs"))
    k.e("s_cmp_ge_u32 s2, %d" % NCS)
    k.e("s_cbranch_scc1 %s" % lab("pf"))
    k.e("s_mov_b32 s20, s2")
    k.e("s_cmp_lt_u32 s20, 56")
    k.e("s_cselect_b32 s4, s%d, s%d" % (PTR0 + 2 * KA_W1, PTR0 + 2 * KA_W3))
    k.e("s_cselect_b32 s5, s%d, s%d" % (PTR0 + 2 * KA_W1 + 1, PTR0 + 2 * KA_W3 + 1))
    k.e("s_cselect_b32 s21, 0, 56")
    k.e("s_and_b32 s5, s5, 0xffff")
    k.e("s_mov_b32 s6, %d" % (D * F * 2))
    k.e("s_mov_b32 s7, 0x00020000")
    k.e("s_sub_u32 s21, s20, s21")
    srd(k, 8, KA_WS, WS_CS, 2 * F * 4)
    k.e("""
    v_lshrrev_b32 v1, 3, v0
    v_and_b32 v2, 7, v0
    s_mov_b32 s22, %d
    v_mul_lo_u32 v1, v1, s22
    v_lshlrev_b32 v2, 4, v2
    s_lshl_b32 s22, s21, 7
    v_add3_u32 v1, v1, v2, s22
    """ % (F * 2))
    for r in range(8):
        k.e("v_mov_b32 v%d, 0" % (8 + r))
    for half in range(1):
        for i in range(32):
            k.e("v_add_u32 v2, %d, v1" % (i * 32 * F * 2))
            k.e("buffer_load_dwordx4 v[%d:%d], v2, s[4:7], 0 offen" % (16 + 4 * i, 19 + 4 * i))
        for i in range(32):
            k.e("s_waitcnt vmcnt(%d)" % (31 - i))
            for j in range(4):
                k.e("v_lshlrev_b32 v3, 16, v%d" % (16 + 4 * i + j))
                k.e("v_and_b32 v4, 0xffff0000, v%d" % (16 + 4 * i + j))
                k.e("v_add_f32 v%d, v%d, v3" % (8 + 2 * j, 8 + 2 * j))
                k.e("v_add_f32 v%d, v%d, v4" % (9 + 2 * j, 9 + 2 * j))
    k.e("v_lshlrev_b32 v2, 5, v0")
    k.e("ds_write_b128 v2, v[8:11]")
    k.e("ds_write_b128 v2, v[12:15] offset:16")
    k.e("s_waitcnt lgkmcnt(0)")
    k.e("s_barrier")
    k.e("v_cmp_gt_u32 vcc, 64, v0")
    k.e("s_and_saveexec_b64 s[24:25], vcc")
    k.e("s_cbranch_execz %s" % lab("end"))
    k.e("v_lshlrev_b32 v2, 2, v0")
    for i in range(32):
        k.e("ds_read_b32 v%d, v2 offset:%d" % (16 + i, i * 256))
    k.e("s_waitcnt lgkmcnt(0)")
    for i in range(1, 32):
        k.e("v_add_f32 v16, v16, v%d" % (16 + i))
    k.e("s_lshl_b32 s22, s20, 8")
    k.e("v_add_u32 v2, s22, v2")
    k.e("buffer_store_dword v16, v2, s[8:11], 0 offen")
    k.e("s_endpgm")
    k.lab(lab("pf"))
    k.e("s_sub_u32 s20, s2, %d" % NCS)
    k.e("s_cmp_lt_u32 s20, 0")
    k.e("s_cselect_b32 s4, s%d, s%d" % (PTR0 + 2 * KA_W2, PTR0 + 2 * KA_WO))
    k.e("s_cselect_b32 s5, s%d, s%d" % (PTR0 + 2 * KA_W2 + 1, PTR0 + 2 * KA_WO + 1))
    k.e("s_mov_b32 s23, %d" % (D * D * 2))
    k.e("s_cselect_b32 s6, %d, s23" % (F * D * 2))
    k.e("s_cselect_b32 s21, 0, 0")
    k.e("s_mov_b32 s22, 65536")
    k.e("s_and_b32 s5, s5, 0xffff")
    k.e("s_mov_b32 s7, 0x00020000")
    k.e("s_sub_u32 s21, s20, s21")
    k.e("s_mul_i32 s21, s21, s22")
    k.e("v_lshlrev_b32 v1, 4, v0")
    k.e("v_add_u32 v1, s21, v1")
    for i in range(16):
        k.e("buffer_load_dwordx4 v[%d:%d], v1, s[4:7], 0 offen" % (8 + 4 * i, 11 + 4 * i))
        k.e("v_add_u32 v1, 4096, v1")
    k.e("s_waitcnt vmcnt(0)")
    k.lab(lab("end"))
    k.e("s_endpgm")
    k.nvgpr = 216
    return k


def gen_g3(name, npf=32):
    BM = 256; RB = 4; CB = 8; NWC = 8; R = 5; STAGE = 32768; nk = 32
    ntm, ntn = 8, 28
    nwg = ntm * ntn
    subs = [(KA_W1, 0, F, 128, 128), (KA_W3, 0, F, 128, 128)]
    colblocks = [(0, 4, j) for j in range(4)] + [(1, 4, j) for j in range(4)]
    sub_lds = [16384, 24576]
    k = Kern(name, (nwg + npf, 1, 1), (512, 1, 1), R * STAGE, 0)
    lab = lambda s: "%s_%s" % (name, s)
    k.e("s_cmp_ge_u32 s2, %d" % (nwg + npf))
    k.e("s_cbranch_scc1 %s" % lab("end"))
    stamp(k, 0)
    load_ptrs(k)
    k.e("s_cmp_lt_u32 s2, %d" % nwg)
    k.e("s_cbranch_scc1 %s" % lab("main"))
    srd(k, 4, KA_W2, 0, F * D * 2)
    per = F * D * 2 // npf
    k.e("s_sub_u32 s20, s2, %d" % nwg)
    k.e("s_mul_i32 s20, s20, %d" % per)
    k.e("v_lshlrev_b32 v1, 4, v0")
    k.e("v_add_u32 v1, s20, v1")
    for i in range(per // 8192):
        k.e("buffer_load_dwordx4 v[%d:%d], v1, s[4:7], 0 offen" % (8 + 4 * i, 11 + 4 * i))
        k.e("v_add_u32 v1, 8192, v1")
    k.e("s_waitcnt vmcnt(0)")
    k.e("s_endpgm")
    k.lab(lab("main"))
    srd(k, 4, KA_WS, WS_H, S * D * 2)
    srd(k, 8, KA_W1, 0, D * F * 2)
    srd(k, 12, KA_W3, 0, D * F * 2)
    k.e("""
    s_and_b32 s25, s2, 7
    s_lshr_b32 s26, s2, 3
    s_and_b32 s20, s25, 1
    s_mul_i32 s20, s20, 4
    s_and_b32 s27, s26, 3
    s_add_u32 s20, s20, s27
    s_lshr_b32 s21, s25, 1
    s_mul_i32 s21, s21, 7
    s_lshr_b32 s27, s26, 2
    s_add_u32 s21, s21, s27
    v_lshrrev_b32 v1, 6, v0
    s_nop 0
    v_readfirstlane_b32 s19, v1
    s_and_b32 s23, s19, 3
    s_lshr_b32 s24, s19, 2
    v_and_b32 v0, 63, v0
    """)
    vAd, vBd = 2, 4
    vAb = 6
    vAr = 15
    vsum, vsq = 24, 28
    vfr = 36
    vacc = vfr + 88
    T0, T1, T2 = vfr, vfr + 1, vfr + 2
    acc = lambda rb, cb: vacc + (rb * CB + cb) * 4
    vend = vacc + RB * CB * 4
    k.nvgpr = vend
    fA = lambda rb: vfr + 4 * rb
    fB = lambda cb: vfr + 16 + 4 * cb
    def sw(dst, rg, t):
        k.e("v_lshlrev_b32 v%d, 1, v%d" % (dst, rg))
        k.e("v_and_b32 v%d, 3, v%d" % (dst, dst))
        k.e("v_lshrrev_b32 v%d, 1, v%d" % (t, rg))
        k.e("v_mul_u32_u24 v%d, 3, v%d" % (t, t))
        k.e("v_xor_b32 v%d, v%d, v%d" % (dst, dst, t))
    k.e("v_bfe_u32 v1, v0, 4, 2")
    sw(T0, 1, T1)
    k.e("v_and_b32 v%d, 3, v0" % T1)
    k.e("v_xor_b32 v%d, v%d, v%d" % (T0, T0, T1))
    k.e("v_lshlrev_b32 v%d, 4, v%d" % (T0, T0))
    k.e("v_lshrrev_b32 v1, 2, v0")
    k.e("s_lshl_b32 s25, s19, 5")
    k.e("s_lshl_b32 s26, s20, 8")
    k.e("s_add_u32 s25, s25, s26")
    k.e("v_add_u32 v1, s25, v1")
    k.e("v_lshlrev_b32 v1, 11, v1")
    k.e("v_add_u32 v%d, v1, v%d" % (vAd, T0))
    k.e("v_add_u32 v%d, %d, v%d" % (vAd + 1, 16 * 2048, vAd))
    k.e("v_lshrrev_b32 v1, 4, v0")
    k.e("s_lshl_b32 s25, s19, 2")
    k.e("v_add_u32 v1, s25, v1")
    k.e("v_and_b32 v%d, 3, v1" % T0)
    k.e("v_lshrrev_b32 v%d, 1, v1" % T1)
    k.e("v_and_b32 v%d, 4, v%d" % (T1, T1))
    k.e("v_or_b32 v%d, v%d, v%d" % (T0, T0, T1))
    k.e("v_lshlrev_b32 v%d, 1, v%d" % (T0, T0))
    k.e("v_and_b32 v%d, 15, v0" % T1)
    k.e("v_xor_b32 v%d, v%d, v%d" % (T0, T0, T1))
    k.e("v_lshlrev_b32 v%d, 4, v%d" % (T0, T0))
    k.e("s_mov_b32 s26, %d" % (F * 2))
    k.e("v_mul_lo_u32 v1, v1, s26")
    k.e("s_lshl_b32 s26, s21, 8")
    k.e("v_add3_u32 v%d, v1, v%d, s26" % (vBd, T0))
    k.e("v_mov_b32 v%d, v%d" % (vBd + 1, vBd))
    k.e("v_bfe_u32 v1, v0, 2, 2")
    sw(T0, 1, T1)
    k.e("v_lshrrev_b32 v%d, 4, v0" % T1)
    k.e("v_xor_b32 v%d, v%d, v%d" % (T0, T0, T1))
    k.e("v_lshlrev_b32 v%d, 4, v%d" % (T0, T0))
    k.e("v_and_b32 v1, 15, v0")
    k.e("v_lshlrev_b32 v1, 6, v1")
    k.e("s_lshl_b32 s25, s23, 12")
    k.e("v_add3_u32 v%d, v1, v%d, s25" % (vAb, T0))
    for cb, (si, pmul, padd) in enumerate(colblocks):
        k.e("""
        v_lshrrev_b32 v1, 4, v0
        v_lshlrev_b32 v1, 3, v1
        v_bfe_u32 v%d, v0, 2, 2
        v_add_u32 v1, v1, v%d
        v_bfe_u32 v%d, v0, 4, 1
        v_lshlrev_b32 v%d, 2, v%d
        v_or_b32 v%d, v%d, v%d
        """ % (T0, T0, T1, T1, T1, T1, T1, T0))
        k.e("s_mul_i32 s25, s24, %d" % pmul)
        k.e("s_add_u32 s25, s25, %d" % padd)
        k.e("v_xor_b32 v%d, s25, v%d" % (T1, T1))
        k.e("v_lshlrev_b32 v%d, 5, v%d" % (T1, T1))
        k.e("v_lshlrev_b32 v1, 8, v1")
        k.e("v_and_b32 v%d, 3, v0" % T2)
        k.e("v_lshlrev_b32 v%d, 3, v%d" % (T2, T2))
        k.e("v_add3_u32 v%d, v1, v%d, v%d" % (vAb + 1 + cb, T1, T2))
        k.e("v_add_u32 v%d, %d, v%d" % (vAb + 1 + cb, sub_lds[si], vAb + 1 + cb))
    for r in range(vacc, vend):
        k.e("v_mov_b32 v%d, 0" % r)
    k.e("""
    s_mov_b32 s30, 0
    s_mov_b32 s31, 0
    s_mov_b32 s34, 0
    s_lshl_b32 s35, s19, 11
    s_lshl_b32 s44, s19, 10
    s_add_u32 s45, s44, 24576
    s_add_u32 s44, s44, 16384
    s_mov_b32 s37, 0
    s_mov_b32 s38, 0
    """)

    def dma():
        k.e("""
        s_add_u32 s36, s34, s35
        s_mov_b32 m0, s36
        s_nop 0
        buffer_load_dwordx4 v%d, s[4:7], s30 offen lds
        s_add_u32 m0, s36, 1024
        s_nop 0
        buffer_load_dwordx4 v%d, s[4:7], s30 offen lds
        s_add_u32 m0, s34, s44
        s_nop 0
        buffer_load_dwordx4 v%d, s[8:11], s31 offen lds
        s_add_u32 m0, s34, s45
        s_nop 0
        buffer_load_dwordx4 v%d, s[12:15], s31 offen lds
        s_add_u32 s30, s30, 64
        s_add_u32 s31, s31, %d
        s_add_u32 s34, s34, %d
        s_cmp_eq_u32 s34, %d
        s_cselect_b32 s34, 0, s34
        """ % (vAd, vAd + 1, vBd, vBd + 1, 32 * F * 2, STAGE, R * STAGE))

    def loadphase():
        dma()
        for r in range(9):
            k.e("v_add_u32 v%d, s38, v%d" % (vAr + r, vAb + r))
        k.e("s_add_u32 s38, s38, %d\ns_cmp_eq_u32 s38, %d\ns_cselect_b32 s38, 0, s38" % (STAGE, R * STAGE))
        for rb in range(RB):
            k.e("ds_read_b128 v[%d:%d], v%d offset:%d" % (fA(rb), fA(rb) + 3, vAr, rb * 1024))
        for cb in range(CB):
            k.e("ds_read_b64_tr_b16 v[%d:%d], v%d" % (fB(cb), fB(cb) + 1, vAr + 1 + cb))
            k.e("ds_read_b64_tr_b16 v[%d:%d], v%d offset:1024" % (fB(cb) + 2, fB(cb) + 3, vAr + 1 + cb))
        k.e("s_waitcnt lgkmcnt(0)")

    def compphase():
        for rb in range(RB):
            for cb in range(CB):
                a = acc(rb, cb)
                k.e("v_mfma_f32_16x16x32_bf16 v[%d:%d], v[%d:%d], v[%d:%d], v[%d:%d]" % (
                    a, a + 3, fB(cb), fB(cb) + 3, fA(rb), fA(rb) + 3, a, a + 3))

    for _ in range(4):
        dma()
    stamp(k, 1)
    k.e("s_waitcnt vmcnt(12)")
    k.e("s_barrier")
    k.e("s_cmp_ge_u32 s19, 4")
    k.e("s_cbranch_scc1 %s" % lab("ypath"))
    loadphase()
    k.e("s_barrier")
    k.lab(lab("xloop"))
    compphase()
    k.e("s_waitcnt vmcnt(12)")
    k.e("s_barrier")
    loadphase()
    k.e("s_barrier")
    k.e("s_add_u32 s37, s37, 1")
    k.e("s_cmp_lt_u32 s37, %d" % nk)
    k.e("s_cbranch_scc1 %s" % lab("xloop"))
    k.e("s_branch %s" % lab("done"))
    k.lab(lab("ypath"))
    k.e("s_barrier")
    k.lab(lab("loop"))
    loadphase()
    k.e("s_waitcnt vmcnt(12)")
    k.e("s_barrier")
    compphase()
    k.e("s_barrier")
    k.e("s_add_u32 s37, s37, 1")
    k.e("s_cmp_lt_u32 s37, %d" % nk)
    k.e("s_cbranch_scc1 %s" % lab("loop"))
    k.lab(lab("done"))
    k.e("s_waitcnt vmcnt(0) lgkmcnt(0)")
    k.e("s_barrier")
    stamp(k, 3)
    k.e("s_nop 7")
    ctx = dict(RB=RB, CB=CB, acc=acc, colblocks=colblocks, subs=subs, BM=BM, vend=vend, vres=None, ln='ws',
               vsum=vsum, vsq=vsq, vcs=None, Kdim=1024, lab=lab, vfr=vfr)

    def ws_stats():
        srd(k, 48, KA_WS, WS_PART, S * 256)
        t = vfr + 36
        dbase = [vfr + 40, vfr + 56, vfr + 72, 4]
        k.e("s_mul_i32 s25, s20, %d" % BM)
        k.e("s_mul_i32 s26, s23, %d" % (RB * 16))
        k.e("s_add_u32 s25, s25, s26")
        k.e("v_and_b32 v%d, 15, v0" % t)
        k.e("v_add_u32 v%d, s25, v%d" % (t, t))
        k.e("v_lshlrev_b32 v%d, 4, v%d" % (t, t))
        k.e("v_lshrrev_b32 v%d, 4, v0" % (t + 1))
        k.e("v_lshlrev_b32 v%d, 17, v%d" % (t + 1, t + 1))
        k.e("v_add_u32 v%d, v%d, v%d" % (t, t, t + 1))
        for j in range(4):
            if j:
                k.e("v_add_u32 v%d, 32768, v%d" % (t, t))
            for rb in range(RB):
                d = dbase[rb] + 4 * j
                k.e("buffer_load_dwordx4 v[%d:%d], v%d, s[48:51], 0 offen offset:%d" % (d, d + 3, t, 256 * rb))
        k.e("s_waitcnt vmcnt(0)")
        for rb in range(RB):
            d = dbase[rb]
            k.e("v_add_f32 v%d, v%d, v%d" % (vsum + rb, d, d + 2))
            k.e("v_add_f32 v%d, v%d, v%d" % (vsq + rb, d + 1, d + 3))
            for j in range(2, 8):
                k.e("v_add_f32 v%d, v%d, v%d" % (vsum + rb, vsum + rb, d + 2 * j))
                k.e("v_add_f32 v%d, v%d, v%d" % (vsq + rb, vsq + rb, d + 2 * j + 1))
        ctx["vtmp"] = vfr + 40
        ln_finish(k, ctx)
    ctx["ws_stats"] = ws_stats
    epi_swiglu(k, ctx)
    stamp_store(k, 4, 2)
    k.lab(lab("end"))
    k.e("s_endpgm")
    return k


def build():
    ks = []
    ks.append(gen_gemm("g1_kernel", 128, 2, 2, 1024, KA_X, 0,
                       [(KA_WQKV, 0, 3072, 128, 192), (KA_WQKV, 256, 3072, 64, 192)],
                       [(0, 4, 0), (0, 4, 1), (0, 4, 2), (0, 4, 3), (1, 2, 0), (1, 2, 1)], 16,
                       epi_store_factory(3072, KA_WS, WS_QKV, S * 3072 * 2, groups=[[0, 1, 2, 3], [4, 5]]), (4, 8), NL=4, ln='mfma'))
    ks.append(gen_attn("attn_kernel"))
    ks.append(gen_gemm("g2_kernel", 128, 2, 2, 1024, KA_WS, WS_O, [(KA_WO, 0, 1024, 64, 64)],
                       [(0, 2, 0), (0, 2, 1)], 16,
                       epi_store_factory(1024, KA_WS, WS_H, S * D * 2, part=True), (4, 8), NL=int(os.environ.get('NL24', '4')), res=(KA_X, 0)))
    if 'newg3' not in EXP:
        ks.append(gen_gemm("g3_kernel", 256, 4, 2, 1024, KA_WS, WS_H,
                           [(KA_W1, 0, F, 128, 128), (KA_W3, 0, F, 128, 128)],
                           [(0, 4, j) for j in range(4)] + [(1, 4, j) for j in range(4)], 28, epi_swiglu, (4, 7), ln='ws', pp=True, npf=32))
    else:
        ks.append(gen_g3("g3_kernel"))
    ks.append(gen_gemm("g4_kernel", 128, 2, 2, F, KA_WS, WS_ACT, [(KA_W2, 0, 1024, 64, 64)],
                       [(0, 2, 0), (0, 2, 1)], 16,
                       epi_store_factory(1024, KA_OUT, 0, S * D * 2), (4, 8), NL=int(os.environ.get('NL24', '4')), res=(KA_WS, WS_H)))
    return ks


def main():
    ks = build()
    out = [HEADER.rstrip()]
    for k in ks:
        out.append("; @launch kernel=%s grid=(%d,%d,%d) block=(%d,%d,%d) lds=%d" % ((k.name,) + k.grid + k.block + (k.lds,)))
    out.append('.amdgcn_target "amdgcn-amd-amdhsa--gfx950"')
    out.append(".text")
    for k in ks:
        out.append(k.text())
    out.append('.section .rodata,"a"')
    for k in ks:
        out.append(".p2align 6")
        out.append(k.desc())
    open(sys.argv[1] if len(sys.argv) > 1 else "sequential_preLN__sliding_block__glu_gated_swiglu__prompt.s", "w").write("\n".join(out) + "\n")


if __name__ == "__main__":
    main()
```

```python
import sys, os
EXP = os.environ.get('EXP', '')
STFLAG = ' sc1'

S = 2048; D = 1024; F = 3584
MB = 1 << 20
WS_QKV = 4 * MB
WS_O = 16 * MB
WS_H = 20 * MB
WS_ACT = 28 * MB
WS_PART = 49 * MB
WS_CS = 48 * MB

KA_X, KA_WQKV, KA_WO, KA_BX, KA_W1, KA_W3, KA_W2, KA_OUT, KA_DBG, KA_WS = range(10)
PTR0 = 64

HEADER = """; Kernarg layout for this problem (80 bytes, ptrs only, base s[0:1]):
;   offset  72: d_ws      268435456 bytes workspace
"""


class Kern:
    def __init__(self, name, grid, block, lds, nvgpr, nsgpr=100):
        self.name = name; self.grid = grid; self.block = block; self.lds = lds
        self.nvgpr = nvgpr; self.nsgpr = nsgpr
        self.lines = []

    def e(self, s):
        for ln in s.strip().split("\n"):
            if ln.strip():
                self.lines.append("    " + ln.strip())

    def lab(self, l):
        self.lines.append(l + ":")

    def text(self):
        out = [".globl %s" % self.name, ".p2align 8", ".type %s,@function" % self.name, "%s:" % self.name]
        return "\n".join(out + self.lines)

    def desc(self):
        nv = self.nvgpr
        return """.amdhsa_kernel %s
  .amdhsa_next_free_vgpr %d
  .amdhsa_next_free_sgpr %d
  .amdhsa_accum_offset %d
  .amdhsa_group_segment_fixed_size 0
  .amdhsa_kernarg_size 80
  .amdhsa_user_sgpr_count 2
  .amdhsa_user_sgpr_kernarg_segment_ptr 1
  .amdhsa_system_sgpr_workgroup_id_x 1
.end_amdhsa_kernel""" % (self.name, nv, self.nsgpr, (nv + 3) // 4 * 4)


def load_ptrs(k):
    k.e("s_load_dwordx16 s[64:79], s[0:1], 0")
    k.e("s_load_dwordx4 s[80:83], s[0:1], 64")
    k.e("s_waitcnt lgkmcnt(0)")


def srd(k, sreg, slot, off, nbytes):
    p = PTR0 + 2 * slot
    if off:
        k.e("s_add_u32 s%d, s%d, %d" % (sreg, p, off))
        k.e("s_addc_u32 s%d, s%d, 0" % (sreg + 1, p + 1))
        k.e("s_and_b32 s%d, s%d, 0xffff" % (sreg + 1, sreg + 1))
    else:
        k.e("s_mov_b32 s%d, s%d" % (sreg, p))
        k.e("s_and_b32 s%d, s%d, 0xffff" % (sreg + 1, p + 1))
    k.e("s_mov_b32 s%d, %d" % (sreg + 2, nbytes))
    k.e("s_mov_b32 s%d, 0x00020000" % (sreg + 3))


def stamp(k, i):
    if 'stamp' in EXP:
        k.e("s_memrealtime s[%d:%d]" % (86 + 2 * i, 87 + 2 * i))


def stamp_store(k, n, kidx):
    if 'stamp' not in EXP:
        return
    k.e("s_waitcnt vmcnt(0) lgkmcnt(0)")
    k.e("s_memrealtime s[%d:%d]" % (86 + 2 * n, 87 + 2 * n))
    k.e("s_waitcnt lgkmcnt(0)")
    srd(k, 56, KA_WS, 64 * MB + kidx * 65536, 65536)
    k.e("s_lshl_b32 s60, s2, 6")
    k.e("v_mov_b32 v1, s60")
    for i in range(n + 1):
        k.e("v_mov_b32 v2, s%d" % (86 + 2 * i))
        k.e("buffer_store_dword v2, v1, s[56:59], 0 offen offset:%d" % (4 * i))


def f3(k):
    return (k & 3) | ((k >> 1) & 4)


def gen_gemm(name, BM, WM, WN, Kdim, a_slot, a_off, subs, colblocks, ntn, epi, grp, nstages=6, NL=0, ln=None, res=None, pp=False, npf=0):
    NWC = WM * WN
    NW = NL if NL else NWC
    RB = BM // WM // 16
    CB = len(colblocks)
    ntm = S // BM
    nwg = ntm * ntn
    nk = Kdim // 64
    sub_lds = []
    o = BM * 128
    for sb in subs:
        sub_lds.append(o); o += 64 * sb[3] * 2
    STAGE = o
    NS = min(nstages, 163840 // STAGE)
    assert NS >= 2 and STAGE <= 65536
    k = Kern(name, (nwg + npf, 1, 1), (64 * (NWC + NL), 1, 1), NS * STAGE + (4096 if pp else 0), 0)
    lab = lambda s: "%s_%s" % (name, s)
    k.e("s_cmp_ge_u32 s2, %d" % (nwg + npf))
    k.e("s_cbranch_scc1 %s" % lab("end"))
    stamp(k, 0)
    load_ptrs(k)
    if npf:
        k.e("s_cmp_lt_u32 s2, %d" % nwg)
        k.e("s_cbranch_scc1 %s" % lab("main"))
        srd(k, 4, KA_W2, 0, F * D * 2)
        per = F * D * 2 // npf
        nthr = 64 * (NWC + NL)
        assert per % (nthr * 16) == 0
        k.e("s_sub_u32 s20, s2, %d" % nwg)
        k.e("s_mul_i32 s20, s20, %d" % per)
        k.e("v_lshlrev_b32 v1, 4, v0")
        k.e("v_add_u32 v1, s20, v1")
        for i in range(per // (nthr * 16)):
            k.e("buffer_load_dwordx4 v[%d:%d], v1, s[4:7], 0 offen" % (8 + 4 * i, 11 + 4 * i))
            k.e("v_add_u32 v1, %d, v1" % (nthr * 16))
        k.e("s_waitcnt vmcnt(0)")
        k.e("s_endpgm")
        k.lab(lab("main"))
    srd(k, 4, a_slot, a_off, S * Kdim * 2)
    for i, sb in enumerate(subs):
        srd(k, 8 + 4 * i, sb[0], sb[1], Kdim * sb[2] * 2 - sb[1])
    gm, gn = grp
    assert gm * gn * 8 == nwg
    k.e("s_and_b32 s25, s2, 7")
    k.e("s_lshr_b32 s26, s2, 3")
    ng = ntm // gm
    k.e("s_and_b32 s20, s25, %d" % (ng - 1))
    k.e("s_mul_i32 s20, s20, %d" % gm)
    k.e("s_and_b32 s27, s26, %d" % (gm - 1))
    k.e("s_add_u32 s20, s20, s27")
    k.e("s_lshr_b32 s21, s25, %d" % (ng.bit_length() - 1))
    k.e("s_mul_i32 s21, s21, %d" % gn)
    k.e("s_lshr_b32 s27, s26, %d" % (gm.bit_length() - 1))
    k.e("s_add_u32 s21, s21, s27")
    k.e("v_lshrrev_b32 v1, 6, v0")
    k.e("s_nop 0")
    k.e("v_readfirstlane_b32 s19, v1")
    k.e("s_and_b32 s23, s19, %d" % (WM - 1))
    k.e("s_lshr_b32 s24, s19, %d" % (WM.bit_length() - 1))
    k.e("s_and_b32 s24, s24, %d" % (WN - 1))
    if NL:
        k.e("s_sub_u32 s22, s19, %d" % NWC)
        k.e("s_and_b32 s22, s22, %d" % (NL - 1))
    else:
        k.e("s_mov_b32 s22, s19")
    k.e("v_and_b32 v0, 63, v0")
    nA_w = BM // 8 // NW
    vA_dma = 2
    _nb = sum(64 * sb[3] * 2 // 1024 // NW for sb in subs)
    XORST = (NS == 2 and STAGE == 65536)
    _vx = vA_dma + nA_w + _nb + (1 if XORST else 2) * (2 + CB)
    if ln == 'mfma':
        _vx = (_vx + 2 * RB + 3) // 4 * 4 + 4 + 4 * CB
    elif ln:
        _vx = _vx + 2 * RB + 1
    if res:
        _vx = (_vx + 1) // 2 * 2 + 2 * RB * CB
    _vfr = (_vx + 3) // 4 * 4
    T0, T1, T2 = _vfr, _vfr + 1, _vfr + 2
    k.e("""
    v_lshrrev_b32 v1, 3, v0
    v_and_b32 v%d, 7, v0
    v_xor_b32 v%d, v%d, v1
    v_lshlrev_b32 v%d, 4, v%d
    """ % (T0, T0, T0, T0, T0))
    k.e("s_mul_i32 s25, s22, %d" % (nA_w * 8))
    k.e("s_mul_i32 s26, s20, %d" % BM)
    k.e("s_add_u32 s25, s25, s26")
    k.e("v_add_u32 v1, s25, v1")
    k.e("s_mov_b32 s26, %d" % (Kdim * 2))
    k.e("v_mul_lo_u32 v1, v1, s26")
    k.e("v_add_u32 v%d, v1, v%d" % (vA_dma, T0))
    for t in range(1, nA_w):
        k.e("v_add_u32 v%d, %d, v%d" % (vA_dma + t, t * 8 * Kdim * 2, vA_dma))
    bdma = []
    vb = vA_dma + nA_w
    for si, (slot, off, ldb, width, tnmul) in enumerate(subs):
        pitch = width * 2
        nB = 64 * pitch // 1024
        assert nB % NW == 0
        nB_w = nB // NW
        rows_per = 1024 // pitch
        cpr = pitch // 16
        for t in range(nB_w):
            k.e("s_mul_i32 s25, s22, %d" % (nB_w * rows_per))
            k.e("s_add_u32 s25, s25, %d" % (t * rows_per))
            k.e("v_lshrrev_b32 v1, %d, v0" % (cpr.bit_length() - 1))
            k.e("v_add_u32 v1, s25, v1")
            if pitch >= 256:
                k.e("v_and_b32 v%d, 3, v1" % T0)
                k.e("v_lshrrev_b32 v%d, 1, v1" % T1)
                k.e("v_and_b32 v%d, 4, v%d" % (T1, T1))
            else:
                k.e("v_bfe_u32 v%d, v1, 1, 1" % T0)
                k.e("v_lshrrev_b32 v%d, 2, v1" % T1)
                k.e("v_and_b32 v%d, 2, v%d" % (T1, T1))
            k.e("v_or_b32 v%d, v%d, v%d" % (T0, T0, T1))
            k.e("v_lshlrev_b32 v%d, 1, v%d" % (T0, T0))
            k.e("v_and_b32 v%d, %d, v0" % (T1, cpr - 1))
            k.e("v_xor_b32 v%d, v%d, v%d" % (T0, T0, T1))
            k.e("v_lshlrev_b32 v%d, 4, v%d" % (T0, T0))
            k.e("s_mov_b32 s26, %d" % (ldb * 2))
            k.e("v_mul_lo_u32 v1, v1, s26")
            k.e("v_add_u32 v1, v1, v%d" % T0)
            k.e("s_mul_i32 s26, s21, %d" % (tnmul * 2))
            k.e("v_add_u32 v%d, s26, v1" % vb)
            bdma.append((si, t, vb, nB_w))
            vb += 1
    _iB0 = len(k.lines)
    NAD = 2 + CB
    vAb = vb
    vAr = vAb if XORST else vAb + NAD
    k.e("""
    v_and_b32 v1, 15, v0
    v_lshlrev_b32 v1, 7, v1
    v_lshrrev_b32 v%d, 4, v0
    v_and_b32 v%d, 7, v0
    """ % (T0, T1))
    k.e("s_mul_i32 s25, s23, %d" % (RB * 16 * 128))
    k.e("v_add_u32 v1, s25, v1")
    k.e("v_xor_b32 v%d, v%d, v%d" % (T2, T0, T1))
    k.e("v_lshlrev_b32 v%d, 4, v%d" % (T2, T2))
    k.e("v_add_u32 v%d, v1, v%d" % (vAb, T2))
    k.e("v_or_b32 v%d, 4, v%d" % (T0, T0))
    k.e("v_xor_b32 v%d, v%d, v%d" % (T2, T0, T1))
    k.e("v_lshlrev_b32 v%d, 4, v%d" % (T2, T2))
    k.e("v_add_u32 v%d, v1, v%d" % (vAb + 1, T2))
    for cb, (si, pmul, padd) in enumerate(colblocks):
        pitch = subs[si][3] * 2
        k.e("""
        v_lshrrev_b32 v1, 4, v0
        v_lshlrev_b32 v1, 3, v1
        v_bfe_u32 v%d, v0, 2, 2
        v_add_u32 v1, v1, v%d
        """ % (T0, T0))
        if pitch >= 256:
            k.e("v_bfe_u32 v%d, v0, 4, 1" % T1)
            k.e("v_lshlrev_b32 v%d, 2, v%d" % (T1, T1))
            k.e("v_or_b32 v%d, v%d, v%d" % (T1, T1, T0))
        else:
            k.e("v_bfe_u32 v%d, v0, 3, 1" % T1)
            k.e("v_bfe_u32 v%d, v0, 4, 1" % T2)
            k.e("v_lshlrev_b32 v%d, 1, v%d" % (T2, T2))
            k.e("v_or_b32 v%d, v%d, v%d" % (T1, T1, T2))
        k.e("s_mul_i32 s25, s24, %d" % pmul)
        k.e("s_add_u32 s25, s25, %d" % padd)
        k.e("v_xor_b32 v%d, s25, v%d" % (T1, T1))
        k.e("v_lshlrev_b32 v%d, 5, v%d" % (T1, T1))
        k.e("s_mov_b32 s26, %d" % pitch)
        k.e("v_mul_lo_u32 v1, v1, s26")
        k.e("v_and_b32 v%d, 3, v0" % T2)
        k.e("v_lshlrev_b32 v%d, 3, v%d" % (T2, T2))
        k.e("v_add3_u32 v%d, v1, v%d, v%d" % (vAb + 2 + cb, T1, T2))
    vBr = vAr + 2
    vx = vAr + NAD
    vsum = vsq = vones = vcs = vres = None
    if ln:
        vsum = vx; vsq = vx + RB; vx += 2 * RB
        if ln == 'mfma':
            vx = (vx + 3) // 4 * 4
            vones = vx; vx += 4
            vcs = vx; vx += 4 * CB
        else:
            vones = vx; vx += 1
    if res:
        vx = (vx + 1) // 2 * 2
        vres = vx; vx += 2 * RB * CB
    vfr = (vx + 3) // 4 * 4
    fA = lambda s, rb: vfr + (s * RB + rb) * 4
    fB = lambda s, cb: vfr + 2 * RB * 4 + (s * CB + cb) * 4
    vacc = vfr + 2 * RB * 4 + 2 * CB * 4
    assert vfr == _vfr
    acc = lambda rb, cb: vacc + (rb * CB + cb) * 4
    vend = vacc + RB * CB * 4
    k.nvgpr = vend
    assert vend <= 256
    def lds_stats():
        t = vfr + 36
        k.e("v_and_b32 v%d, 15, v0" % t)
        k.e("s_lshl_b32 s25, s23, 6")
        k.e("v_add_u32 v%d, s25, v%d" % (t, t))
        k.e("v_lshlrev_b32 v%d, 3, v%d" % (t, t))
        k.e("v_add_u32 v%d, %d, v%d" % (t, NS * STAGE, t))
        for rb in range(RB):
            k.e("ds_read_b32 v%d, v%d offset:%d" % (vsum + rb, t, rb * 128))
            k.e("ds_read_b32 v%d, v%d offset:%d" % (vsq + rb, t, rb * 128 + 4))
        k.e("s_waitcnt vmcnt(0) lgkmcnt(0)")
    ctx = dict(ws_stats=(lds_stats if pp else (lambda: ws_stats())), RB=RB, CB=CB, acc=acc, colblocks=colblocks, subs=subs, BM=BM, vend=vend, vres=vres, ln=ln,
               vsum=vsum, vsq=vsq, vcs=vcs, Kdim=Kdim, lab=lab, vfr=vfr)
    def ws_stats():
        srd(k, 48, KA_WS, WS_PART, S * 256)
        t = vfr + 36
        dbase = [vfr + 40, vfr + 56, vfr + 72, 4]
        assert RB == 4 and vsum >= 20
        k.e("s_mul_i32 s25, s20, %d" % BM)
        k.e("s_mul_i32 s26, s23, %d" % (RB * 16))
        k.e("s_add_u32 s25, s25, s26")
        k.e("v_and_b32 v%d, 15, v0" % t)
        k.e("v_add_u32 v%d, s25, v%d" % (t, t))
        k.e("v_lshlrev_b32 v%d, 4, v%d" % (t, t))
        k.e("v_lshrrev_b32 v%d, 4, v0" % (t + 1))
        k.e("v_lshlrev_b32 v%d, 17, v%d" % (t + 1, t + 1))
        k.e("v_add_u32 v%d, v%d, v%d" % (t, t, t + 1))
        for j in range(4):
            if j:
                k.e("v_add_u32 v%d, 32768, v%d" % (t, t))
            for rb in range(RB):
                d = dbase[rb] + 4 * j
                k.e("buffer_load_dwordx4 v[%d:%d], v%d, s[48:51], 0 offen offset:%d" % (d, d + 3, t, 256 * rb))
        k.e("s_waitcnt vmcnt(0)")
        for rb in range(RB):
            d = dbase[rb]
            k.e("v_add_f32 v%d, v%d, v%d" % (vsum + rb, d, d + 2))
            k.e("v_add_f32 v%d, v%d, v%d" % (vsq + rb, d + 1, d + 3))
            for j in range(2, 8):
                k.e("v_add_f32 v%d, v%d, v%d" % (vsum + rb, vsum + rb, d + 2 * j))
                k.e("v_add_f32 v%d, v%d, v%d" % (vsq + rb, vsq + rb, d + 2 * j + 1))
        ctx["vtmp"] = vfr + 40
        ln_finish(k, ctx)

    def zero_acc():
        for r in range(vacc, vend):
            k.e("v_mov_b32 v%d, 0" % r)
    if ln != 'ws':
        zero_acc()
    if ln:
        for r in range(2 * RB if ln == 'mfma' else 0):
            k.e("v_mov_b32 v%d, 0" % (vsum + r))
        for r in range(4 if vcs else 1):
            k.e("v_mov_b32 v%d, 0x3f803f80" % (vones + r))
        if vcs:
            for r in range(4 * CB):
                k.e("v_mov_b32 v%d, 0" % (vcs + r))
    partB = k.lines[_iB0:]
    del k.lines[_iB0:]
    k.e("s_mov_b32 s30, 0")
    for i in range(len(subs)):
        k.e("s_mov_b32 s%d, 0" % (31 + i))
    k.e("s_mov_b32 s34, 0")
    k.e("s_mul_i32 s35, s22, %d" % (nA_w * 1024))
    for (si, t, vreg, nB_w) in bdma:
        if t == 0:
            k.e("s_mul_i32 s%d, s22, %d" % (44 + si, nB_w * 1024))
            k.e("s_add_u32 s%d, s%d, %d" % (44 + si, 44 + si, sub_lds[si]))
    nd = nA_w + len(bdma)

    def dma_items():
        it = []
        for t in range(nA_w):
            if t:
                pre = "s_add_u32 m0, s36, %d\ns_nop 0\n" % (t * 1024)
            else:
                pre = "s_add_u32 s36, s34, s35\ns_mov_b32 m0, s36\ns_nop 0\n"
            it.append(pre + "buffer_load_dwordx4 v%d, s[4:7], s30 offen lds" % (vA_dma + t))
        for (si, t, vreg, nB_w) in bdma:
            if t == 0:
                pre = "s_add_u32 s36, s34, s%d\ns_mov_b32 m0, s36\ns_nop 0\n" % (44 + si)
            else:
                pre = "s_add_u32 m0, s36, %d\ns_nop 0\n" % (t * 1024)
            it.append(pre + "buffer_load_dwordx4 v%d, s[%d:%d], s%d offen lds" % (vreg, 8 + 4 * si, 11 + 4 * si, 31 + si))
        tail = "s_add_u32 s30, s30, 128\n"
        for i, sb in enumerate(subs):
            tail += "s_add_u32 s%d, s%d, %d\n" % (31 + i, 31 + i, 64 * sb[2] * 2)
        tail += "s_add_u32 s34, s34, %d\ns_cmp_eq_u32 s34, %d\ns_cselect_b32 s34, 0, s34" % (STAGE, NS * STAGE)
        it[-1] += "\n" + tail
        return it

    def dma():
        for x in dma_items():
            k.e(x)

    def setaddr_items():
        if XORST:
            return ["v_xor_b32 v%d, %d, v%d" % (vAr + r, STAGE, vAr + r) for r in range(NAD)]
        it = ["v_add_u32 v%d, s38, v%d" % (vAr + r, vAb + r) for r in range(NAD)]
        it[-1] += "\ns_add_u32 s38, s38, %d\ns_cmp_eq_u32 s38, %d\ns_cselect_b32 s38, 0, s38" % (STAGE, NS * STAGE)
        return it

    def read_items(st, kk):
        it = []
        for rb in range(RB):
            it.append("ds_read_b128 v[%d:%d], v%d offset:%d" % (fA(st, rb), fA(st, rb) + 3, vAr + kk, rb * 2048))
        for cb, (si, pmul, padd) in enumerate(colblocks):
            pitch = subs[si][3] * 2
            base = sub_lds[si] + kk * 32 * pitch
            it.append("ds_read_b64_tr_b16 v[%d:%d], v%d offset:%d" % (fB(st, cb), fB(st, cb) + 1, vBr + cb, base))
            it.append("ds_read_b64_tr_b16 v[%d:%d], v%d offset:%d" % (fB(st, cb) + 2, fB(st, cb) + 3, vBr + cb, base + 4 * pitch))
        return it

    def stat_items(st):
        return []

    def mfmas(st, fill=(), late=()):
        fill = list(fill); late = list(late)
        ms = []
        for rb in range(RB):
            for cb in range(CB):
                a = acc(rb, cb)
                ms.append("v_mfma_f32_16x16x32_bf16 v[%d:%d], v[%d:%d], v[%d:%d], v[%d:%d]" % (
                    a, a + 3, fB(st, cb), fB(st, cb) + 3, fA(st, rb), fA(st, rb) + 3, a, a + 3))
        if vcs and 'nocs' not in EXP:
            for cb in range(CB):
                c = vcs + 4 * cb
                ms.append("v_mfma_f32_16x16x32_bf16 v[%d:%d], v[%d:%d], v[%d:%d], v[%d:%d]" % (
                    c, c + 3, fB(st, cb), fB(st, cb) + 3, vones, vones + 3, c, c + 3))
        n = len(ms)
        per = -(-len(fill) // n) if fill else 0
        perl = -(-len(late) // n) if late else 0
        for m in ms:
            k.e(m)
            for _ in range(per):
                if fill:
                    k.e(fill.pop(0))
            for _ in range(perl):
                if late:
                    k.e(late.pop(0))
        assert not fill and not late

    k.e("s_mov_b32 s37, 0")
    if NL:
        assert NS >= 3
        k.e("s_cmp_lt_u32 s19, %d" % NWC)
        k.e("s_cbranch_scc1 %s" % lab("comp"))
        if 'lprio' in EXP:
            k.e("s_setprio 2")
        for s_ in range(NS - 1):
            dma()
        LS = (ln == 'mfma')
        if LS:
            assert BM == 128 and NL == 4
            t = vfr
            k.e("v_lshrrev_b32 v%d, 1, v0" % (t + 22))
            k.e("s_lshl_b32 s25, s22, 5")
            k.e("v_add_u32 v%d, s25, v%d" % (t + 23, t + 22))
            k.e("v_lshlrev_b32 v%d, 7, v%d" % (t + 23, t + 23))
            k.e("v_and_b32 v%d, 1, v0" % (t + 24))
            k.e("v_lshlrev_b32 v%d, 6, v%d" % (t + 24, t + 24))
            k.e("v_add_u32 v%d, v%d, v%d" % (t + 23, t + 23, t + 24))
            k.e("v_lshrrev_b32 v%d, 1, v%d" % (t + 22, t + 22))
            for j in range(4):
                k.e("v_add_u32 v%d, %d, v%d" % (t + 24, j, t + 22))
                k.e("v_and_b32 v%d, 3, v%d" % (t + 24, t + 24))
                k.e("v_lshlrev_b32 v%d, 4, v%d" % (t + 24, t + 24))
                k.e("v_add_u32 v%d, v%d, v%d" % (t + 26 + j, t + 23, t + 24))
            k.e("v_mov_b32 v%d, 0" % (t + 20))
            k.e("v_mov_b32 v%d, 0" % (t + 21))
            k.e("v_mov_b32 v%d, 0x3f803f80" % vones)
            k.e("s_mov_b32 s39, 0")

            def lstats():
                if 'nolstats' in EXP:
                    return
                for j in range(4):
                    k.e("v_add_u32 v%d, s39, v%d" % (t + j, t + 26 + j))
                for j in range(4):
                    k.e("ds_read_b128 v[%d:%d], v%d" % (t + 4 + 4 * j, t + 7 + 4 * j, t + j))
                k.e("s_add_u32 s39, s39, %d\ns_cmp_eq_u32 s39, %d\ns_cselect_b32 s39, 0, s39" % (STAGE, NS * STAGE))
                for j in range(16):
                    if j % 4 == 0:
                        k.e("s_waitcnt lgkmcnt(%d)" % (3 - j // 4))
                    d = t + 4 + j
                    k.e("v_dot2c_f32_bf16 v%d, v%d, v%d" % (t + 20, d, vones))
                    k.e("v_dot2c_f32_bf16 v%d, v%d, v%d" % (t + 21, d, d))
        k.e("s_waitcnt vmcnt(%d)" % ((NS - 2) * nd))
        k.e("s_barrier")
        if LS:
            lstats()
        k.lab(lab("lloop"))
        k.e("s_waitcnt vmcnt(%d)" % ((NS - 3) * nd))
        k.e("s_barrier")
        dma()
        k.e("s_add_u32 s37, s37, 1")
        k.e("s_cmp_lt_u32 s37, %d" % nk)
        if LS:
            k.e("s_cbranch_scc0 %s" % lab("ldone"))
            lstats()
            k.e("s_branch %s" % lab("lloop"))
            k.lab(lab("ldone"))
            k.e("s_waitcnt vmcnt(0)")
            for v in (t + 20, t + 21):
                k.e("ds_swizzle_b32 v%d, v%d offset:0x041F" % (t + 22, v))
                k.e("s_waitcnt lgkmcnt(0)")
                k.e("v_add_f32 v%d, v%d, v%d" % (v, v, t + 22))
            k.e("s_barrier")
            k.e("v_lshrrev_b32 v%d, 1, v0" % (t + 22))
            k.e("s_lshl_b32 s25, s22, 5")
            k.e("v_add_u32 v%d, s25, v%d" % (t + 22, t + 22))
            k.e("v_lshlrev_b32 v%d, 3, v%d" % (t + 22, t + 22))
            k.e("ds_write_b64 v%d, v[%d:%d]" % (t + 22, t + 20, t + 21))
            k.e("s_waitcnt lgkmcnt(0)")
            k.e("s_barrier")
        else:
            k.e("s_cbranch_scc1 %s" % lab("lloop"))
            k.e("s_waitcnt vmcnt(0)")
        k.e("s_endpgm")
        k.lab(lab("comp"))
        k.lines.extend(partB)
        if 'prio' in EXP:
            k.e("s_setprio 2")
        if res:
            res_prefetch(k, ctx, res)
        stamp(k, 1)
        k.e("s_mov_b32 s38, 0")
        for x in setaddr_items():
            k.e(x)
        k.e("s_barrier")
        stamp(k, 2)
        for x in read_items(0, 0):
            k.e(x)
        k.lab(lab("loop"))
        k.e("s_waitcnt lgkmcnt(0)")
        mfmas(0, read_items(1, 1), stat_items(0))
        k.e("s_barrier")
        k.e("s_waitcnt lgkmcnt(0)")
        mfmas(1, setaddr_items() + read_items(0, 0), stat_items(1))
    elif pp:
        assert XORST and NWC == 8
        dma()
        k.lines.extend(partB)
        zero_acc()
        stamp(k, 1)
        k.e("s_waitcnt vmcnt(0)")
        k.e("s_barrier")
        k.e("s_cmp_ge_u32 s19, 4")
        k.e("s_cbranch_scc1 %s" % lab("ypath"))

        NSPLIT = int(os.environ.get('NSPLIT', '8'))

        def loadphase(dm, rf=False):
            if not rf:
                for x in dm:
                    k.e(x)
            for x in read_items(0, 0) + read_items(1, 1):
                k.e(x)
            if rf:
                for x in dm:
                    k.e(x)
            for x in setaddr_items():
                k.e(x)
            k.e("s_waitcnt lgkmcnt(0)")
        RFX = 'rfx' in EXP; RFY = 'rfy' in EXP

        def compphase(dm):
            mfmas(0, dm)
            mfmas(1)
        di = dma_items()
        ny = len(di) - NSPLIT
        loadphase(di[:NSPLIT], RFX)
        k.e("s_barrier")
        k.lab(lab("xloop"))
        compphase(di[NSPLIT:])
        k.e("s_waitcnt vmcnt(0)")
        k.e("s_barrier")
        k.e("s_add_u32 s37, s37, 1")
        k.e("s_cmp_lt_u32 s37, %d" % nk)
        k.e("s_cbranch_scc0 %s" % lab("xlast"))
        loadphase(di[:NSPLIT], RFX)
        k.e("s_barrier")
        k.e("s_branch %s" % lab("xloop"))
        k.lab(lab("xlast"))
        ws_stats()
        k.e("v_and_b32 v%d, 15, v0" % (vfr + 36))
        k.e("s_lshl_b32 s25, s23, 6")
        k.e("v_add_u32 v%d, s25, v%d" % (vfr + 36, vfr + 36))
        k.e("v_lshlrev_b32 v%d, 3, v%d" % (vfr + 36, vfr + 36))
        k.e("v_add_u32 v%d, %d, v%d" % (vfr + 36, NS * STAGE, vfr + 36))
        for rb in range(RB):
            k.e("v_mov_b32 v%d, v%d" % (vfr + 40, vsum + rb))
            k.e("v_mov_b32 v%d, v%d" % (vfr + 41, vsq + rb))
            k.e("ds_write_b64 v%d, v[%d:%d] offset:%d" % (vfr + 36, vfr + 40, vfr + 41, rb * 128))
        k.e("s_waitcnt lgkmcnt(0)")
        k.e("s_barrier")
        k.e("s_branch %s" % lab("done"))
        k.lab(lab("ypath"))
        for x in di[:ny]:
            k.e(x)
        k.e("s_barrier")
        k.lab(lab("loop"))
        loadphase(di[ny:], RFY)
        k.e("s_waitcnt vmcnt(0)")
        k.e("s_barrier")
        compphase(di[:ny])
        k.e("s_barrier")
    else:
        dma()
        if ln == 'ws':
            ws_stats()
            zero_acc()
        stamp(k, 1)
        k.e("s_mov_b32 s38, 0")
        if not XORST:
            for x in setaddr_items():
                k.e(x)
        k.lab(lab("loop"))
        k.e("s_waitcnt vmcnt(0)")
        k.e("s_barrier")
        for x in read_items(0, 0):
            k.e(x)
        k.e("s_waitcnt lgkmcnt(0)")
        mfmas(0, read_items(1, 1) + dma_items(), stat_items(0))
        k.e("s_waitcnt lgkmcnt(0)")
        mfmas(1, setaddr_items(), stat_items(1))
    k.e("s_add_u32 s37, s37, 1")
    k.e("s_cmp_lt_u32 s37, %d" % nk)
    k.e("s_cbranch_scc1 %s" % lab("loop"))
    k.lab(lab("done"))
    k.e("s_waitcnt vmcnt(0) lgkmcnt(0)")
    if not NL:
        k.e("s_barrier")
    stamp(k, 3)
    k.e("s_nop 7")
    if ln == 'mfma':
        k.e("s_barrier")
        k.e("s_barrier")
        k.e("v_and_b32 v2, 15, v0")
        k.e("s_mul_i32 s25, s23, %d" % (RB * 16))
        k.e("v_add_u32 v2, s25, v2")
        k.e("v_lshlrev_b32 v2, 3, v2")
        for rb in range(RB):
            k.e("ds_read_b32 v%d, v2 offset:%d" % (vsum + rb, rb * 128))
            k.e("ds_read_b32 v%d, v2 offset:%d" % (vsq + rb, rb * 128 + 4))
        k.e("s_waitcnt lgkmcnt(0)")
        ln_finish(k, ctx, reduce=False)
    epi(k, ctx)
    stamp_store(k, 4, {'g1': 0, 'g2': 1, 'g3': 2, 'g4': 3}[name[:2]])
    k.lab(lab("end"))
    k.e("s_endpgm")
    return k


def row_base(k, c, ldc, va=1, vb=2):
    k.e("s_mul_i32 s25, s20, %d" % c["BM"])
    k.e("s_mul_i32 s26, s23, %d" % (c["RB"] * 16))
    k.e("s_add_u32 s25, s25, s26")
    k.e("v_and_b32 v%d, 15, v0" % va)
    k.e("v_add_u32 v%d, s25, v%d" % (va, va))
    k.e("s_mov_b32 s26, %d" % (ldc * 2))
    k.e("v_mul_lo_u32 v%d, v%d, s26" % (va, va))
    k.e("v_lshrrev_b32 v%d, 4, v0" % vb)
    k.e("v_lshlrev_b32 v%d, 3, v%d" % (vb, vb))
    k.e("v_add_u32 v%d, v%d, v%d" % (va, va, vb))


def col_off(k, c, cb, sreg, cmul):
    si, pmul, padd = c["colblocks"][cb]
    sb = sum(s[3] for s in c["subs"][:si])
    k.e("s_mul_i32 s%d, s21, %d" % (sreg, cmul * 2))
    k.e("s_mul_i32 s26, s24, %d" % (pmul * 32))
    k.e("s_add_u32 s%d, s%d, s26" % (sreg, sreg))
    k.e("s_add_u32 s%d, s%d, %d" % (sreg, sreg, (sb + padd * 16) * 2))


def res_prefetch(k, c, res):
    RB, CB = c["RB"], c["CB"]
    srd(k, 48, res[0], res[1], S * D * 2)
    t = c["vfr"]
    row_base(k, c, D, t, t + 1)
    tot = sum(s[3] for s in c["subs"])
    for cb in range(CB):
        col_off(k, c, cb, 25, tot)
        for rb in range(RB):
            k.e("v_add_u32 v%d, s25, v%d" % (t + 2, t))
            if rb:
                k.e("v_add_u32 v%d, %d, v%d" % (t + 2, rb * 16 * D * 2, t + 2))
            r = c["vres"] + 2 * (rb * CB + cb)
            k.e("buffer_load_dwordx2 v[%d:%d], v%d, s[48:51], 0 offen" % (r, r + 1, t + 2))


def ln_finish(k, c, reduce=True):
    RB = c["RB"]
    invK = {1024: "0x3a800000"}[c["Kdim"]]
    T = c.get("vtmp", 2)
    vs = [c["vsum"] + rb for rb in range(RB)] + [c["vsq"] + rb for rb in range(RB)]
    if reduce:
        for j, v in enumerate(vs):
            k.e("ds_swizzle_b32 v%d, v%d offset:0x401F" % (T + j, v))
        k.e("s_waitcnt lgkmcnt(0)")
        for j, v in enumerate(vs):
            k.e("v_add_f32 v%d, v%d, v%d" % (v, v, T + j))
        for j, v in enumerate(vs):
            k.e("v_mov_b32 v%d, v%d" % (T + j, v))
        k.e("s_nop 1")
        for j, v in enumerate(vs):
            k.e("v_permlane32_swap_b32 v%d, v%d" % (v, T + j))
        k.e("s_nop 1")
        for j, v in enumerate(vs):
            k.e("v_add_f32 v%d, v%d, v%d" % (v, v, T + j))
    R = range(RB)
    m = lambda rb: c["vsum"] + rb
    q = lambda rb: c["vsq"] + rb
    for rb in R:
        k.e("v_mul_f32 v%d, %s, v%d" % (m(rb), invK, m(rb)))
        k.e("v_mul_f32 v%d, %s, v%d" % (q(rb), invK, q(rb)))
    for rb in R:
        k.e("v_fma_f32 v%d, -v%d, v%d, v%d" % (q(rb), m(rb), m(rb), q(rb)))
    for rb in R:
        k.e("v_cvt_pk_bf16_f32 v%d, v%d, v%d" % (T + rb, m(rb), q(rb)))
    for rb in R:
        k.e("v_lshlrev_b32 v%d, 16, v%d" % (m(rb), T + rb))
        k.e("v_and_b32 v%d, 0xffff0000, v%d" % (q(rb), T + rb))
    for rb in R:
        k.e("v_add_f32 v%d, 0x3727c5ac, v%d" % (q(rb), q(rb)))
    for rb in R:
        k.e("v_cvt_pk_bf16_f32 v%d, v%d, v%d" % (T + rb, q(rb), q(rb)))
    for rb in R:
        k.e("v_lshlrev_b32 v%d, 16, v%d" % (q(rb), T + rb))
    for rb in R:
        k.e("v_sqrt_f32 v%d, v%d" % (q(rb), q(rb)))
    k.e("s_nop 0")
    for rb in R:
        k.e("v_cvt_pk_bf16_f32 v%d, v%d, v%d" % (T + rb, q(rb), q(rb)))
    for rb in R:
        k.e("v_lshlrev_b32 v%d, 16, v%d" % (q(rb), T + rb))
    for rb in R:
        k.e("v_rcp_f32 v%d, v%d" % (q(rb), q(rb)))
    k.e("s_nop 0")


def ln_apply(k, c, a, rb, cs):
    m = c["vsum"] + rb; q = c["vsq"] + rb
    for r in range(4):
        k.e("v_fma_f32 v%d, -v%d, v%d, v%d" % (a + r, m, cs + r, a + r))
    for r in range(4):
        k.e("v_mul_f32 v%d, v%d, v%d" % (a + r, a + r, q))


class LdsStore:
    def __init__(self, k, c, groups, ldc, srd_reg, NWC, vbase):
        self.k = k; self.c = c; self.groups = groups; self.ldc = ldc; self.srd = srd_reg
        self.off = []; o = 0
        for g in groups:
            self.off.append(o); o += 64 * len(g) * 32
        self.wbytes = o
        self.aw = {}
        v = vbase
        k.e("s_mul_i32 s27, s19, %d" % self.wbytes)
        for gi, g in enumerate(groups):
            CH = 2 * len(g); pitch = CH * 16
            for j, cb in enumerate(g):
                k.e("v_and_b32 v%d, 15, v0" % v)
                k.e("v_and_b32 v%d, %d, v0" % (v + 1, CH - 1))
                k.e("v_bfe_u32 v%d, v0, 5, 1" % (v + 2))
                k.e("v_or_b32 v%d, %d, v%d" % (v + 2, 2 * j, v + 2))
                k.e("v_xor_b32 v%d, v%d, v%d" % (v + 1, v + 1, v + 2))
                k.e("v_lshlrev_b32 v%d, 4, v%d" % (v + 1, v + 1))
                k.e("v_mul_u32_u24 v%d, %d, v%d" % (v, pitch, v))
                k.e("v_bfe_u32 v%d, v0, 4, 1" % (v + 2))
                k.e("v_lshlrev_b32 v%d, 3, v%d" % (v + 2, v + 2))
                k.e("v_add3_u32 v%d, v%d, v%d, v%d" % (v, v, v + 1, v + 2))
                k.e("v_add_u32 v%d, s27, v%d" % (v, v))
                self.aw[cb] = (v, gi, pitch); v += 1
        self.vfree = v + 2

    def put(self, rb, cb, a):
        v, gi, pitch = self.aw[cb]
        self.k.e("ds_write_b64 v%d, v[%d:%d] offset:%d" % (v, a, a + 1, self.off[gi] + rb * 16 * pitch))

    def flush(self, colbase_fn, vd):
        k = self.k; c = self.c
        k.e("s_waitcnt lgkmcnt(0)")
        v = self.vfree
        for gi, g in enumerate(self.groups):
            CH = 2 * len(g); pitch = CH * 16; rp = 64 // CH
            lg = CH.bit_length() - 1
            k.e("v_lshrrev_b32 v%d, %d, v0" % (v, lg))
            k.e("v_and_b32 v%d, %d, v0" % (v + 1, CH - 1))
            k.e("v_and_b32 v%d, %d, v%d" % (v + 2, CH - 1, v))
            k.e("v_xor_b32 v%d, v%d, v%d" % (v + 2, v + 2, v + 1))
            k.e("v_lshlrev_b32 v%d, 4, v%d" % (v + 2, v + 2))
            k.e("v_mul_u32_u24 v%d, %d, v%d" % (v + 3, pitch, v))
            k.e("v_add3_u32 v%d, v%d, v%d, s27" % (v + 2, v + 2, v + 3))
            k.e("s_mul_i32 s25, s20, %d" % c["BM"])
            k.e("s_mul_i32 s26, s23, %d" % (c["RB"] * 16))
            k.e("s_add_u32 s25, s25, s26")
            k.e("v_add_u32 v%d, s25, v%d" % (v, v))
            k.e("s_mov_b32 s26, %d" % (self.ldc * 2))
            k.e("v_mul_lo_u32 v%d, v%d, s26" % (v, v))
            k.e("v_lshlrev_b32 v%d, 4, v%d" % (v + 1, v + 1))
            colbase_fn(k, gi, 25)
            k.e("v_add3_u32 v%d, v%d, v%d, s25" % (v, v, v + 1))
            nj = 64 // rp
            for j in range(nj):
                k.e("ds_read_b128 v[%d:%d], v%d offset:%d" % (vd + 4 * j, vd + 4 * j + 3, v + 2, self.off[gi] + j * rp * pitch))
            for j in range(nj):
                k.e("s_waitcnt lgkmcnt(%d)" % (nj - 1 - j))
                if j:
                    k.e("v_add_u32 v%d, %d, v%d" % (v, rp * self.ldc * 2, v))
                k.e("buffer_store_dwordx4 v[%d:%d], v%d, s[%d:%d], 0 offen%s" % (vd + 4 * j, vd + 4 * j + 3, v, self.srd, self.srd + 3, STFLAG))
            k.e("s_nop 1")


def epi_store_factory(ldc, c_slot, c_off, c_bytes, part=False, groups=None):
    def epi(k, c):
        RB, CB, acc = c["RB"], c["CB"], c["acc"]
        srd(k, 40, c_slot, c_off, c_bytes)
        PS = c["vfr"]
        if groups:
            tot = sum(s[3] for s in c["subs"])
            k.e("s_barrier")
            ls = LdsStore(k, c, groups, ldc, 40, 4, c["vfr"])
            for cb in range(CB):
                for rb in range(RB):
                    a = acc(rb, cb)
                    if c["ln"]:
                        ln_apply(k, c, a, rb, c["vcs"] + 4 * cb)
                    k.e("v_cvt_pk_bf16_f32 v%d, v%d, v%d" % (a, a, a + 1))
                    k.e("v_cvt_pk_bf16_f32 v%d, v%d, v%d" % (a + 1, a + 2, a + 3))
                    ls.put(rb, cb, a)
            ls.flush(lambda k, gi, sreg: col_off(k, c, groups[gi][0], sreg, tot), c["vfr"] + 16)
            return
        if part:
            for rb in range(RB):
                k.e("v_mov_b32 v%d, 0" % (PS + 2 * rb))
                k.e("v_mov_b32 v%d, 0" % (PS + 1 + 2 * rb))
        row_base(k, c, ldc)
        tot = sum(s[3] for s in c["subs"])
        for cb in range(CB):
            col_off(k, c, cb, 25, tot)
            k.e("v_add_u32 v3, s25, v1")
            for rb in range(RB):
                a = acc(rb, cb)
                if c["ln"]:
                    ln_apply(k, c, a, rb, c["vcs"] + 4 * cb)
                k.e("v_cvt_pk_bf16_f32 v%d, v%d, v%d" % (a, a, a + 1))
                k.e("v_cvt_pk_bf16_f32 v%d, v%d, v%d" % (a + 1, a + 2, a + 3))
                if c["vres"] is not None:
                    r = c["vres"] + 2 * (rb * CB + cb)
                    for j in range(2):
                        k.e("v_lshlrev_b32 v6, 16, v%d" % (a + j))
                        k.e("v_and_b32 v7, 0xffff0000, v%d" % (a + j))
                        k.e("v_lshlrev_b32 v8, 16, v%d" % (r + j))
                        k.e("v_and_b32 v9, 0xffff0000, v%d" % (r + j))
                        k.e("v_add_f32 v6, v6, v8")
                        k.e("v_add_f32 v7, v7, v9")
                        k.e("v_cvt_pk_bf16_f32 v%d, v6, v7" % (a + j))
                        if part:
                            k.e("v_lshlrev_b32 v6, 16, v%d" % (a + j))
                            k.e("v_and_b32 v7, 0xffff0000, v%d" % (a + j))
                            k.e("v_add_f32 v%d, v%d, v6" % (PS + 2 * rb, PS + 2 * rb))
                            k.e("v_fmac_f32 v%d, v6, v6" % (PS + 1 + 2 * rb))
                            k.e("v_add_f32 v%d, v%d, v7" % (PS + 2 * rb, PS + 2 * rb))
                            k.e("v_fmac_f32 v%d, v7, v7" % (PS + 1 + 2 * rb))
                k.e("v_add_u32 v4, %d, v3" % (rb * 16 * ldc * 2))
                k.e("buffer_store_dwordx2 v[%d:%d], v4, s[40:43], 0 offen" % (a, a + 1))
        if part:
            srd(k, 44, KA_WS, WS_PART, S * 256)
            for v in range(PS, PS + 2 * RB):
                k.e("ds_swizzle_b32 v2, v%d offset:0x401F" % v)
                k.e("s_waitcnt lgkmcnt(0)")
                k.e("v_add_f32 v%d, v%d, v2" % (v, v))
                k.e("v_mov_b32 v2, v%d" % v)
                k.e("s_nop 1")
                k.e("v_permlane32_swap_b32 v%d, v2" % v)
                k.e("v_add_f32 v%d, v%d, v2" % (v, v))
            k.e("s_mul_i32 s25, s20, %d" % c["BM"])
            k.e("s_mul_i32 s26, s23, %d" % (RB * 16))
            k.e("s_add_u32 s25, s25, s26")
            k.e("v_add_u32 v1, s25, v0")
            k.e("v_lshlrev_b32 v1, 4, v1")
            k.e("s_lshl_b32 s25, s21, 15")
            k.e("s_lshl_b32 s26, s24, 3")
            k.e("s_add_u32 s25, s25, s26")
            k.e("v_add_u32 v1, s25, v1")
            k.e("v_cmp_gt_u32 vcc, 16, v0")
            k.e("s_and_saveexec_b64 s[52:53], vcc")
            for rb in range(RB):
                k.e("v_add_u32 v2, %d, v1" % (rb * 256))
                k.e("buffer_store_dwordx2 v[%d:%d], v2, s[44:47], 0 offen" % (PS + 2 * rb, PS + 1 + 2 * rb))
            k.e("s_mov_b64 exec, s[52:53]")
    return epi


def epi_swiglu(k, c):
    RB, CB, acc, colblocks, subs = c["RB"], c["CB"], c["acc"], c["colblocks"], c["subs"]
    ldc = F
    srd(k, 40, KA_WS, WS_ACT, S * F * 2)
    srd(k, 44, KA_WS, WS_CS, 2 * F * 4)
    half = CB // 2
    width = subs[0][3]
    vc = c["vfr"]
    assert 8 * half <= 32
    k.e("v_lshrrev_b32 v2, 4, v0")
    k.e("v_lshlrev_b32 v2, 4, v2")
    for cb in range(half):
        si, pmul, padd = colblocks[cb]
        assert si == 0 and colblocks[cb + half] == (1, pmul, padd)
        k.e("s_mul_i32 s25, s21, %d" % (width * 4))
        k.e("s_mul_i32 s26, s24, %d" % (pmul * 64))
        k.e("s_add_u32 s25, s25, s26")
        k.e("s_add_u32 s25, s25, %d" % (padd * 64))
        k.e("v_add_u32 v3, s25, v2")
        k.e("buffer_load_dwordx4 v[%d:%d], v3, s[44:47], 0 offen" % (vc + 8 * cb, vc + 8 * cb + 3))
        k.e("v_add_u32 v3, %d, v3" % (F * 4))
        k.e("buffer_load_dwordx4 v[%d:%d], v3, s[44:47], 0 offen" % (vc + 8 * cb + 4, vc + 8 * cb + 7))
    c["ws_stats"]()
    stamp(k, 2)
    ls = LdsStore(k, c, [list(range(half))], ldc, 40, 8, c["vfr"] + 40)
    for rb in range(RB):
        m = c["vsum"] + rb; q = c["vsq"] + rb
        k.e("v_sub_f32 v8, 0, v%d" % m)
        k.e("v_sub_f32 v9, 0, v%d" % m)
        k.e("v_mul_f32 v10, 0xbfb8aa3b, v%d" % q)
        k.e("v_mul_f32 v11, 0xbfb8aa3b, v%d" % q)
        k.e("v_mul_f32 v12, v%d, v%d" % (q, q))
        k.e("v_mul_f32 v13, v%d, v%d" % (q, q))
        for cb in range(half):
            g = acc(rb, cb); u = acc(rb, cb + half)
            cg = vc + 8 * cb; cu = cg + 4
            for r in (0, 2):
                k.e("v_pk_fma_f32 v[%d:%d], v[8:9], v[%d:%d], v[%d:%d]" % (g + r, g + r + 1, cg + r, cg + r + 1, g + r, g + r + 1))
            for r in (0, 2):
                k.e("v_pk_mul_f32 v[%d:%d], v[%d:%d], v[10:11]" % (4 + r, 5 + r, g + r, g + r + 1))
            for r in range(4):
                k.e("v_exp_f32 v%d, v%d" % (4 + r, 4 + r))
            for r in (0, 2):
                k.e("v_pk_fma_f32 v[%d:%d], v[8:9], v[%d:%d], v[%d:%d]" % (u + r, u + r + 1, cu + r, cu + r + 1, u + r, u + r + 1))
            for r in (0, 2):
                k.e("v_pk_add_f32 v[%d:%d], v[%d:%d], 1.0 op_sel_hi:[1,0]" % (4 + r, 5 + r, 4 + r, 5 + r))
            for r in range(4):
                k.e("v_rcp_f32 v%d, v%d" % (4 + r, 4 + r))
            for r in (0, 2):
                k.e("v_pk_mul_f32 v[%d:%d], v[%d:%d], v[%d:%d]" % (g + r, g + r + 1, g + r, g + r + 1, u + r, u + r + 1))
            for r in (0, 2):
                k.e("v_pk_mul_f32 v[%d:%d], v[%d:%d], v[12:13]" % (4 + r, 5 + r, 4 + r, 5 + r))
            for r in (0, 2):
                k.e("v_pk_mul_f32 v[%d:%d], v[%d:%d], v[%d:%d]" % (g + r, g + r + 1, g + r, g + r + 1, 4 + r, 5 + r))
            k.e("v_cvt_pk_bf16_f32 v%d, v%d, v%d" % (g, g, g + 1))
            k.e("v_cvt_pk_bf16_f32 v%d, v%d, v%d" % (g + 1, g + 2, g + 3))
            ls.put(rb, cb, g)

    def colbase(k, gi, sreg):
        si, pmul, padd = colblocks[0]
        k.e("s_mul_i32 s%d, s21, %d" % (sreg, width * 2))
        k.e("s_mul_i32 s26, s24, %d" % (pmul * 32))
        k.e("s_add_u32 s%d, s%d, s26" % (sreg, sreg))
    ls.flush(colbase, c["vfr"] + 56)


def gen_attn(name):
    MIMIC = 'mimic' in EXP
    NATT = 512
    NCS = 2 * F // 64
    NPF = 32
    NH = NCS + NPF
    nwg = NATT + NH
    KV_ROWS = 384
    K_LDS = 0
    V_LDS = KV_ROWS * 64
    k = Kern(name, (nwg, 1, 1), (256, 1, 1), 2 * KV_ROWS * 64, 0)
    lab = lambda s: "%s_%s" % (name, s)
    k.e("s_cmp_ge_u32 s2, %d" % nwg)
    k.e("s_cbranch_scc1 %s" % lab("end"))
    load_ptrs(k)
    if 'hlast' in EXP:
        k.e("s_sub_u32 s2, s2, %d" % NATT)
        k.e("s_cmp_lt_u32 s2, %d" % NH)
        k.e("s_cbranch_scc1 %s" % lab("cs"))
        k.e("s_add_u32 s2, s2, %d" % NATT)
    else:
        k.e("s_cmp_lt_u32 s2, %d" % NH)
        k.e("s_cbranch_scc1 %s" % lab("cs"))
        k.e("s_sub_u32 s2, s2, %d" % NH)
    stamp(k, 0)
    srd(k, 4, KA_WS, WS_QKV, S * 3 * D * 2)
    srd(k, 8, KA_WS, WS_O, S * D * 2)
    k.e("s_and_b32 s20, s2, 31")
    k.e("s_lshr_b32 s21, s2, 5")
    k.e("v_lshrrev_b32 v1, 6, v0")
    k.e("s_nop 0")
    k.e("v_readfirstlane_b32 s22, v1")
    k.e("v_and_b32 v0, 63, v0")
    k.e("""
    v_lshrrev_b32 v1, 2, v0
    v_and_b32 v2, 3, v0
    v_bfe_u32 v3, v0, 4, 2
    v_xor_b32 v2, v2, v3
    v_lshlrev_b32 v2, 4, v2
    s_lshl_b32 s23, s21, 7
    s_mul_i32 s24, s22, 96
    s_add_u32 s23, s23, s24
    s_sub_u32 s23, s23, 256
    v_add_u32 v1, s23, v1
    s_mov_b32 s24, %d
    v_mul_lo_u32 v1, v1, s24
    v_add_u32 v1, v1, v2
    s_lshl_b32 s24, s20, 6
    v_add_u32 v1, s24, v1
    s_mul_i32 s25, s22, 6144
    """ % (3 * D * 2))
    for mat, ldsb in ((1, K_LDS), (2, V_LDS)):
        for t in range(6):
            k.e("v_add_u32 v2, %d, v1" % (t * 16 * 3 * D * 2 + mat * D * 2))
            k.e("s_add_u32 m0, s25, %d" % (ldsb + t * 1024))
            k.e("s_nop 0")
            k.e("buffer_load_dwordx4 v2, s[4:7], 0 offen lds")
    k.e("""
    s_lshl_b32 s23, s21, 7
    s_lshl_b32 s24, s22, 5
    s_add_u32 s23, s23, s24
    v_and_b32 v1, 31, v0
    v_add_u32 v1, s23, v1
    s_mov_b32 s24, %d
    v_mul_lo_u32 v1, v1, s24
    v_lshrrev_b32 v2, 5, v0
    v_lshlrev_b32 v2, 4, v2
    s_lshl_b32 s24, s20, 6
    v_add3_u32 v1, v1, v2, s24
    buffer_load_dwordx4 v[4:7], v1, s[4:7], 0 offen
    buffer_load_dwordx4 v[8:11], v1, s[4:7], 0 offen offset:32
    v_and_b32 v1, 31, v0
    v_lshlrev_b32 v12, 6, v1
    v_bfe_u32 v2, v0, 2, 2
    v_lshrrev_b32 v3, 5, v0
    v_xor_b32 v13, v3, v2
    v_lshlrev_b32 v13, 4, v13
    v_add_u32 v13, v12, v13
    v_or_b32 v3, 2, v3
    v_xor_b32 v14, v3, v2
    v_lshlrev_b32 v14, 4, v14
    v_add_u32 v14, v12, v14
    s_lshl_b32 s24, s22, 11
    v_add_u32 v13, s24, v13
    v_add_u32 v14, s24, v14
    v_bfe_u32 v1, v0, 5, 1
    v_lshlrev_b32 v1, 2, v1
    v_bfe_u32 v2, v0, 2, 2
    v_add_u32 v1, v1, v2
    v_bfe_u32 v2, v0, 4, 1
    v_lshlrev_b32 v2, 1, v2
    v_bfe_u32 v3, v0, 1, 1
    v_or_b32 v2, v2, v3
    v_and_b32 v3, 1, v0
    v_lshlrev_b32 v3, 3, v3
    """ % (3 * D * 2))
    for j in range(4):
        k.e("v_add_u32 v19, %d, v1" % (8 * j))
        k.e("v_bfe_u32 v20, v19, 2, 2")
        k.e("v_xor_b32 v20, v20, v2")
        k.e("v_lshlrev_b32 v20, 4, v20")
        k.e("v_lshlrev_b32 v19, 6, v19")
        k.e("v_add3_u32 v%d, v19, v20, v3" % (15 + j))
        k.e("v_add_u32 v%d, s24, v%d" % (15 + j, 15 + j))
    k.e("s_waitcnt vmcnt(0)")
    k.e("s_barrier")
    stamp(k, 1)
    SB = 48
    k.e("ds_read_b128 v[20:23], v13 offset:%d" % K_LDS)
    k.e("ds_read_b128 v[24:27], v14 offset:%d" % K_LDS)
    for b in range(9):
        f = 20 + 8 * (b & 1); fn = 20 + 8 * ((b + 1) & 1)
        if b < 8:
            k.e("ds_read_b128 v[%d:%d], v13 offset:%d" % (fn, fn + 3, K_LDS + (b + 1) * 2048))
            k.e("ds_read_b128 v[%d:%d], v14 offset:%d" % (fn + 4, fn + 7, K_LDS + (b + 1) * 2048))
            k.e("s_waitcnt lgkmcnt(2)")
        else:
            k.e("s_waitcnt lgkmcnt(0)")
        s0 = SB + b * 16
        k.e("v_mfma_f32_32x32x16_bf16 v[%d:%d], v[%d:%d], v[4:7], 0" % (s0, s0 + 15, f, f + 3))
        k.e("v_mfma_f32_32x32x16_bf16 v[%d:%d], v[%d:%d], v[8:11], v[%d:%d]" % (s0, s0 + 15, f + 4, f + 7, s0, s0 + 15))
    k.e("s_nop 15")
    NSR = 144
    stamp(k, 2)
    if MIMIC:
        for r in range(0, NSR, 2):
            a = SB + r
            k.e("v_cvt_pk_bf16_f32 v36, v%d, v%d" % (a, a + 1))
            k.e("v_lshlrev_b32 v%d, 16, v36" % a)
            k.e("v_and_b32 v%d, 0xffff0000, v36" % (a + 1))
            k.e("v_mul_f32 v%d, 0x3e3504f3, v%d" % (a, a))
            k.e("v_mul_f32 v%d, 0x3e3504f3, v%d" % (a + 1, a + 1))
            k.e("v_cvt_pk_bf16_f32 v36, v%d, v%d" % (a, a + 1))
            k.e("v_lshlrev_b32 v%d, 16, v36" % a)
            k.e("v_and_b32 v%d, 0xffff0000, v36" % (a + 1))
        k.e("s_mov_b32 s26, 0x3fb8aa3b")
    else:
        k.e("s_mov_b32 s26, 0x3e8293ee")
    k.e("v_and_b32 v1, 31, v0")
    k.e("v_lshrrev_b32 v2, 5, v0")
    k.e("v_lshlrev_b32 v2, 2, v2")
    k.e("v_sub_u32 v1, v1, v2")
    k.e("v_mov_b32 v3, 0xce6e6b28")
    for r in range(16):
        c = (r & 3) + 8 * (r >> 2)
        k.e("v_cmp_ge_i32 vcc, v1, %d" % c)
        k.e("s_nop 1")
        k.e("v_cndmask_b32 v%d, v%d, v3, vcc" % (SB + r, SB + r))
        k.e("v_cndmask_b32 v%d, v3, v%d, vcc" % (SB + 128 + r, SB + 128 + r))
    k.e("s_lshl_b32 s23, s21, 2")
    k.e("s_add_u32 s23, s23, s22")
    k.e("s_cmp_ge_u32 s23, 8")
    k.e("s_cbranch_scc1 %s" % lab("nomask"))
    for b in range(8):
        k.e("s_cmp_lt_u32 s23, %d" % (8 - b))
        k.e("s_cbranch_scc0 %s" % lab("nm%d" % b))
        for r in range(16):
            k.e("v_mov_b32 v%d, v3" % (SB + b * 16 + r))
        k.lab(lab("nm%d" % b))
    k.lab(lab("nomask"))
    k.e("v_max_f32 v1, v%d, v%d" % (SB, SB + 1))
    for r in range(2, NSR, 2):
        k.e("v_max3_f32 v1, v1, v%d, v%d" % (SB + r, SB + r + 1))
    k.e("v_mov_b32 v2, v1")
    k.e("s_nop 1")
    k.e("v_permlane32_swap_b32 v1, v2")
    k.e("v_max_f32 v1, v1, v2")
    k.e("v_mul_f32 v1, s26, v1")
    k.e("v_sub_f32 v36, 0, v1")
    k.e("v_sub_f32 v37, 0, v1")
    k.e("v_mov_b32 v38, s26")
    k.e("v_mov_b32 v39, s26")
    k.e("v_mov_b32 v2, 0")
    k.e("v_mov_b32 v3, 0")
    PB = None
    for b in range(9):
        for r in range(0, 16, 2):
            a = SB + b * 16 + r
            k.e("v_pk_fma_f32 v[%d:%d], v[%d:%d], v[38:39], v[36:37]" % (a, a + 1, a, a + 1))
        for r in range(16):
            a = SB + b * 16 + r
            k.e("v_exp_f32 v%d, v%d" % (a, a))
        k.e("s_nop 0")
        if not MIMIC:
            for j in range(8):
                a = SB + b * 16 + 2 * j
                k.e("v_pk_add_f32 v[2:3], v[2:3], v[%d:%d]" % (a, a + 1))
                k.e("v_cvt_pk_bf16_f32 v%d, v%d, v%d" % (SB + b * 16 + j, a, a + 1))
    if MIMIC:
        for r in range(NSR):
            k.e("v_add_f32 v2, v2, v%d" % (SB + r))
    k.e("v_add_f32 v2, v2, v3")
    k.e("v_mov_b32 v3, v2")
    k.e("s_nop 1")
    k.e("v_permlane32_swap_b32 v2, v3")
    k.e("v_add_f32 v2, v2, v3")
    k.e("v_rcp_f32 v2, v2")
    k.e("s_nop 0")
    if MIMIC:
        for b in range(9):
            for j in range(8):
                a = SB + b * 16 + 2 * j
                k.e("v_mul_f32 v%d, v%d, v2" % (a, a))
                k.e("v_mul_f32 v%d, v%d, v2" % (a + 1, a + 1))
                k.e("v_cvt_pk_bf16_f32 v%d, v%d, v%d" % (SB + b * 16 + j, a, a + 1))
    OA = 192
    stamp(k, 3)
    for j in range(4):
        k.e("ds_read_b64_tr_b16 v[%d:%d], v%d offset:%d" % (20 + 2 * j, 21 + 2 * j, 15 + j, V_LDS))
    for b in range(9):
        f = 20 + 8 * (b & 1); fn = 20 + 8 * ((b + 1) & 1)
        if b < 8:
            for j in range(4):
                k.e("ds_read_b64_tr_b16 v[%d:%d], v%d offset:%d" % (fn + 2 * j, fn + 2 * j + 1, 15 + j, V_LDS + (b + 1) * 2048))
            k.e("s_waitcnt lgkmcnt(4)")
        else:
            k.e("s_waitcnt lgkmcnt(0)")
        p = SB + b * 16
        if b == 0:
            k.e("v_mfma_f32_32x32x16_bf16 v[%d:%d], v[%d:%d], v[%d:%d], 0" % (OA, OA + 15, f, f + 3, p, p + 3))
        else:
            k.e("v_mfma_f32_32x32x16_bf16 v[%d:%d], v[%d:%d], v[%d:%d], v[%d:%d]" % (OA, OA + 15, f, f + 3, p, p + 3, OA, OA + 15))
        k.e("v_mfma_f32_32x32x16_bf16 v[%d:%d], v[%d:%d], v[%d:%d], v[%d:%d]" % (OA, OA + 15, f + 4, f + 7, p + 4, p + 7, OA, OA + 15))
    k.e("""
    s_lshl_b32 s23, s21, 7
    s_lshl_b32 s24, s22, 5
    s_add_u32 s23, s23, s24
    v_and_b32 v1, 31, v0
    v_add_u32 v1, s23, v1
    v_lshlrev_b32 v1, 11, v1
    v_lshrrev_b32 v3, 5, v0
    v_lshlrev_b32 v3, 3, v3
    s_lshl_b32 s24, s20, 6
    v_add3_u32 v1, v1, v3, s24
    s_nop 7
    """)
    if not MIMIC:
        for r in range(16):
            k.e("v_mul_f32 v%d, v%d, v2" % (OA + r, OA + r))
    for j in range(4):
        k.e("v_cvt_pk_bf16_f32 v%d, v%d, v%d" % (208 + 2 * j, OA + 4 * j, OA + 1 + 4 * j))
        k.e("v_cvt_pk_bf16_f32 v%d, v%d, v%d" % (209 + 2 * j, OA + 2 + 4 * j, OA + 3 + 4 * j))
        k.e("buffer_store_dwordx2 v[%d:%d], v1, s[8:11], 0 offen offset:%d" % (208 + 2 * j, 209 + 2 * j, 16 * j))
    stamp_store(k, 4, 4)
    k.e("s_endpgm")
    k.lab(lab("cs"))
    k.e("s_cmp_ge_u32 s2, %d" % NCS)
    k.e("s_cbranch_scc1 %s" % lab("pf"))
    k.e("s_mov_b32 s20, s2")
    k.e("s_cmp_lt_u32 s20, 56")
    k.e("s_cselect_b32 s4, s%d, s%d" % (PTR0 + 2 * KA_W1, PTR0 + 2 * KA_W3))
    k.e("s_cselect_b32 s5, s%d, s%d" % (PTR0 + 2 * KA_W1 + 1, PTR0 + 2 * KA_W3 + 1))
    k.e("s_cselect_b32 s21, 0, 56")
    k.e("s_and_b32 s5, s5, 0xffff")
    k.e("s_mov_b32 s6, %d" % (D * F * 2))
    k.e("s_mov_b32 s7, 0x00020000")
    k.e("s_sub_u32 s21, s20, s21")
    srd(k, 8, KA_WS, WS_CS, 2 * F * 4)
    k.e("""
    v_lshrrev_b32 v1, 3, v0
    v_and_b32 v2, 7, v0
    s_mov_b32 s22, %d
    v_mul_lo_u32 v1, v1, s22
    v_lshlrev_b32 v2, 4, v2
    s_lshl_b32 s22, s21, 7
    v_add3_u32 v1, v1, v2, s22
    """ % (F * 2))
    for r in range(8):
        k.e("v_mov_b32 v%d, 0" % (8 + r))
    for half in range(1):
        for i in range(32):
            k.e("v_add_u32 v2, %d, v1" % (i * 32 * F * 2))
            k.e("buffer_load_dwordx4 v[%d:%d], v2, s[4:7], 0 offen" % (16 + 4 * i, 19 + 4 * i))
        for i in range(32):
            k.e("s_waitcnt vmcnt(%d)" % (31 - i))
            for j in range(4):
                k.e("v_lshlrev_b32 v3, 16, v%d" % (16 + 4 * i + j))
                k.e("v_and_b32 v4, 0xffff0000, v%d" % (16 + 4 * i + j))
                k.e("v_add_f32 v%d, v%d, v3" % (8 + 2 * j, 8 + 2 * j))
                k.e("v_add_f32 v%d, v%d, v4" % (9 + 2 * j, 9 + 2 * j))
    k.e("v_lshlrev_b32 v2, 5, v0")
    k.e("ds_write_b128 v2, v[8:11]")
    k.e("ds_write_b128 v2, v[12:15] offset:16")
    k.e("s_waitcnt lgkmcnt(0)")
    k.e("s_barrier")
    k.e("v_cmp_gt_u32 vcc, 64, v0")
    k.e("s_and_saveexec_b64 s[24:25], vcc")
    k.e("s_cbranch_execz %s" % lab("end"))
    k.e("v_lshlrev_b32 v2, 2, v0")
    for i in range(32):
        k.e("ds_read_b32 v%d, v2 offset:%d" % (16 + i, i * 256))
    k.e("s_waitcnt lgkmcnt(0)")
    for i in range(1, 32):
        k.e("v_add_f32 v16, v16, v%d" % (16 + i))
    k.e("s_lshl_b32 s22, s20, 8")
    k.e("v_add_u32 v2, s22, v2")
    k.e("buffer_store_dword v16, v2, s[8:11], 0 offen")
    k.e("s_endpgm")
    k.lab(lab("pf"))
    k.e("s_sub_u32 s20, s2, %d" % NCS)
    k.e("s_cmp_lt_u32 s20, 0")
    k.e("s_cselect_b32 s4, s%d, s%d" % (PTR0 + 2 * KA_W2, PTR0 + 2 * KA_WO))
    k.e("s_cselect_b32 s5, s%d, s%d" % (PTR0 + 2 * KA_W2 + 1, PTR0 + 2 * KA_WO + 1))
    k.e("s_mov_b32 s23, %d" % (D * D * 2))
    k.e("s_cselect_b32 s6, %d, s23" % (F * D * 2))
    k.e("s_cselect_b32 s21, 0, 0")
    k.e("s_mov_b32 s22, 65536")
    k.e("s_and_b32 s5, s5, 0xffff")
    k.e("s_mov_b32 s7, 0x00020000")
    k.e("s_sub_u32 s21, s20, s21")
    k.e("s_mul_i32 s21, s21, s22")
    k.e("v_lshlrev_b32 v1, 4, v0")
    k.e("v_add_u32 v1, s21, v1")
    for i in range(16):
        k.e("buffer_load_dwordx4 v[%d:%d], v1, s[4:7], 0 offen" % (8 + 4 * i, 11 + 4 * i))
        k.e("v_add_u32 v1, 4096, v1")
    k.e("s_waitcnt vmcnt(0)")
    k.lab(lab("end"))
    k.e("s_endpgm")
    k.nvgpr = 216
    return k


def gen_g3(name, npf=32):
    BM = 256; RB = 4; CB = 8; NWC = 8; R = 5; STAGE = 32768; nk = 32
    ntm, ntn = 8, 28
    nwg = ntm * ntn
    subs = [(KA_W1, 0, F, 128, 128), (KA_W3, 0, F, 128, 128)]
    colblocks = [(0, 4, j) for j in range(4)] + [(1, 4, j) for j in range(4)]
    sub_lds = [16384, 24576]
    k = Kern(name, (nwg + npf, 1, 1), (512, 1, 1), R * STAGE, 0)
    lab = lambda s: "%s_%s" % (name, s)
    k.e("s_cmp_ge_u32 s2, %d" % (nwg + npf))
    k.e("s_cbranch_scc1 %s" % lab("end"))
    stamp(k, 0)
    load_ptrs(k)
    k.e("s_cmp_lt_u32 s2, %d" % nwg)
    k.e("s_cbranch_scc1 %s" % lab("main"))
    srd(k, 4, KA_W2, 0, F * D * 2)
    per = F * D * 2 // npf
    k.e("s_sub_u32 s20, s2, %d" % nwg)
    k.e("s_mul_i32 s20, s20, %d" % per)
    k.e("v_lshlrev_b32 v1, 4, v0")
    k.e("v_add_u32 v1, s20, v1")
    for i in range(per // 8192):
        k.e("buffer_load_dwordx4 v[%d:%d], v1, s[4:7], 0 offen" % (8 + 4 * i, 11 + 4 * i))
        k.e("v_add_u32 v1, 8192, v1")
    k.e("s_waitcnt vmcnt(0)")
    k.e("s_endpgm")
    k.lab(lab("main"))
    srd(k, 4, KA_WS, WS_H, S * D * 2)
    srd(k, 8, KA_W1, 0, D * F * 2)
    srd(k, 12, KA_W3, 0, D * F * 2)
    k.e("""
    s_and_b32 s25, s2, 7
    s_lshr_b32 s26, s2, 3
    s_and_b32 s20, s25, 1
    s_mul_i32 s20, s20, 4
    s_and_b32 s27, s26, 3
    s_add_u32 s20, s20, s27
    s_lshr_b32 s21, s25, 1
    s_mul_i32 s21, s21, 7
    s_lshr_b32 s27, s26, 2
    s_add_u32 s21, s21, s27
    v_lshrrev_b32 v1, 6, v0
    s_nop 0
    v_readfirstlane_b32 s19, v1
    s_and_b32 s23, s19, 3
    s_lshr_b32 s24, s19, 2
    v_and_b32 v0, 63, v0
    """)
    vAd, vBd = 2, 4
    vAb = 6
    vAr = 15
    vsum, vsq = 24, 28
    vfr = 36
    vacc = vfr + 88
    T0, T1, T2 = vfr, vfr + 1, vfr + 2
    acc = lambda rb, cb: vacc + (rb * CB + cb) * 4
    vend = vacc + RB * CB * 4
    k.nvgpr = vend
    fA = lambda rb: vfr + 4 * rb
    fB = lambda cb: vfr + 16 + 4 * cb
    def sw(dst, rg, t):
        k.e("v_lshlrev_b32 v%d, 1, v%d" % (dst, rg))
        k.e("v_and_b32 v%d, 3, v%d" % (dst, dst))
        k.e("v_lshrrev_b32 v%d, 1, v%d" % (t, rg))
        k.e("v_mul_u32_u24 v%d, 3, v%d" % (t, t))
        k.e("v_xor_b32 v%d, v%d, v%d" % (dst, dst, t))
    k.e("v_bfe_u32 v1, v0, 4, 2")
    sw(T0, 1, T1)
    k.e("v_and_b32 v%d, 3, v0" % T1)
    k.e("v_xor_b32 v%d, v%d, v%d" % (T0, T0, T1))
    k.e("v_lshlrev_b32 v%d, 4, v%d" % (T0, T0))
    k.e("v_lshrrev_b32 v1, 2, v0")
    k.e("s_lshl_b32 s25, s19, 5")
    k.e("s_lshl_b32 s26, s20, 8")
    k.e("s_add_u32 s25, s25, s26")
    k.e("v_add_u32 v1, s25, v1")
    k.e("v_lshlrev_b32 v1, 11, v1")
    k.e("v_add_u32 v%d, v1, v%d" % (vAd, T0))
    k.e("v_add_u32 v%d, %d, v%d" % (vAd + 1, 16 * 2048, vAd))
    k.e("v_lshrrev_b32 v1, 4, v0")
    k.e("s_lshl_b32 s25, s19, 2")
    k.e("v_add_u32 v1, s25, v1")
    k.e("v_and_b32 v%d, 3, v1" % T0)
    k.e("v_lshrrev_b32 v%d, 1, v1" % T1)
    k.e("v_and_b32 v%d, 4, v%d" % (T1, T1))
    k.e("v_or_b32 v%d, v%d, v%d" % (T0, T0, T1))
    k.e("v_lshlrev_b32 v%d, 1, v%d" % (T0, T0))
    k.e("v_and_b32 v%d, 15, v0" % T1)
    k.e("v_xor_b32 v%d, v%d, v%d" % (T0, T0, T1))
    k.e("v_lshlrev_b32 v%d, 4, v%d" % (T0, T0))
    k.e("s_mov_b32 s26, %d" % (F * 2))
    k.e("v_mul_lo_u32 v1, v1, s26")
    k.e("s_lshl_b32 s26, s21, 8")
    k.e("v_add3_u32 v%d, v1, v%d, s26" % (vBd, T0))
    k.e("v_mov_b32 v%d, v%d" % (vBd + 1, vBd))
    k.e("v_bfe_u32 v1, v0, 2, 2")
    sw(T0, 1, T1)
    k.e("v_lshrrev_b32 v%d, 4, v0" % T1)
    k.e("v_xor_b32 v%d, v%d, v%d" % (T0, T0, T1))
    k.e("v_lshlrev_b32 v%d, 4, v%d" % (T0, T0))
    k.e("v_and_b32 v1, 15, v0")
    k.e("v_lshlrev_b32 v1, 6, v1")
    k.e("s_lshl_b32 s25, s23, 12")
    k.e("v_add3_u32 v%d, v1, v%d, s25" % (vAb, T0))
    for cb, (si, pmul, padd) in enumerate(colblocks):
        k.e("""
        v_lshrrev_b32 v1, 4, v0
        v_lshlrev_b32 v1, 3, v1
        v_bfe_u32 v%d, v0, 2, 2
        v_add_u32 v1, v1, v%d
        v_bfe_u32 v%d, v0, 4, 1
        v_lshlrev_b32 v%d, 2, v%d
        v_or_b32 v%d, v%d, v%d
        """ % (T0, T0, T1, T1, T1, T1, T1, T0))
        k.e("s_mul_i32 s25, s24, %d" % pmul)
        k.e("s_add_u32 s25, s25, %d" % padd)
        k.e("v_xor_b32 v%d, s25, v%d" % (T1, T1))
        k.e("v_lshlrev_b32 v%d, 5, v%d" % (T1, T1))
        k.e("v_lshlrev_b32 v1, 8, v1")
        k.e("v_and_b32 v%d, 3, v0" % T2)
        k.e("v_lshlrev_b32 v%d, 3, v%d" % (T2, T2))
        k.e("v_add3_u32 v%d, v1, v%d, v%d" % (vAb + 1 + cb, T1, T2))
        k.e("v_add_u32 v%d, %d, v%d" % (vAb + 1 + cb, sub_lds[si], vAb + 1 + cb))
    for r in range(vacc, vend):
        k.e("v_mov_b32 v%d, 0" % r)
    k.e("""
    s_mov_b32 s30, 0
    s_mov_b32 s31, 0
    s_mov_b32 s34, 0
    s_lshl_b32 s35, s19, 11
    s_lshl_b32 s44, s19, 10
    s_add_u32 s45, s44, 24576
    s_add_u32 s44, s44, 16384
    s_mov_b32 s37, 0
    s_mov_b32 s38, 0
    """)

    def dma():
        k.e("""
        s_add_u32 s36, s34, s35
        s_mov_b32 m0, s36
        s_nop 0
        buffer_load_dwordx4 v%d, s[4:7], s30 offen lds
        s_add_u32 m0, s36, 1024
        s_nop 0
        buffer_load_dwordx4 v%d, s[4:7], s30 offen lds
        s_add_u32 m0, s34, s44
        s_nop 0
        buffer_load_dwordx4 v%d, s[8:11], s31 offen lds
        s_add_u32 m0, s34, s45
        s_nop 0
        buffer_load_dwordx4 v%d, s[12:15], s31 offen lds
        s_add_u32 s30, s30, 64
        s_add_u32 s31, s31, %d
        s_add_u32 s34, s34, %d
        s_cmp_eq_u32 s34, %d
        s_cselect_b32 s34, 0, s34
        """ % (vAd, vAd + 1, vBd, vBd + 1, 32 * F * 2, STAGE, R * STAGE))

    def loadphase():
        dma()
        for r in range(9):
            k.e("v_add_u32 v%d, s38, v%d" % (vAr + r, vAb + r))
        k.e("s_add_u32 s38, s38, %d\ns_cmp_eq_u32 s38, %d\ns_cselect_b32 s38, 0, s38" % (STAGE, R * STAGE))
        for rb in range(RB):
            k.e("ds_read_b128 v[%d:%d], v%d offset:%d" % (fA(rb), fA(rb) + 3, vAr, rb * 1024))
        for cb in range(CB):
            k.e("ds_read_b64_tr_b16 v[%d:%d], v%d" % (fB(cb), fB(cb) + 1, vAr + 1 + cb))
            k.e("ds_read_b64_tr_b16 v[%d:%d], v%d offset:1024" % (fB(cb) + 2, fB(cb) + 3, vAr + 1 + cb))
        k.e("s_waitcnt lgkmcnt(0)")

    def compphase():
        for rb in range(RB):
            for cb in range(CB):
                a = acc(rb, cb)
                k.e("v_mfma_f32_16x16x32_bf16 v[%d:%d], v[%d:%d], v[%d:%d], v[%d:%d]" % (
                    a, a + 3, fB(cb), fB(cb) + 3, fA(rb), fA(rb) + 3, a, a + 3))

    for _ in range(4):
        dma()
    stamp(k, 1)
    k.e("s_waitcnt vmcnt(12)")
    k.e("s_barrier")
    k.e("s_cmp_ge_u32 s19, 4")
    k.e("s_cbranch_scc1 %s" % lab("ypath"))
    loadphase()
    k.e("s_barrier")
    k.lab(lab("xloop"))
    compphase()
    k.e("s_waitcnt vmcnt(12)")
    k.e("s_barrier")
    loadphase()
    k.e("s_barrier")
    k.e("s_add_u32 s37, s37, 1")
    k.e("s_cmp_lt_u32 s37, %d" % nk)
    k.e("s_cbranch_scc1 %s" % lab("xloop"))
    k.e("s_branch %s" % lab("done"))
    k.lab(lab("ypath"))
    k.e("s_barrier")
    k.lab(lab("loop"))
    loadphase()
    k.e("s_waitcnt vmcnt(12)")
    k.e("s_barrier")
    compphase()
    k.e("s_barrier")
    k.e("s_add_u32 s37, s37, 1")
    k.e("s_cmp_lt_u32 s37, %d" % nk)
    k.e("s_cbranch_scc1 %s" % lab("loop"))
    k.lab(lab("done"))
    k.e("s_waitcnt vmcnt(0) lgkmcnt(0)")
    k.e("s_barrier")
    stamp(k, 3)
    k.e("s_nop 7")
    ctx = dict(RB=RB, CB=CB, acc=acc, colblocks=colblocks, subs=subs, BM=BM, vend=vend, vres=None, ln='ws',
               vsum=vsum, vsq=vsq, vcs=None, Kdim=1024, lab=lab, vfr=vfr)

    def ws_stats():
        srd(k, 48, KA_WS, WS_PART, S * 256)
        t = vfr + 36
        dbase = [vfr + 40, vfr + 56, vfr + 72, 4]
        k.e("s_mul_i32 s25, s20, %d" % BM)
        k.e("s_mul_i32 s26, s23, %d" % (RB * 16))
        k.e("s_add_u32 s25, s25, s26")
        k.e("v_and_b32 v%d, 15, v0" % t)
        k.e("v_add_u32 v%d, s25, v%d" % (t, t))
        k.e("v_lshlrev_b32 v%d, 4, v%d" % (t, t))
        k.e("v_lshrrev_b32 v%d, 4, v0" % (t + 1))
        k.e("v_lshlrev_b32 v%d, 17, v%d" % (t + 1, t + 1))
        k.e("v_add_u32 v%d, v%d, v%d" % (t, t, t + 1))
        for j in range(4):
            if j:
                k.e("v_add_u32 v%d, 32768, v%d" % (t, t))
            for rb in range(RB):
                d = dbase[rb] + 4 * j
                k.e("buffer_load_dwordx4 v[%d:%d], v%d, s[48:51], 0 offen offset:%d" % (d, d + 3, t, 256 * rb))
        k.e("s_waitcnt vmcnt(0)")
        for rb in range(RB):
            d = dbase[rb]
            k.e("v_add_f32 v%d, v%d, v%d" % (vsum + rb, d, d + 2))
            k.e("v_add_f32 v%d, v%d, v%d" % (vsq + rb, d + 1, d + 3))
            for j in range(2, 8):
                k.e("v_add_f32 v%d, v%d, v%d" % (vsum + rb, vsum + rb, d + 2 * j))
                k.e("v_add_f32 v%d, v%d, v%d" % (vsq + rb, vsq + rb, d + 2 * j + 1))
        ctx["vtmp"] = vfr + 40
        ln_finish(k, ctx)
    ctx["ws_stats"] = ws_stats
    epi_swiglu(k, ctx)
    stamp_store(k, 4, 2)
    k.lab(lab("end"))
    k.e("s_endpgm")
    return k


def build():
    ks = []
    ks.append(gen_gemm("g1_kernel", 128, 2, 2, 1024, KA_X, 0,
                       [(KA_WQKV, 0, 3072, 128, 192), (KA_WQKV, 256, 3072, 64, 192)],
                       [(0, 4, 0), (0, 4, 1), (0, 4, 2), (0, 4, 3), (1, 2, 0), (1, 2, 1)], 16,
                       epi_store_factory(3072, KA_WS, WS_QKV, S * 3072 * 2, groups=[[0, 1, 2, 3], [4, 5]]), (4, 8), NL=4, ln='mfma'))
    ks.append(gen_attn("attn_kernel"))
    ks.append(gen_gemm("g2_kernel", 128, 2, 2, 1024, KA_WS, WS_O, [(KA_WO, 0, 1024, 64, 64)],
                       [(0, 2, 0), (0, 2, 1)], 16,
                       epi_store_factory(1024, KA_WS, WS_H, S * D * 2, part=True), (4, 8), NL=int(os.environ.get('NL24', '4')), res=(KA_X, 0)))
    if 'newg3' not in EXP:
        ks.append(gen_gemm("g3_kernel", 256, 4, 2, 1024, KA_WS, WS_H,
                           [(KA_W1, 0, F, 128, 128), (KA_W3, 0, F, 128, 128)],
                           [(0, 4, j) for j in range(4)] + [(1, 4, j) for j in range(4)], 28, epi_swiglu, (4, 7), ln='ws', pp=True, npf=32))
    else:
        ks.append(gen_g3("g3_kernel"))
    ks.append(gen_gemm("g4_kernel", 128, 2, 2, F, KA_WS, WS_ACT, [(KA_W2, 0, 1024, 64, 64)],
                       [(0, 2, 0), (0, 2, 1)], 16,
                       epi_store_factory(1024, KA_OUT, 0, S * D * 2), (4, 8), NL=int(os.environ.get('NL24', '4')), res=(KA_WS, WS_H)))
    return ks


def main():
    ks = build()
    out = [HEADER.rstrip()]
    for k in ks:
        out.append("; @launch kernel=%s grid=(%d,%d,%d) block=(%d,%d,%d) lds=%d" % ((k.name,) + k.grid + k.block + (k.lds,)))
    out.append('.amdgcn_target "amdgcn-amd-amdhsa--gfx950"')
    out.append(".text")
    for k in ks:
        out.append(k.text())
    out.append('.section .rodata,"a"')
    for k in ks:
        out.append(".p2align 6")
        out.append(k.desc())
    open(sys.argv[1] if len(sys.argv) > 1 else "sequential_preLN__sliding_block__glu_gated_swiglu__prompt.s", "w").write("\n".join(out) + "\n")


if __name__ == "__main__":
    main()
```

```python
import sys, os
EXP = os.environ.get('EXP', '')
STFLAG = ' sc1'

S = 2048; D = 1024; F = 3584
MB = 1 << 20
WS_QKV = 4 * MB
WS_O = 16 * MB
WS_H = 20 * MB
WS_ACT = 28 * MB
WS_PART = 49 * MB
WS_CS = 48 * MB

KA_X, KA_WQKV, KA_WO, KA_BX, KA_W1, KA_W3, KA_W2, KA_OUT, KA_DBG, KA_WS = range(10)
PTR0 = 64

HEADER = """; Kernarg layout for this problem (80 bytes, ptrs only, base s[0:1]):
;   offset  72: d_ws      268435456 bytes workspace
"""


class Kern:
    def __init__(self, name, grid, block, lds, nvgpr, nsgpr=100):
        self.name = name; self.grid = grid; self.block = block; self.lds = lds
        self.nvgpr = nvgpr; self.nsgpr = nsgpr
        self.lines = []

    def e(self, s):
        for ln in s.strip().split("\n"):
            if ln.strip():
                self.lines.append("    " + ln.strip())

    def lab(self, l):
        self.lines.append(l + ":")

    def text(self):
        out = [".globl %s" % self.name, ".p2align 8", ".type %s,@function" % self.name, "%s:" % self.name]
        return "\n".join(out + self.lines)

    def desc(self):
        nv = self.nvgpr
        return """.amdhsa_kernel %s
  .amdhsa_next_free_vgpr %d
  .amdhsa_next_free_sgpr %d
  .amdhsa_accum_offset %d
  .amdhsa_group_segment_fixed_size 0
  .amdhsa_kernarg_size 80
  .amdhsa_user_sgpr_count 2
  .amdhsa_user_sgpr_kernarg_segment_ptr 1
  .amdhsa_system_sgpr_workgroup_id_x 1
.end_amdhsa_kernel""" % (self.name, nv, self.nsgpr, (nv + 3) // 4 * 4)


def load_ptrs(k):
    k.e("s_load_dwordx16 s[64:79], s[0:1], 0")
    k.e("s_load_dwordx4 s[80:83], s[0:1], 64")
    k.e("s_waitcnt lgkmcnt(0)")


def srd(k, sreg, slot, off, nbytes):
    p = PTR0 + 2 * slot
    if off:
        k.e("s_add_u32 s%d, s%d, %d" % (sreg, p, off))
        k.e("s_addc_u32 s%d, s%d, 0" % (sreg + 1, p + 1))
        k.e("s_and_b32 s%d, s%d, 0xffff" % (sreg + 1, sreg + 1))
    else:
        k.e("s_mov_b32 s%d, s%d" % (sreg, p))
        k.e("s_and_b32 s%d, s%d, 0xffff" % (sreg + 1, p + 1))
    k.e("s_mov_b32 s%d, %d" % (sreg + 2, nbytes))
    k.e("s_mov_b32 s%d, 0x00020000" % (sreg + 3))


def stamp(k, i):
    if 'stamp' in EXP:
        k.e("s_memrealtime s[%d:%d]" % (86 + 2 * i, 87 + 2 * i))


def stamp_store(k, n, kidx):
    if 'stamp' not in EXP:
        return
    k.e("s_waitcnt vmcnt(0) lgkmcnt(0)")
    k.e("s_memrealtime s[%d:%d]" % (86 + 2 * n, 87 + 2 * n))
    k.e("s_waitcnt lgkmcnt(0)")
    srd(k, 56, KA_WS, 64 * MB + kidx * 65536, 65536)
    k.e("s_lshl_b32 s60, s2, 6")
    k.e("v_mov_b32 v1, s60")
    for i in range(n + 1):
        k.e("v_mov_b32 v2, s%d" % (86 + 2 * i))
        k.e("buffer_store_dword v2, v1, s[56:59], 0 offen offset:%d" % (4 * i))


def colsum_wg(k, base):
    k.e("s_sub_u32 s20, s2, %d" % base)
    k.e("s_cmp_lt_u32 s20, 28")
    k.e("s_cselect_b32 s4, s%d, s%d" % (PTR0 + 2 * KA_W1, PTR0 + 2 * KA_W3))
    k.e("s_cselect_b32 s5, s%d, s%d" % (PTR0 + 2 * KA_W1 + 1, PTR0 + 2 * KA_W3 + 1))
    k.e("s_cselect_b32 s21, 0, 28")
    k.e("s_and_b32 s5, s5, 0xffff")
    k.e("s_mov_b32 s6, %d" % (D * F * 2))
    k.e("s_mov_b32 s7, 0x00020000")
    k.e("s_sub_u32 s21, s20, s21")
    srd(k, 8, KA_WS, WS_CS, 2 * F * 4)
    k.e("""
    v_lshrrev_b32 v1, 4, v0
    v_and_b32 v2, 15, v0
    s_mov_b32 s22, %d
    v_mul_lo_u32 v1, v1, s22
    v_lshlrev_b32 v2, 4, v2
    s_lshl_b32 s22, s21, 8
    v_add3_u32 v1, v1, v2, s22
    """ % (F * 2))
    for r in range(8):
        k.e("v_mov_b32 v%d, 0" % (8 + r))
    for half in range(2):
        for i in range(16):
            k.e("v_add_u32 v2, %d, v1" % ((half * 16 + i) * 32 * F * 2))
            k.e("buffer_load_dwordx4 v[%d:%d], v2, s[4:7], 0 offen" % (16 + 4 * i, 19 + 4 * i))
        for i in range(16):
            k.e("s_waitcnt vmcnt(%d)" % (15 - i))
            for j in range(4):
                k.e("v_lshlrev_b32 v3, 16, v%d" % (16 + 4 * i + j))
                k.e("v_and_b32 v4, 0xffff0000, v%d" % (16 + 4 * i + j))
                k.e("v_add_f32 v%d, v%d, v3" % (8 + 2 * j, 8 + 2 * j))
                k.e("v_add_f32 v%d, v%d, v4" % (9 + 2 * j, 9 + 2 * j))
    k.e("v_lshlrev_b32 v2, 5, v0")
    k.e("ds_write_b128 v2, v[8:11]")
    k.e("ds_write_b128 v2, v[12:15] offset:16")
    k.e("s_waitcnt lgkmcnt(0)")
    k.e("s_barrier")
    k.e("v_cmp_gt_u32 vcc, 128, v0")
    k.e("s_and_saveexec_b64 s[24:25], vcc")
    k.e("s_cbranch_execz %s_csend" % k.name)
    k.e("v_lshlrev_b32 v2, 2, v0")
    for i in range(32):
        k.e("ds_read_b32 v%d, v2 offset:%d" % (16 + i, i * 512))
    k.e("s_waitcnt lgkmcnt(0)")
    for i in range(1, 32):
        k.e("v_add_f32 v16, v16, v%d" % (16 + i))
    k.e("s_lshl_b32 s22, s20, 9")
    k.e("v_add_u32 v2, s22, v2")
    k.e("buffer_store_dword v16, v2, s[8:11], 0 offen")
    k.lab("%s_csend" % k.name)
    k.e("s_endpgm")


def f3(k):
    return (k & 3) | ((k >> 1) & 4)


def gen_gemm(name, BM, WM, WN, Kdim, a_slot, a_off, subs, colblocks, ntn, epi, grp, nstages=6, NL=0, ln=None, res=None, pp=False, npf=0, ncs=0):
    NWC = WM * WN
    NW = NL if NL else NWC
    RB = BM // WM // 16
    CB = len(colblocks)
    ntm = S // BM
    nwg = ntm * ntn
    nk = Kdim // 64
    sub_lds = []
    o = BM * 128
    for sb in subs:
        sub_lds.append(o); o += 64 * sb[3] * 2
    STAGE = o
    NS = min(nstages, 163840 // STAGE)
    assert NS >= 2 and STAGE <= 65536
    k = Kern(name, (nwg + npf + ncs, 1, 1), (64 * (NWC + NL), 1, 1), NS * STAGE + (4096 if pp else 0), 0)
    lab = lambda s: "%s_%s" % (name, s)
    k.e("s_cmp_ge_u32 s2, %d" % (nwg + npf + ncs))
    k.e("s_cbranch_scc1 %s" % lab("end"))
    stamp(k, 0)
    load_ptrs(k)
    if ncs:
        k.e("s_cmp_lt_u32 s2, %d" % nwg)
        k.e("s_cbranch_scc1 %s" % lab("main"))
        colsum_wg(k, nwg)
        k.lab(lab("main"))
    if npf:
        k.e("s_cmp_lt_u32 s2, %d" % nwg)
        k.e("s_cbranch_scc1 %s" % lab("main"))
        srd(k, 4, KA_W2, 0, F * D * 2)
        per = F * D * 2 // npf
        nthr = 64 * (NWC + NL)
        assert per % (nthr * 16) == 0
        k.e("s_sub_u32 s20, s2, %d" % nwg)
        k.e("s_mul_i32 s20, s20, %d" % per)
        k.e("v_lshlrev_b32 v1, 4, v0")
        k.e("v_add_u32 v1, s20, v1")
        for i in range(per // (nthr * 16)):
            k.e("buffer_load_dwordx4 v[%d:%d], v1, s[4:7], 0 offen" % (8 + 4 * i, 11 + 4 * i))
            k.e("v_add_u32 v1, %d, v1" % (nthr * 16))
        k.e("s_waitcnt vmcnt(0)")
        k.e("s_endpgm")
        k.lab(lab("main"))
    srd(k, 4, a_slot, a_off, S * Kdim * 2)
    for i, sb in enumerate(subs):
        srd(k, 8 + 4 * i, sb[0], sb[1], Kdim * sb[2] * 2 - sb[1])
    gm, gn = grp
    assert gm * gn * 8 == nwg
    k.e("s_and_b32 s25, s2, 7")
    k.e("s_lshr_b32 s26, s2, 3")
    ng = ntm // gm
    k.e("s_and_b32 s20, s25, %d" % (ng - 1))
    k.e("s_mul_i32 s20, s20, %d" % gm)
    k.e("s_and_b32 s27, s26, %d" % (gm - 1))
    k.e("s_add_u32 s20, s20, s27")
    k.e("s_lshr_b32 s21, s25, %d" % (ng.bit_length() - 1))
    k.e("s_mul_i32 s21, s21, %d" % gn)
    k.e("s_lshr_b32 s27, s26, %d" % (gm.bit_length() - 1))
    k.e("s_add_u32 s21, s21, s27")
    k.e("v_lshrrev_b32 v1, 6, v0")
    k.e("s_nop 0")
    k.e("v_readfirstlane_b32 s19, v1")
    k.e("s_and_b32 s23, s19, %d" % (WM - 1))
    k.e("s_lshr_b32 s24, s19, %d" % (WM.bit_length() - 1))
    k.e("s_and_b32 s24, s24, %d" % (WN - 1))
    if NL:
        k.e("s_sub_u32 s22, s19, %d" % NWC)
        k.e("s_and_b32 s22, s22, %d" % (NL - 1))
    else:
        k.e("s_mov_b32 s22, s19")
    k.e("v_and_b32 v0, 63, v0")
    nA_w = BM // 8 // NW
    vA_dma = 2
    _nb = sum(64 * sb[3] * 2 // 1024 // NW for sb in subs)
    XORST = (NS == 2 and STAGE == 65536)
    _vx = vA_dma + nA_w + _nb + (1 if XORST else 2) * (2 + CB)
    if ln == 'mfma':
        _vx = (_vx + 2 * RB + 3) // 4 * 4 + 4 + 4 * CB
    elif ln:
        _vx = _vx + 2 * RB + 1
    if res:
        _vx = (_vx + 1) // 2 * 2 + 2 * RB * CB
    _vfr = (_vx + 3) // 4 * 4
    T0, T1, T2 = _vfr, _vfr + 1, _vfr + 2
    k.e("""
    v_lshrrev_b32 v1, 3, v0
    v_and_b32 v%d, 7, v0
    v_xor_b32 v%d, v%d, v1
    v_lshlrev_b32 v%d, 4, v%d
    """ % (T0, T0, T0, T0, T0))
    k.e("s_mul_i32 s25, s22, %d" % (nA_w * 8))
    k.e("s_mul_i32 s26, s20, %d" % BM)
    k.e("s_add_u32 s25, s25, s26")
    k.e("v_add_u32 v1, s25, v1")
    k.e("s_mov_b32 s26, %d" % (Kdim * 2))
    k.e("v_mul_lo_u32 v1, v1, s26")
    k.e("v_add_u32 v%d, v1, v%d" % (vA_dma, T0))
    for t in range(1, nA_w):
        k.e("v_add_u32 v%d, %d, v%d" % (vA_dma + t, t * 8 * Kdim * 2, vA_dma))
    bdma = []
    vb = vA_dma + nA_w
    for si, (slot, off, ldb, width, tnmul) in enumerate(subs):
        pitch = width * 2
        nB = 64 * pitch // 1024
        assert nB % NW == 0
        nB_w = nB // NW
        rows_per = 1024 // pitch
        cpr = pitch // 16
        for t in range(nB_w):
            k.e("s_mul_i32 s25, s22, %d" % (nB_w * rows_per))
            k.e("s_add_u32 s25, s25, %d" % (t * rows_per))
            k.e("v_lshrrev_b32 v1, %d, v0" % (cpr.bit_length() - 1))
            k.e("v_add_u32 v1, s25, v1")
            if pitch >= 256:
                k.e("v_and_b32 v%d, 3, v1" % T0)
                k.e("v_lshrrev_b32 v%d, 1, v1" % T1)
                k.e("v_and_b32 v%d, 4, v%d" % (T1, T1))
            else:
                k.e("v_bfe_u32 v%d, v1, 1, 1" % T0)
                k.e("v_lshrrev_b32 v%d, 2, v1" % T1)
                k.e("v_and_b32 v%d, 2, v%d" % (T1, T1))
            k.e("v_or_b32 v%d, v%d, v%d" % (T0, T0, T1))
            k.e("v_lshlrev_b32 v%d, 1, v%d" % (T0, T0))
            k.e("v_and_b32 v%d, %d, v0" % (T1, cpr - 1))
            k.e("v_xor_b32 v%d, v%d, v%d" % (T0, T0, T1))
            k.e("v_lshlrev_b32 v%d, 4, v%d" % (T0, T0))
            k.e("s_mov_b32 s26, %d" % (ldb * 2))
            k.e("v_mul_lo_u32 v1, v1, s26")
            k.e("v_add_u32 v1, v1, v%d" % T0)
            k.e("s_mul_i32 s26, s21, %d" % (tnmul * 2))
            k.e("v_add_u32 v%d, s26, v1" % vb)
            bdma.append((si, t, vb, nB_w))
            vb += 1
    _iB0 = len(k.lines)
    NAD = 2 + CB
    vAb = vb
    vAr = vAb if XORST else vAb + NAD
    k.e("""
    v_and_b32 v1, 15, v0
    v_lshlrev_b32 v1, 7, v1
    v_lshrrev_b32 v%d, 4, v0
    v_and_b32 v%d, 7, v0
    """ % (T0, T1))
    k.e("s_mul_i32 s25, s23, %d" % (RB * 16 * 128))
    k.e("v_add_u32 v1, s25, v1")
    k.e("v_xor_b32 v%d, v%d, v%d" % (T2, T0, T1))
    k.e("v_lshlrev_b32 v%d, 4, v%d" % (T2, T2))
    k.e("v_add_u32 v%d, v1, v%d" % (vAb, T2))
    k.e("v_or_b32 v%d, 4, v%d" % (T0, T0))
    k.e("v_xor_b32 v%d, v%d, v%d" % (T2, T0, T1))
    k.e("v_lshlrev_b32 v%d, 4, v%d" % (T2, T2))
    k.e("v_add_u32 v%d, v1, v%d" % (vAb + 1, T2))
    for cb, (si, pmul, padd) in enumerate(colblocks):
        pitch = subs[si][3] * 2
        k.e("""
        v_lshrrev_b32 v1, 4, v0
        v_lshlrev_b32 v1, 3, v1
        v_bfe_u32 v%d, v0, 2, 2
        v_add_u32 v1, v1, v%d
        """ % (T0, T0))
        if pitch >= 256:
            k.e("v_bfe_u32 v%d, v0, 4, 1" % T1)
            k.e("v_lshlrev_b32 v%d, 2, v%d" % (T1, T1))
            k.e("v_or_b32 v%d, v%d, v%d" % (T1, T1, T0))
        else:
            k.e("v_bfe_u32 v%d, v0, 3, 1" % T1)
            k.e("v_bfe_u32 v%d, v0, 4, 1" % T2)
            k.e("v_lshlrev_b32 v%d, 1, v%d" % (T2, T2))
            k.e("v_or_b32 v%d, v%d, v%d" % (T1, T1, T2))
        k.e("s_mul_i32 s25, s24, %d" % pmul)
        k.e("s_add_u32 s25, s25, %d" % padd)
        k.e("v_xor_b32 v%d, s25, v%d" % (T1, T1))
        k.e("v_lshlrev_b32 v%d, 5, v%d" % (T1, T1))
        k.e("s_mov_b32 s26, %d" % pitch)
        k.e("v_mul_lo_u32 v1, v1, s26")
        k.e("v_and_b32 v%d, 3, v0" % T2)
        k.e("v_lshlrev_b32 v%d, 3, v%d" % (T2, T2))
        k.e("v_add3_u32 v%d, v1, v%d, v%d" % (vAb + 2 + cb, T1, T2))
    vBr = vAr + 2
    vx = vAr + NAD
    vsum = vsq = vones = vcs = vres = None
    if ln:
        vsum = vx; vsq = vx + RB; vx += 2 * RB
        if ln == 'mfma':
            vx = (vx + 3) // 4 * 4
            vones = vx; vx += 4
            vcs = vx; vx += 4 * CB
        else:
            vones = vx; vx += 1
    if res:
        vx = (vx + 1) // 2 * 2
        vres = vx; vx += 2 * RB * CB
    vfr = (vx + 3) // 4 * 4
    fA = lambda s, rb: vfr + (s * RB + rb) * 4
    fB = lambda s, cb: vfr + 2 * RB * 4 + (s * CB + cb) * 4
    vacc = vfr + 2 * RB * 4 + 2 * CB * 4
    assert vfr == _vfr
    acc = lambda rb, cb: vacc + (rb * CB + cb) * 4
    vend = vacc + RB * CB * 4
    k.nvgpr = vend
    assert vend <= 256
    def lds_stats():
        t = vfr + 36
        k.e("v_and_b32 v%d, 15, v0" % t)
        k.e("s_lshl_b32 s25, s23, 6")
        k.e("v_add_u32 v%d, s25, v%d" % (t, t))
        k.e("v_lshlrev_b32 v%d, 3, v%d" % (t, t))
        k.e("v_add_u32 v%d, %d, v%d" % (t, NS * STAGE, t))
        for rb in range(RB):
            k.e("ds_read_b32 v%d, v%d offset:%d" % (vsum + rb, t, rb * 128))
            k.e("ds_read_b32 v%d, v%d offset:%d" % (vsq + rb, t, rb * 128 + 4))
        k.e("s_waitcnt vmcnt(0) lgkmcnt(0)")
    ctx = dict(ws_stats=(lds_stats if pp else (lambda: ws_stats())), RB=RB, CB=CB, acc=acc, colblocks=colblocks, subs=subs, BM=BM, vend=vend, vres=vres, ln=ln,
               vsum=vsum, vsq=vsq, vcs=vcs, Kdim=Kdim, lab=lab, vfr=vfr)
    def ws_stats():
        srd(k, 48, KA_WS, WS_PART, S * 256)
        t = vfr + 36
        dbase = [vfr + 40, vfr + 56, vfr + 72, 4]
        assert RB == 4 and vsum >= 20
        k.e("s_mul_i32 s25, s20, %d" % BM)
        k.e("s_mul_i32 s26, s23, %d" % (RB * 16))
        k.e("s_add_u32 s25, s25, s26")
        k.e("v_and_b32 v%d, 15, v0" % t)
        k.e("v_add_u32 v%d, s25, v%d" % (t, t))
        k.e("v_lshlrev_b32 v%d, 4, v%d" % (t, t))
        k.e("v_lshrrev_b32 v%d, 4, v0" % (t + 1))
        k.e("v_lshlrev_b32 v%d, 17, v%d" % (t + 1, t + 1))
        k.e("v_add_u32 v%d, v%d, v%d" % (t, t, t + 1))
        for j in range(4):
            if j:
                k.e("v_add_u32 v%d, 32768, v%d" % (t, t))
            for rb in range(RB):
                d = dbase[rb] + 4 * j
                k.e("buffer_load_dwordx4 v[%d:%d], v%d, s[48:51], 0 offen offset:%d" % (d, d + 3, t, 256 * rb))
        k.e("s_waitcnt vmcnt(0)")
        for rb in range(RB):
            d = dbase[rb]
            k.e("v_add_f32 v%d, v%d, v%d" % (vsum + rb, d, d + 2))
            k.e("v_add_f32 v%d, v%d, v%d" % (vsq + rb, d + 1, d + 3))
            for j in range(2, 8):
                k.e("v_add_f32 v%d, v%d, v%d" % (vsum + rb, vsum + rb, d + 2 * j))
                k.e("v_add_f32 v%d, v%d, v%d" % (vsq + rb, vsq + rb, d + 2 * j + 1))
        ctx["vtmp"] = vfr + 40
        ln_finish(k, ctx)

    def zero_acc():
        for r in range(vacc, vend):
            k.e("v_mov_b32 v%d, 0" % r)
    if ln != 'ws':
        zero_acc()
    if ln:
        for r in range(2 * RB if ln == 'mfma' else 0):
            k.e("v_mov_b32 v%d, 0" % (vsum + r))
        for r in range(4 if vcs else 1):
            k.e("v_mov_b32 v%d, 0x3f803f80" % (vones + r))
        if vcs:
            for r in range(4 * CB):
                k.e("v_mov_b32 v%d, 0" % (vcs + r))
    partB = k.lines[_iB0:]
    del k.lines[_iB0:]
    k.e("s_mov_b32 s30, 0")
    for i in range(len(subs)):
        k.e("s_mov_b32 s%d, 0" % (31 + i))
    k.e("s_mov_b32 s34, 0")
    k.e("s_mul_i32 s35, s22, %d" % (nA_w * 1024))
    for (si, t, vreg, nB_w) in bdma:
        if t == 0:
            k.e("s_mul_i32 s%d, s22, %d" % (44 + si, nB_w * 1024))
            k.e("s_add_u32 s%d, s%d, %d" % (44 + si, 44 + si, sub_lds[si]))
    nd = nA_w + len(bdma)

    def dma_items():
        it = []
        for t in range(nA_w):
            if t:
                pre = "s_add_u32 m0, s36, %d\ns_nop 0\n" % (t * 1024)
            else:
                pre = "s_add_u32 s36, s34, s35\ns_mov_b32 m0, s36\ns_nop 0\n"
            it.append(pre + "buffer_load_dwordx4 v%d, s[4:7], s30 offen lds" % (vA_dma + t))
        for (si, t, vreg, nB_w) in bdma:
            if t == 0:
                pre = "s_add_u32 s36, s34, s%d\ns_mov_b32 m0, s36\ns_nop 0\n" % (44 + si)
            else:
                pre = "s_add_u32 m0, s36, %d\ns_nop 0\n" % (t * 1024)
            it.append(pre + "buffer_load_dwordx4 v%d, s[%d:%d], s%d offen lds" % (vreg, 8 + 4 * si, 11 + 4 * si, 31 + si))
        tail = "s_add_u32 s30, s30, 128\n"
        for i, sb in enumerate(subs):
            tail += "s_add_u32 s%d, s%d, %d\n" % (31 + i, 31 + i, 64 * sb[2] * 2)
        tail += "s_add_u32 s34, s34, %d\ns_cmp_eq_u32 s34, %d\ns_cselect_b32 s34, 0, s34" % (STAGE, NS * STAGE)
        it[-1] += "\n" + tail
        return it

    def dma():
        for x in dma_items():
            k.e(x)

    def setaddr_items():
        if XORST:
            return ["v_xor_b32 v%d, %d, v%d" % (vAr + r, STAGE, vAr + r) for r in range(NAD)]
        it = ["v_add_u32 v%d, s38, v%d" % (vAr + r, vAb + r) for r in range(NAD)]
        it[-1] += "\ns_add_u32 s38, s38, %d\ns_cmp_eq_u32 s38, %d\ns_cselect_b32 s38, 0, s38" % (STAGE, NS * STAGE)
        return it

    def read_items(st, kk):
        it = []
        for rb in range(RB):
            it.append("ds_read_b128 v[%d:%d], v%d offset:%d" % (fA(st, rb), fA(st, rb) + 3, vAr + kk, rb * 2048))
        for cb, (si, pmul, padd) in enumerate(colblocks):
            pitch = subs[si][3] * 2
            base = sub_lds[si] + kk * 32 * pitch
            it.append("ds_read_b64_tr_b16 v[%d:%d], v%d offset:%d" % (fB(st, cb), fB(st, cb) + 1, vBr + cb, base))
            it.append("ds_read_b64_tr_b16 v[%d:%d], v%d offset:%d" % (fB(st, cb) + 2, fB(st, cb) + 3, vBr + cb, base + 4 * pitch))
        return it

    def stat_items(st):
        return []

    def mfmas(st, fill=(), late=()):
        fill = list(fill); late = list(late)
        ms = []
        for rb in range(RB):
            for cb in range(CB):
                a = acc(rb, cb)
                ms.append("v_mfma_f32_16x16x32_bf16 v[%d:%d], v[%d:%d], v[%d:%d], v[%d:%d]" % (
                    a, a + 3, fB(st, cb), fB(st, cb) + 3, fA(st, rb), fA(st, rb) + 3, a, a + 3))
        if vcs and 'nocs' not in EXP:
            for cb in range(CB):
                c = vcs + 4 * cb
                ms.append("v_mfma_f32_16x16x32_bf16 v[%d:%d], v[%d:%d], v[%d:%d], v[%d:%d]" % (
                    c, c + 3, fB(st, cb), fB(st, cb) + 3, vones, vones + 3, c, c + 3))
        n = len(ms)
        per = -(-len(fill) // n) if fill else 0
        perl = -(-len(late) // n) if late else 0
        for m in ms:
            k.e(m)
            for _ in range(per):
                if fill:
                    k.e(fill.pop(0))
            for _ in range(perl):
                if late:
                    k.e(late.pop(0))
        assert not fill and not late

    k.e("s_mov_b32 s37, 0")
    if NL:
        assert NS >= 3
        k.e("s_cmp_lt_u32 s19, %d" % NWC)
        k.e("s_cbranch_scc1 %s" % lab("comp"))
        if 'lprio' in EXP:
            k.e("s_setprio 2")
        for s_ in range(NS - 1):
            dma()
        LS = (ln == 'mfma')
        if LS:
            assert BM == 128 and NL == 4
            t = vfr
            k.e("v_lshrrev_b32 v%d, 1, v0" % (t + 22))
            k.e("s_lshl_b32 s25, s22, 5")
            k.e("v_add_u32 v%d, s25, v%d" % (t + 23, t + 22))
            k.e("v_lshlrev_b32 v%d, 7, v%d" % (t + 23, t + 23))
            k.e("v_and_b32 v%d, 1, v0" % (t + 24))
            k.e("v_lshlrev_b32 v%d, 6, v%d" % (t + 24, t + 24))
            k.e("v_add_u32 v%d, v%d, v%d" % (t + 23, t + 23, t + 24))
            k.e("v_lshrrev_b32 v%d, 1, v%d" % (t + 22, t + 22))
            for j in range(4):
                k.e("v_add_u32 v%d, %d, v%d" % (t + 24, j, t + 22))
                k.e("v_and_b32 v%d, 3, v%d" % (t + 24, t + 24))
                k.e("v_lshlrev_b32 v%d, 4, v%d" % (t + 24, t + 24))
                k.e("v_add_u32 v%d, v%d, v%d" % (t + 26 + j, t + 23, t + 24))
            k.e("v_mov_b32 v%d, 0" % (t + 20))
            k.e("v_mov_b32 v%d, 0" % (t + 21))
            k.e("v_mov_b32 v%d, 0x3f803f80" % vones)
            k.e("s_mov_b32 s39, 0")

            def lstats():
                if 'nolstats' in EXP:
                    return
                for j in range(4):
                    k.e("v_add_u32 v%d, s39, v%d" % (t + j, t + 26 + j))
                for j in range(4):
                    k.e("ds_read_b128 v[%d:%d], v%d" % (t + 4 + 4 * j, t + 7 + 4 * j, t + j))
                k.e("s_add_u32 s39, s39, %d\ns_cmp_eq_u32 s39, %d\ns_cselect_b32 s39, 0, s39" % (STAGE, NS * STAGE))
                for j in range(16):
                    if j % 4 == 0:
                        k.e("s_waitcnt lgkmcnt(%d)" % (3 - j // 4))
                    d = t + 4 + j
                    k.e("v_dot2c_f32_bf16 v%d, v%d, v%d" % (t + 20, d, vones))
                    k.e("v_dot2c_f32_bf16 v%d, v%d, v%d" % (t + 21, d, d))
        k.e("s_waitcnt vmcnt(%d)" % ((NS - 2) * nd))
        k.e("s_barrier")
        if LS:
            lstats()
        k.lab(lab("lloop"))
        k.e("s_waitcnt vmcnt(%d)" % ((NS - 3) * nd))
        k.e("s_barrier")
        dma()
        k.e("s_add_u32 s37, s37, 1")
        k.e("s_cmp_lt_u32 s37, %d" % nk)
        if LS:
            k.e("s_cbranch_scc0 %s" % lab("ldone"))
            lstats()
            k.e("s_branch %s" % lab("lloop"))
            k.lab(lab("ldone"))
            k.e("s_waitcnt vmcnt(0)")
            for v in (t + 20, t + 21):
                k.e("ds_swizzle_b32 v%d, v%d offset:0x041F" % (t + 22, v))
                k.e("s_waitcnt lgkmcnt(0)")
                k.e("v_add_f32 v%d, v%d, v%d" % (v, v, t + 22))
            k.e("s_barrier")
            k.e("v_lshrrev_b32 v%d, 1, v0" % (t + 22))
            k.e("s_lshl_b32 s25, s22, 5")
            k.e("v_add_u32 v%d, s25, v%d" % (t + 22, t + 22))
            k.e("v_lshlrev_b32 v%d, 3, v%d" % (t + 22, t + 22))
            k.e("ds_write_b64 v%d, v[%d:%d]" % (t + 22, t + 20, t + 21))
            k.e("s_waitcnt lgkmcnt(0)")
            k.e("s_barrier")
        else:
            k.e("s_cbranch_scc1 %s" % lab("lloop"))
            k.e("s_waitcnt vmcnt(0)")
        k.e("s_endpgm")
        k.lab(lab("comp"))
        k.lines.extend(partB)
        if 'prio' in EXP:
            k.e("s_setprio 2")
        if res:
            res_prefetch(k, ctx, res)
        stamp(k, 1)
        k.e("s_mov_b32 s38, 0")
        for x in setaddr_items():
            k.e(x)
        k.e("s_barrier")
        stamp(k, 2)
        for x in read_items(0, 0):
            k.e(x)
        k.lab(lab("loop"))
        k.e("s_waitcnt lgkmcnt(0)")
        mfmas(0, read_items(1, 1), stat_items(0))
        k.e("s_barrier")
        k.e("s_waitcnt lgkmcnt(0)")
        mfmas(1, setaddr_items() + read_items(0, 0), stat_items(1))
    elif pp:
        assert XORST and NWC == 8
        dma()
        k.lines.extend(partB)
        zero_acc()
        stamp(k, 1)
        k.e("s_waitcnt vmcnt(0)")
        k.e("s_barrier")
        k.e("s_cmp_ge_u32 s19, 4")
        k.e("s_cbranch_scc1 %s" % lab("ypath"))

        NSPLIT = int(os.environ.get('NSPLIT', '8'))

        def loadphase(dm, rf=False):
            if not rf:
                for x in dm:
                    k.e(x)
            for x in read_items(0, 0) + read_items(1, 1):
                k.e(x)
            if rf:
                for x in dm:
                    k.e(x)
            for x in setaddr_items():
                k.e(x)
            k.e("s_waitcnt lgkmcnt(0)")
        RFX = 'rfx' in EXP; RFY = 'rfy' in EXP

        def compphase(dm):
            mfmas(0, dm)
            mfmas(1)
        di = dma_items()
        ny = len(di) - NSPLIT
        loadphase(di[:NSPLIT], RFX)
        k.e("s_barrier")
        k.lab(lab("xloop"))
        compphase(di[NSPLIT:])
        k.e("s_waitcnt vmcnt(0)")
        k.e("s_barrier")
        k.e("s_add_u32 s37, s37, 1")
        k.e("s_cmp_lt_u32 s37, %d" % nk)
        k.e("s_cbranch_scc0 %s" % lab("xlast"))
        loadphase(di[:NSPLIT], RFX)
        k.e("s_barrier")
        k.e("s_branch %s" % lab("xloop"))
        k.lab(lab("xlast"))
        ws_stats()
        k.e("v_and_b32 v%d, 15, v0" % (vfr + 36))
        k.e("s_lshl_b32 s25, s23, 6")
        k.e("v_add_u32 v%d, s25, v%d" % (vfr + 36, vfr + 36))
        k.e("v_lshlrev_b32 v%d, 3, v%d" % (vfr + 36, vfr + 36))
        k.e("v_add_u32 v%d, %d, v%d" % (vfr + 36, NS * STAGE, vfr + 36))
        for rb in range(RB):
            k.e("v_mov_b32 v%d, v%d" % (vfr + 40, vsum + rb))
            k.e("v_mov_b32 v%d, v%d" % (vfr + 41, vsq + rb))
            k.e("ds_write_b64 v%d, v[%d:%d] offset:%d" % (vfr + 36, vfr + 40, vfr + 41, rb * 128))
        k.e("s_waitcnt lgkmcnt(0)")
        k.e("s_barrier")
        k.e("s_branch %s" % lab("done"))
        k.lab(lab("ypath"))
        for x in di[:ny]:
            k.e(x)
        k.e("s_barrier")
        k.lab(lab("loop"))
        loadphase(di[ny:], RFY)
        k.e("s_waitcnt vmcnt(0)")
        k.e("s_barrier")
        compphase(di[:ny])
        k.e("s_barrier")
    else:
        dma()
        if ln == 'ws':
            ws_stats()
            zero_acc()
        stamp(k, 1)
        k.e("s_mov_b32 s38, 0")
        if not XORST:
            for x in setaddr_items():
                k.e(x)
        k.lab(lab("loop"))
        k.e("s_waitcnt vmcnt(0)")
        k.e("s_barrier")
        for x in read_items(0, 0):
            k.e(x)
        k.e("s_waitcnt lgkmcnt(0)")
        mfmas(0, read_items(1, 1) + dma_items(), stat_items(0))
        k.e("s_waitcnt lgkmcnt(0)")
        mfmas(1, setaddr_items(), stat_items(1))
    k.e("s_add_u32 s37, s37, 1")
    k.e("s_cmp_lt_u32 s37, %d" % nk)
    k.e("s_cbranch_scc1 %s" % lab("loop"))
    k.lab(lab("done"))
    k.e("s_waitcnt vmcnt(0) lgkmcnt(0)")
    if not NL:
        k.e("s_barrier")
    stamp(k, 3)
    k.e("s_nop 7")
    if ln == 'mfma':
        k.e("s_barrier")
        k.e("s_barrier")
        k.e("v_and_b32 v2, 15, v0")
        k.e("s_mul_i32 s25, s23, %d" % (RB * 16))
        k.e("v_add_u32 v2, s25, v2")
        k.e("v_lshlrev_b32 v2, 3, v2")
        for rb in range(RB):
            k.e("ds_read_b32 v%d, v2 offset:%d" % (vsum + rb, rb * 128))
            k.e("ds_read_b32 v%d, v2 offset:%d" % (vsq + rb, rb * 128 + 4))
        k.e("s_waitcnt lgkmcnt(0)")
        ln_finish(k, ctx, reduce=False)
    epi(k, ctx)
    stamp_store(k, 4, {'g1': 0, 'g2': 1, 'g3': 2, 'g4': 3}[name[:2]])
    k.lab(lab("end"))
    k.e("s_endpgm")
    return k


def row_base(k, c, ldc, va=1, vb=2):
    k.e("s_mul_i32 s25, s20, %d" % c["BM"])
    k.e("s_mul_i32 s26, s23, %d" % (c["RB"] * 16))
    k.e("s_add_u32 s25, s25, s26")
    k.e("v_and_b32 v%d, 15, v0" % va)
    k.e("v_add_u32 v%d, s25, v%d" % (va, va))
    k.e("s_mov_b32 s26, %d" % (ldc * 2))
    k.e("v_mul_lo_u32 v%d, v%d, s26" % (va, va))
    k.e("v_lshrrev_b32 v%d, 4, v0" % vb)
    k.e("v_lshlrev_b32 v%d, 3, v%d" % (vb, vb))
    k.e("v_add_u32 v%d, v%d, v%d" % (va, va, vb))


def col_off(k, c, cb, sreg, cmul):
    si, pmul, padd = c["colblocks"][cb]
    sb = sum(s[3] for s in c["subs"][:si])
    k.e("s_mul_i32 s%d, s21, %d" % (sreg, cmul * 2))
    k.e("s_mul_i32 s26, s24, %d" % (pmul * 32))
    k.e("s_add_u32 s%d, s%d, s26" % (sreg, sreg))
    k.e("s_add_u32 s%d, s%d, %d" % (sreg, sreg, (sb + padd * 16) * 2))


def res_prefetch(k, c, res):
    RB, CB = c["RB"], c["CB"]
    srd(k, 48, res[0], res[1], S * D * 2)
    t = c["vfr"]
    row_base(k, c, D, t, t + 1)
    tot = sum(s[3] for s in c["subs"])
    for cb in range(CB):
        col_off(k, c, cb, 25, tot)
        for rb in range(RB):
            k.e("v_add_u32 v%d, s25, v%d" % (t + 2, t))
            if rb:
                k.e("v_add_u32 v%d, %d, v%d" % (t + 2, rb * 16 * D * 2, t + 2))
            r = c["vres"] + 2 * (rb * CB + cb)
            k.e("buffer_load_dwordx2 v[%d:%d], v%d, s[48:51], 0 offen" % (r, r + 1, t + 2))


def ln_finish(k, c, reduce=True):
    RB = c["RB"]
    invK = {1024: "0x3a800000"}[c["Kdim"]]
    T = c.get("vtmp", 2)
    vs = [c["vsum"] + rb for rb in range(RB)] + [c["vsq"] + rb for rb in range(RB)]
    if reduce:
        for j, v in enumerate(vs):
            k.e("ds_swizzle_b32 v%d, v%d offset:0x401F" % (T + j, v))
        k.e("s_waitcnt lgkmcnt(0)")
        for j, v in enumerate(vs):
            k.e("v_add_f32 v%d, v%d, v%d" % (v, v, T + j))
        for j, v in enumerate(vs):
            k.e("v_mov_b32 v%d, v%d" % (T + j, v))
        k.e("s_nop 1")
        for j, v in enumerate(vs):
            k.e("v_permlane32_swap_b32 v%d, v%d" % (v, T + j))
        k.e("s_nop 1")
        for j, v in enumerate(vs):
            k.e("v_add_f32 v%d, v%d, v%d" % (v, v, T + j))
    R = range(RB)
    m = lambda rb: c["vsum"] + rb
    q = lambda rb: c["vsq"] + rb
    for rb in R:
        k.e("v_mul_f32 v%d, %s, v%d" % (m(rb), invK, m(rb)))
        k.e("v_mul_f32 v%d, %s, v%d" % (q(rb), invK, q(rb)))
    for rb in R:
        k.e("v_fma_f32 v%d, -v%d, v%d, v%d" % (q(rb), m(rb), m(rb), q(rb)))
    for rb in R:
        k.e("v_cvt_pk_bf16_f32 v%d, v%d, v%d" % (T + rb, m(rb), q(rb)))
    for rb in R:
        k.e("v_lshlrev_b32 v%d, 16, v%d" % (m(rb), T + rb))
        k.e("v_and_b32 v%d, 0xffff0000, v%d" % (q(rb), T + rb))
    for rb in R:
        k.e("v_add_f32 v%d, 0x3727c5ac, v%d" % (q(rb), q(rb)))
    for rb in R:
        k.e("v_cvt_pk_bf16_f32 v%d, v%d, v%d" % (T + rb, q(rb), q(rb)))
    for rb in R:
        k.e("v_lshlrev_b32 v%d, 16, v%d" % (q(rb), T + rb))
    for rb in R:
        k.e("v_sqrt_f32 v%d, v%d" % (q(rb), q(rb)))
    k.e("s_nop 0")
    for rb in R:
        k.e("v_cvt_pk_bf16_f32 v%d, v%d, v%d" % (T + rb, q(rb), q(rb)))
    for rb in R:
        k.e("v_lshlrev_b32 v%d, 16, v%d" % (q(rb), T + rb))
    for rb in R:
        k.e("v_rcp_f32 v%d, v%d" % (q(rb), q(rb)))
    k.e("s_nop 0")


def ln_apply(k, c, a, rb, cs):
    m = c["vsum"] + rb; q = c["vsq"] + rb
    for r in range(4):
        k.e("v_fma_f32 v%d, -v%d, v%d, v%d" % (a + r, m, cs + r, a + r))
    for r in range(4):
        k.e("v_mul_f32 v%d, v%d, v%d" % (a + r, a + r, q))


class LdsStore:
    def __init__(self, k, c, groups, ldc, srd_reg, NWC, vbase):
        self.k = k; self.c = c; self.groups = groups; self.ldc = ldc; self.srd = srd_reg
        self.off = []; o = 0
        for g in groups:
            self.off.append(o); o += 64 * len(g) * 32
        self.wbytes = o
        self.aw = {}
        v = vbase
        k.e("s_mul_i32 s27, s19, %d" % self.wbytes)
        for gi, g in enumerate(groups):
            CH = 2 * len(g); pitch = CH * 16
            for j, cb in enumerate(g):
                k.e("v_and_b32 v%d, 15, v0" % v)
                k.e("v_and_b32 v%d, %d, v0" % (v + 1, CH - 1))
                k.e("v_bfe_u32 v%d, v0, 5, 1" % (v + 2))
                k.e("v_or_b32 v%d, %d, v%d" % (v + 2, 2 * j, v + 2))
                k.e("v_xor_b32 v%d, v%d, v%d" % (v + 1, v + 1, v + 2))
                k.e("v_lshlrev_b32 v%d, 4, v%d" % (v + 1, v + 1))
                k.e("v_mul_u32_u24 v%d, %d, v%d" % (v, pitch, v))
                k.e("v_bfe_u32 v%d, v0, 4, 1" % (v + 2))
                k.e("v_lshlrev_b32 v%d, 3, v%d" % (v + 2, v + 2))
                k.e("v_add3_u32 v%d, v%d, v%d, v%d" % (v, v, v + 1, v + 2))
                k.e("v_add_u32 v%d, s27, v%d" % (v, v))
                self.aw[cb] = (v, gi, pitch); v += 1
        self.vfree = v + 2

    def put(self, rb, cb, a):
        v, gi, pitch = self.aw[cb]
        self.k.e("ds_write_b64 v%d, v[%d:%d] offset:%d" % (v, a, a + 1, self.off[gi] + rb * 16 * pitch))

    def flush(self, colbase_fn, vd):
        k = self.k; c = self.c
        k.e("s_waitcnt lgkmcnt(0)")
        v = self.vfree
        for gi, g in enumerate(self.groups):
            CH = 2 * len(g); pitch = CH * 16; rp = 64 // CH
            lg = CH.bit_length() - 1
            k.e("v_lshrrev_b32 v%d, %d, v0" % (v, lg))
            k.e("v_and_b32 v%d, %d, v0" % (v + 1, CH - 1))
            k.e("v_and_b32 v%d, %d, v%d" % (v + 2, CH - 1, v))
            k.e("v_xor_b32 v%d, v%d, v%d" % (v + 2, v + 2, v + 1))
            k.e("v_lshlrev_b32 v%d, 4, v%d" % (v + 2, v + 2))
            k.e("v_mul_u32_u24 v%d, %d, v%d" % (v + 3, pitch, v))
            k.e("v_add3_u32 v%d, v%d, v%d, s27" % (v + 2, v + 2, v + 3))
            k.e("s_mul_i32 s25, s20, %d" % c["BM"])
            k.e("s_mul_i32 s26, s23, %d" % (c["RB"] * 16))
            k.e("s_add_u32 s25, s25, s26")
            k.e("v_add_u32 v%d, s25, v%d" % (v, v))
            k.e("s_mov_b32 s26, %d" % (self.ldc * 2))
            k.e("v_mul_lo_u32 v%d, v%d, s26" % (v, v))
            k.e("v_lshlrev_b32 v%d, 4, v%d" % (v + 1, v + 1))
            colbase_fn(k, gi, 25)
            k.e("v_add3_u32 v%d, v%d, v%d, s25" % (v, v, v + 1))
            nj = 64 // rp
            for j in range(nj):
                k.e("ds_read_b128 v[%d:%d], v%d offset:%d" % (vd + 4 * j, vd + 4 * j + 3, v + 2, self.off[gi] + j * rp * pitch))
            for j in range(nj):
                k.e("s_waitcnt lgkmcnt(%d)" % (nj - 1 - j))
                if j:
                    k.e("v_add_u32 v%d, %d, v%d" % (v, rp * self.ldc * 2, v))
                k.e("buffer_store_dwordx4 v[%d:%d], v%d, s[%d:%d], 0 offen%s" % (vd + 4 * j, vd + 4 * j + 3, v, self.srd, self.srd + 3, STFLAG))
            k.e("s_nop 1")


def epi_store_factory(ldc, c_slot, c_off, c_bytes, part=False, groups=None):
    def epi(k, c):
        RB, CB, acc = c["RB"], c["CB"], c["acc"]
        srd(k, 40, c_slot, c_off, c_bytes)
        PS = c["vfr"]
        if groups:
            tot = sum(s[3] for s in c["subs"])
            k.e("s_barrier")
            ls = LdsStore(k, c, groups, ldc, 40, 4, c["vfr"])
            for cb in range(CB):
                for rb in range(RB):
                    a = acc(rb, cb)
                    if c["ln"]:
                        ln_apply(k, c, a, rb, c["vcs"] + 4 * cb)
                    k.e("v_cvt_pk_bf16_f32 v%d, v%d, v%d" % (a, a, a + 1))
                    k.e("v_cvt_pk_bf16_f32 v%d, v%d, v%d" % (a + 1, a + 2, a + 3))
                    ls.put(rb, cb, a)
            ls.flush(lambda k, gi, sreg: col_off(k, c, groups[gi][0], sreg, tot), c["vfr"] + 16)
            return
        if part:
            for rb in range(RB):
                k.e("v_mov_b32 v%d, 0" % (PS + 2 * rb))
                k.e("v_mov_b32 v%d, 0" % (PS + 1 + 2 * rb))
        row_base(k, c, ldc)
        tot = sum(s[3] for s in c["subs"])
        for cb in range(CB):
            col_off(k, c, cb, 25, tot)
            k.e("v_add_u32 v3, s25, v1")
            for rb in range(RB):
                a = acc(rb, cb)
                if c["ln"]:
                    ln_apply(k, c, a, rb, c["vcs"] + 4 * cb)
                k.e("v_cvt_pk_bf16_f32 v%d, v%d, v%d" % (a, a, a + 1))
                k.e("v_cvt_pk_bf16_f32 v%d, v%d, v%d" % (a + 1, a + 2, a + 3))
                if c["vres"] is not None:
                    r = c["vres"] + 2 * (rb * CB + cb)
                    for j in range(2):
                        k.e("v_lshlrev_b32 v6, 16, v%d" % (a + j))
                        k.e("v_and_b32 v7, 0xffff0000, v%d" % (a + j))
                        k.e("v_lshlrev_b32 v8, 16, v%d" % (r + j))
                        k.e("v_and_b32 v9, 0xffff0000, v%d" % (r + j))
                        k.e("v_add_f32 v6, v6, v8")
                        k.e("v_add_f32 v7, v7, v9")
                        k.e("v_cvt_pk_bf16_f32 v%d, v6, v7" % (a + j))
                        if part:
                            k.e("v_lshlrev_b32 v6, 16, v%d" % (a + j))
                            k.e("v_and_b32 v7, 0xffff0000, v%d" % (a + j))
                            k.e("v_add_f32 v%d, v%d, v6" % (PS + 2 * rb, PS + 2 * rb))
                            k.e("v_fmac_f32 v%d, v6, v6" % (PS + 1 + 2 * rb))
                            k.e("v_add_f32 v%d, v%d, v7" % (PS + 2 * rb, PS + 2 * rb))
                            k.e("v_fmac_f32 v%d, v7, v7" % (PS + 1 + 2 * rb))
                k.e("v_add_u32 v4, %d, v3" % (rb * 16 * ldc * 2))
                k.e("buffer_store_dwordx2 v[%d:%d], v4, s[40:43], 0 offen" % (a, a + 1))
        if part:
            srd(k, 44, KA_WS, WS_PART, S * 256)
            for v in range(PS, PS + 2 * RB):
                k.e("ds_swizzle_b32 v2, v%d offset:0x401F" % v)
                k.e("s_waitcnt lgkmcnt(0)")
                k.e("v_add_f32 v%d, v%d, v2" % (v, v))
                k.e("v_mov_b32 v2, v%d" % v)
                k.e("s_nop 1")
                k.e("v_permlane32_swap_b32 v%d, v2" % v)
                k.e("v_add_f32 v%d, v%d, v2" % (v, v))
            k.e("s_mul_i32 s25, s20, %d" % c["BM"])
            k.e("s_mul_i32 s26, s23, %d" % (RB * 16))
            k.e("s_add_u32 s25, s25, s26")
            k.e("v_add_u32 v1, s25, v0")
            k.e("v_lshlrev_b32 v1, 4, v1")
            k.e("s_lshl_b32 s25, s21, 15")
            k.e("s_lshl_b32 s26, s24, 3")
            k.e("s_add_u32 s25, s25, s26")
            k.e("v_add_u32 v1, s25, v1")
            k.e("v_cmp_gt_u32 vcc, 16, v0")
            k.e("s_and_saveexec_b64 s[52:53], vcc")
            for rb in range(RB):
                k.e("v_add_u32 v2, %d, v1" % (rb * 256))
                k.e("buffer_store_dwordx2 v[%d:%d], v2, s[44:47], 0 offen" % (PS + 2 * rb, PS + 1 + 2 * rb))
            k.e("s_mov_b64 exec, s[52:53]")
    return epi


def epi_swiglu(k, c):
    RB, CB, acc, colblocks, subs = c["RB"], c["CB"], c["acc"], c["colblocks"], c["subs"]
    ldc = F
    srd(k, 40, KA_WS, WS_ACT, S * F * 2)
    srd(k, 44, KA_WS, WS_CS, 2 * F * 4)
    half = CB // 2
    width = subs[0][3]
    vc = c["vfr"]
    assert 8 * half <= 32
    k.e("v_lshrrev_b32 v2, 4, v0")
    k.e("v_lshlrev_b32 v2, 4, v2")
    for cb in range(half):
        si, pmul, padd = colblocks[cb]
        assert si == 0 and colblocks[cb + half] == (1, pmul, padd)
        k.e("s_mul_i32 s25, s21, %d" % (width * 4))
        k.e("s_mul_i32 s26, s24, %d" % (pmul * 64))
        k.e("s_add_u32 s25, s25, s26")
        k.e("s_add_u32 s25, s25, %d" % (padd * 64))
        k.e("v_add_u32 v3, s25, v2")
        k.e("buffer_load_dwordx4 v[%d:%d], v3, s[44:47], 0 offen" % (vc + 8 * cb, vc + 8 * cb + 3))
        k.e("v_add_u32 v3, %d, v3" % (F * 4))
        k.e("buffer_load_dwordx4 v[%d:%d], v3, s[44:47], 0 offen" % (vc + 8 * cb + 4, vc + 8 * cb + 7))
    c["ws_stats"]()
    stamp(k, 2)
    ls = LdsStore(k, c, [list(range(half))], ldc, 40, 8, c["vfr"] + 40)
    for rb in range(RB):
        m = c["vsum"] + rb; q = c["vsq"] + rb
        k.e("v_sub_f32 v8, 0, v%d" % m)
        k.e("v_sub_f32 v9, 0, v%d" % m)
        k.e("v_mul_f32 v10, 0xbfb8aa3b, v%d" % q)
        k.e("v_mul_f32 v11, 0xbfb8aa3b, v%d" % q)
        k.e("v_mul_f32 v12, v%d, v%d" % (q, q))
        k.e("v_mul_f32 v13, v%d, v%d" % (q, q))
        for cb in range(half):
            g = acc(rb, cb); u = acc(rb, cb + half)
            cg = vc + 8 * cb; cu = cg + 4
            for r in (0, 2):
                k.e("v_pk_fma_f32 v[%d:%d], v[8:9], v[%d:%d], v[%d:%d]" % (g + r, g + r + 1, cg + r, cg + r + 1, g + r, g + r + 1))
            for r in (0, 2):
                k.e("v_pk_mul_f32 v[%d:%d], v[%d:%d], v[10:11]" % (4 + r, 5 + r, g + r, g + r + 1))
            for r in range(4):
                k.e("v_exp_f32 v%d, v%d" % (4 + r, 4 + r))
            for r in (0, 2):
                k.e("v_pk_fma_f32 v[%d:%d], v[8:9], v[%d:%d], v[%d:%d]" % (u + r, u + r + 1, cu + r, cu + r + 1, u + r, u + r + 1))
            for r in (0, 2):
                k.e("v_pk_add_f32 v[%d:%d], v[%d:%d], 1.0 op_sel_hi:[1,0]" % (4 + r, 5 + r, 4 + r, 5 + r))
            for r in range(4):
                k.e("v_rcp_f32 v%d, v%d" % (4 + r, 4 + r))
            for r in (0, 2):
                k.e("v_pk_mul_f32 v[%d:%d], v[%d:%d], v[%d:%d]" % (g + r, g + r + 1, g + r, g + r + 1, u + r, u + r + 1))
            for r in (0, 2):
                k.e("v_pk_mul_f32 v[%d:%d], v[%d:%d], v[12:13]" % (4 + r, 5 + r, 4 + r, 5 + r))
            for r in (0, 2):
                k.e("v_pk_mul_f32 v[%d:%d], v[%d:%d], v[%d:%d]" % (g + r, g + r + 1, g + r, g + r + 1, 4 + r, 5 + r))
            k.e("v_cvt_pk_bf16_f32 v%d, v%d, v%d" % (g, g, g + 1))
            k.e("v_cvt_pk_bf16_f32 v%d, v%d, v%d" % (g + 1, g + 2, g + 3))
            ls.put(rb, cb, g)

    def colbase(k, gi, sreg):
        si, pmul, padd = colblocks[0]
        k.e("s_mul_i32 s%d, s21, %d" % (sreg, width * 2))
        k.e("s_mul_i32 s26, s24, %d" % (pmul * 32))
        k.e("s_add_u32 s%d, s%d, s26" % (sreg, sreg))
    ls.flush(colbase, c["vfr"] + 56)


def gen_attn(name):
    MIMIC = 'mimic' in EXP
    NATT = 512
    NCS = 0
    NPF = 32
    NH = NCS + NPF
    nwg = NATT + NH
    KV_ROWS = 384
    K_LDS = 0
    V_LDS = KV_ROWS * 64
    k = Kern(name, (nwg, 1, 1), (256, 1, 1), 2 * KV_ROWS * 64, 0)
    lab = lambda s: "%s_%s" % (name, s)
    k.e("s_cmp_ge_u32 s2, %d" % nwg)
    k.e("s_cbranch_scc1 %s" % lab("end"))
    load_ptrs(k)
    if 'hlast' in EXP:
        k.e("s_sub_u32 s2, s2, %d" % NATT)
        k.e("s_cmp_lt_u32 s2, %d" % NH)
        k.e("s_cbranch_scc1 %s" % lab("cs"))
        k.e("s_add_u32 s2, s2, %d" % NATT)
    else:
        k.e("s_cmp_lt_u32 s2, %d" % NH)
        k.e("s_cbranch_scc1 %s" % lab("cs"))
        k.e("s_sub_u32 s2, s2, %d" % NH)
    stamp(k, 0)
    srd(k, 4, KA_WS, WS_QKV, S * 3 * D * 2)
    srd(k, 8, KA_WS, WS_O, S * D * 2)
    k.e("s_and_b32 s20, s2, 31")
    k.e("s_lshr_b32 s21, s2, 5")
    k.e("v_lshrrev_b32 v1, 6, v0")
    k.e("s_nop 0")
    k.e("v_readfirstlane_b32 s22, v1")
    k.e("v_and_b32 v0, 63, v0")
    k.e("""
    v_lshrrev_b32 v1, 2, v0
    v_and_b32 v2, 3, v0
    v_bfe_u32 v3, v0, 4, 2
    v_xor_b32 v2, v2, v3
    v_lshlrev_b32 v2, 4, v2
    s_lshl_b32 s23, s21, 7
    s_mul_i32 s24, s22, 96
    s_add_u32 s23, s23, s24
    s_sub_u32 s23, s23, 256
    v_add_u32 v1, s23, v1
    s_mov_b32 s24, %d
    v_mul_lo_u32 v1, v1, s24
    v_add_u32 v1, v1, v2
    s_lshl_b32 s24, s20, 6
    v_add_u32 v1, s24, v1
    s_mul_i32 s25, s22, 6144
    """ % (3 * D * 2))
    for mat, ldsb in ((1, K_LDS), (2, V_LDS)):
        for t in range(6):
            k.e("v_add_u32 v2, %d, v1" % (t * 16 * 3 * D * 2 + mat * D * 2))
            k.e("s_add_u32 m0, s25, %d" % (ldsb + t * 1024))
            k.e("s_nop 0")
            k.e("buffer_load_dwordx4 v2, s[4:7], 0 offen lds")
    k.e("""
    s_lshl_b32 s23, s21, 7
    s_lshl_b32 s24, s22, 5
    s_add_u32 s23, s23, s24
    v_and_b32 v1, 31, v0
    v_add_u32 v1, s23, v1
    s_mov_b32 s24, %d
    v_mul_lo_u32 v1, v1, s24
    v_lshrrev_b32 v2, 5, v0
    v_lshlrev_b32 v2, 4, v2
    s_lshl_b32 s24, s20, 6
    v_add3_u32 v1, v1, v2, s24
    buffer_load_dwordx4 v[4:7], v1, s[4:7], 0 offen
    buffer_load_dwordx4 v[8:11], v1, s[4:7], 0 offen offset:32
    v_and_b32 v1, 31, v0
    v_lshlrev_b32 v12, 6, v1
    v_bfe_u32 v2, v0, 2, 2
    v_lshrrev_b32 v3, 5, v0
    v_xor_b32 v13, v3, v2
    v_lshlrev_b32 v13, 4, v13
    v_add_u32 v13, v12, v13
    v_or_b32 v3, 2, v3
    v_xor_b32 v14, v3, v2
    v_lshlrev_b32 v14, 4, v14
    v_add_u32 v14, v12, v14
    s_lshl_b32 s24, s22, 11
    v_add_u32 v13, s24, v13
    v_add_u32 v14, s24, v14
    v_bfe_u32 v1, v0, 5, 1
    v_lshlrev_b32 v1, 2, v1
    v_bfe_u32 v2, v0, 2, 2
    v_add_u32 v1, v1, v2
    v_bfe_u32 v2, v0, 4, 1
    v_lshlrev_b32 v2, 1, v2
    v_bfe_u32 v3, v0, 1, 1
    v_or_b32 v2, v2, v3
    v_and_b32 v3, 1, v0
    v_lshlrev_b32 v3, 3, v3
    """ % (3 * D * 2))
    for j in range(4):
        k.e("v_add_u32 v19, %d, v1" % (8 * j))
        k.e("v_bfe_u32 v20, v19, 2, 2")
        k.e("v_xor_b32 v20, v20, v2")
        k.e("v_lshlrev_b32 v20, 4, v20")
        k.e("v_lshlrev_b32 v19, 6, v19")
        k.e("v_add3_u32 v%d, v19, v20, v3" % (15 + j))
        k.e("v_add_u32 v%d, s24, v%d" % (15 + j, 15 + j))
    k.e("s_waitcnt vmcnt(0)")
    k.e("s_barrier")
    stamp(k, 1)
    SB = 48
    k.e("ds_read_b128 v[20:23], v13 offset:%d" % K_LDS)
    k.e("ds_read_b128 v[24:27], v14 offset:%d" % K_LDS)
    for b in range(9):
        f = 20 + 8 * (b & 1); fn = 20 + 8 * ((b + 1) & 1)
        if b < 8:
            k.e("ds_read_b128 v[%d:%d], v13 offset:%d" % (fn, fn + 3, K_LDS + (b + 1) * 2048))
            k.e("ds_read_b128 v[%d:%d], v14 offset:%d" % (fn + 4, fn + 7, K_LDS + (b + 1) * 2048))
            k.e("s_waitcnt lgkmcnt(2)")
        else:
            k.e("s_waitcnt lgkmcnt(0)")
        s0 = SB + b * 16
        k.e("v_mfma_f32_32x32x16_bf16 v[%d:%d], v[%d:%d], v[4:7], 0" % (s0, s0 + 15, f, f + 3))
        k.e("v_mfma_f32_32x32x16_bf16 v[%d:%d], v[%d:%d], v[8:11], v[%d:%d]" % (s0, s0 + 15, f + 4, f + 7, s0, s0 + 15))
    k.e("s_nop 15")
    NSR = 144
    stamp(k, 2)
    if MIMIC:
        for r in range(0, NSR, 2):
            a = SB + r
            k.e("v_cvt_pk_bf16_f32 v36, v%d, v%d" % (a, a + 1))
            k.e("v_lshlrev_b32 v%d, 16, v36" % a)
            k.e("v_and_b32 v%d, 0xffff0000, v36" % (a + 1))
            k.e("v_mul_f32 v%d, 0x3e3504f3, v%d" % (a, a))
            k.e("v_mul_f32 v%d, 0x3e3504f3, v%d" % (a + 1, a + 1))
            k.e("v_cvt_pk_bf16_f32 v36, v%d, v%d" % (a, a + 1))
            k.e("v_lshlrev_b32 v%d, 16, v36" % a)
            k.e("v_and_b32 v%d, 0xffff0000, v36" % (a + 1))
        k.e("s_mov_b32 s26, 0x3fb8aa3b")
    else:
        k.e("s_mov_b32 s26, 0x3e8293ee")
    k.e("v_and_b32 v1, 31, v0")
    k.e("v_lshrrev_b32 v2, 5, v0")
    k.e("v_lshlrev_b32 v2, 2, v2")
    k.e("v_sub_u32 v1, v1, v2")
    k.e("v_mov_b32 v3, 0xce6e6b28")
    for r in range(16):
        c = (r & 3) + 8 * (r >> 2)
        k.e("v_cmp_ge_i32 vcc, v1, %d" % c)
        k.e("s_nop 1")
        k.e("v_cndmask_b32 v%d, v%d, v3, vcc" % (SB + r, SB + r))
        k.e("v_cndmask_b32 v%d, v3, v%d, vcc" % (SB + 128 + r, SB + 128 + r))
    k.e("s_lshl_b32 s23, s21, 2")
    k.e("s_add_u32 s23, s23, s22")
    k.e("s_cmp_ge_u32 s23, 8")
    k.e("s_cbranch_scc1 %s" % lab("nomask"))
    for b in range(8):
        k.e("s_cmp_lt_u32 s23, %d" % (8 - b))
        k.e("s_cbranch_scc0 %s" % lab("nm%d" % b))
        for r in range(16):
            k.e("v_mov_b32 v%d, v3" % (SB + b * 16 + r))
        k.lab(lab("nm%d" % b))
    k.lab(lab("nomask"))
    k.e("v_max_f32 v1, v%d, v%d" % (SB, SB + 1))
    for r in range(2, NSR, 2):
        k.e("v_max3_f32 v1, v1, v%d, v%d" % (SB + r, SB + r + 1))
    k.e("v_mov_b32 v2, v1")
    k.e("s_nop 1")
    k.e("v_permlane32_swap_b32 v1, v2")
    k.e("v_max_f32 v1, v1, v2")
    k.e("v_mul_f32 v1, s26, v1")
    k.e("v_sub_f32 v36, 0, v1")
    k.e("v_sub_f32 v37, 0, v1")
    k.e("v_mov_b32 v38, s26")
    k.e("v_mov_b32 v39, s26")
    k.e("v_mov_b32 v2, 0")
    k.e("v_mov_b32 v3, 0")
    PB = None
    for b in range(9):
        for r in range(0, 16, 2):
            a = SB + b * 16 + r
            k.e("v_pk_fma_f32 v[%d:%d], v[%d:%d], v[38:39], v[36:37]" % (a, a + 1, a, a + 1))
        for r in range(16):
            a = SB + b * 16 + r
            k.e("v_exp_f32 v%d, v%d" % (a, a))
        k.e("s_nop 0")
        if not MIMIC:
            for j in range(8):
                a = SB + b * 16 + 2 * j
                k.e("v_pk_add_f32 v[2:3], v[2:3], v[%d:%d]" % (a, a + 1))
                k.e("v_cvt_pk_bf16_f32 v%d, v%d, v%d" % (SB + b * 16 + j, a, a + 1))
    if MIMIC:
        for r in range(NSR):
            k.e("v_add_f32 v2, v2, v%d" % (SB + r))
    k.e("v_add_f32 v2, v2, v3")
    k.e("v_mov_b32 v3, v2")
    k.e("s_nop 1")
    k.e("v_permlane32_swap_b32 v2, v3")
    k.e("v_add_f32 v2, v2, v3")
    k.e("v_rcp_f32 v2, v2")
    k.e("s_nop 0")
    if MIMIC:
        for b in range(9):
            for j in range(8):
                a = SB + b * 16 + 2 * j
                k.e("v_mul_f32 v%d, v%d, v2" % (a, a))
                k.e("v_mul_f32 v%d, v%d, v2" % (a + 1, a + 1))
                k.e("v_cvt_pk_bf16_f32 v%d, v%d, v%d" % (SB + b * 16 + j, a, a + 1))
    OA = 192
    stamp(k, 3)
    for j in range(4):
        k.e("ds_read_b64_tr_b16 v[%d:%d], v%d offset:%d" % (20 + 2 * j, 21 + 2 * j, 15 + j, V_LDS))
    for b in range(9):
        f = 20 + 8 * (b & 1); fn = 20 + 8 * ((b + 1) & 1)
        if b < 8:
            for j in range(4):
                k.e("ds_read_b64_tr_b16 v[%d:%d], v%d offset:%d" % (fn + 2 * j, fn + 2 * j + 1, 15 + j, V_LDS + (b + 1) * 2048))
            k.e("s_waitcnt lgkmcnt(4)")
        else:
            k.e("s_waitcnt lgkmcnt(0)")
        p = SB + b * 16
        if b == 0:
            k.e("v_mfma_f32_32x32x16_bf16 v[%d:%d], v[%d:%d], v[%d:%d], 0" % (OA, OA + 15, f, f + 3, p, p + 3))
        else:
            k.e("v_mfma_f32_32x32x16_bf16 v[%d:%d], v[%d:%d], v[%d:%d], v[%d:%d]" % (OA, OA + 15, f, f + 3, p, p + 3, OA, OA + 15))
        k.e("v_mfma_f32_32x32x16_bf16 v[%d:%d], v[%d:%d], v[%d:%d], v[%d:%d]" % (OA, OA + 15, f + 4, f + 7, p + 4, p + 7, OA, OA + 15))
    k.e("""
    s_lshl_b32 s23, s21, 7
    s_lshl_b32 s24, s22, 5
    s_add_u32 s23, s23, s24
    v_and_b32 v1, 31, v0
    v_add_u32 v1, s23, v1
    v_lshlrev_b32 v1, 11, v1
    v_lshrrev_b32 v3, 5, v0
    v_lshlrev_b32 v3, 3, v3
    s_lshl_b32 s24, s20, 6
    v_add3_u32 v1, v1, v3, s24
    s_nop 7
    """)
    if not MIMIC:
        for r in range(16):
            k.e("v_mul_f32 v%d, v%d, v2" % (OA + r, OA + r))
    for j in range(4):
        k.e("v_cvt_pk_bf16_f32 v%d, v%d, v%d" % (208 + 2 * j, OA + 4 * j, OA + 1 + 4 * j))
        k.e("v_cvt_pk_bf16_f32 v%d, v%d, v%d" % (209 + 2 * j, OA + 2 + 4 * j, OA + 3 + 4 * j))
        k.e("buffer_store_dwordx2 v[%d:%d], v1, s[8:11], 0 offen offset:%d" % (208 + 2 * j, 209 + 2 * j, 16 * j))
    stamp_store(k, 4, 4)
    k.e("s_endpgm")
    k.lab(lab("cs"))
    if 'nohelp' in EXP:
        k.e("s_endpgm")
    k.e("s_cmp_ge_u32 s2, %d" % NCS)
    k.e("s_cbranch_scc1 %s" % lab("pf"))
    k.e("s_mov_b32 s20, s2")
    k.e("s_cmp_lt_u32 s20, 56")
    k.e("s_cselect_b32 s4, s%d, s%d" % (PTR0 + 2 * KA_W1, PTR0 + 2 * KA_W3))
    k.e("s_cselect_b32 s5, s%d, s%d" % (PTR0 + 2 * KA_W1 + 1, PTR0 + 2 * KA_W3 + 1))
    k.e("s_cselect_b32 s21, 0, 56")
    k.e("s_and_b32 s5, s5, 0xffff")
    k.e("s_mov_b32 s6, %d" % (D * F * 2))
    k.e("s_mov_b32 s7, 0x00020000")
    k.e("s_sub_u32 s21, s20, s21")
    srd(k, 8, KA_WS, WS_CS, 2 * F * 4)
    k.e("""
    v_lshrrev_b32 v1, 3, v0
    v_and_b32 v2, 7, v0
    s_mov_b32 s22, %d
    v_mul_lo_u32 v1, v1, s22
    v_lshlrev_b32 v2, 4, v2
    s_lshl_b32 s22, s21, 7
    v_add3_u32 v1, v1, v2, s22
    """ % (F * 2))
    for r in range(8):
        k.e("v_mov_b32 v%d, 0" % (8 + r))
    for half in range(1):
        for i in range(32):
            k.e("v_add_u32 v2, %d, v1" % (i * 32 * F * 2))
            k.e("buffer_load_dwordx4 v[%d:%d], v2, s[4:7], 0 offen" % (16 + 4 * i, 19 + 4 * i))
        for i in range(32):
            k.e("s_waitcnt vmcnt(%d)" % (31 - i))
            for j in range(4):
                k.e("v_lshlrev_b32 v3, 16, v%d" % (16 + 4 * i + j))
                k.e("v_and_b32 v4, 0xffff0000, v%d" % (16 + 4 * i + j))
                k.e("v_add_f32 v%d, v%d, v3" % (8 + 2 * j, 8 + 2 * j))
                k.e("v_add_f32 v%d, v%d, v4" % (9 + 2 * j, 9 + 2 * j))
    k.e("v_lshlrev_b32 v2, 5, v0")
    k.e("ds_write_b128 v2, v[8:11]")
    k.e("ds_write_b128 v2, v[12:15] offset:16")
    k.e("s_waitcnt lgkmcnt(0)")
    k.e("s_barrier")
    k.e("v_cmp_gt_u32 vcc, 64, v0")
    k.e("s_and_saveexec_b64 s[24:25], vcc")
    k.e("s_cbranch_execz %s" % lab("end"))
    k.e("v_lshlrev_b32 v2, 2, v0")
    for i in range(32):
        k.e("ds_read_b32 v%d, v2 offset:%d" % (16 + i, i * 256))
    k.e("s_waitcnt lgkmcnt(0)")
    for i in range(1, 32):
        k.e("v_add_f32 v16, v16, v%d" % (16 + i))
    k.e("s_lshl_b32 s22, s20, 8")
    k.e("v_add_u32 v2, s22, v2")
    k.e("buffer_store_dword v16, v2, s[8:11], 0 offen")
    k.e("s_endpgm")
    k.lab(lab("pf"))
    k.e("s_sub_u32 s20, s2, %d" % NCS)
    k.e("s_cmp_lt_u32 s20, 0")
    k.e("s_cselect_b32 s4, s%d, s%d" % (PTR0 + 2 * KA_W2, PTR0 + 2 * KA_WO))
    k.e("s_cselect_b32 s5, s%d, s%d" % (PTR0 + 2 * KA_W2 + 1, PTR0 + 2 * KA_WO + 1))
    k.e("s_mov_b32 s23, %d" % (D * D * 2))
    k.e("s_cselect_b32 s6, %d, s23" % (F * D * 2))
    k.e("s_cselect_b32 s21, 0, 0")
    k.e("s_mov_b32 s22, 65536")
    k.e("s_and_b32 s5, s5, 0xffff")
    k.e("s_mov_b32 s7, 0x00020000")
    k.e("s_sub_u32 s21, s20, s21")
    k.e("s_mul_i32 s21, s21, s22")
    k.e("v_lshlrev_b32 v1, 4, v0")
    k.e("v_add_u32 v1, s21, v1")
    for i in range(16):
        k.e("buffer_load_dwordx4 v[%d:%d], v1, s[4:7], 0 offen" % (8 + 4 * i, 11 + 4 * i))
        k.e("v_add_u32 v1, 4096, v1")
    k.e("s_waitcnt vmcnt(0)")
    k.lab(lab("end"))
    k.e("s_endpgm")
    k.nvgpr = 216
    return k


def gen_g3(name, npf=32):
    BM = 256; RB = 4; CB = 8; NWC = 8; R = 5; STAGE = 32768; nk = 32
    ntm, ntn = 8, 28
    nwg = ntm * ntn
    subs = [(KA_W1, 0, F, 128, 128), (KA_W3, 0, F, 128, 128)]
    colblocks = [(0, 4, j) for j in range(4)] + [(1, 4, j) for j in range(4)]
    sub_lds = [16384, 24576]
    k = Kern(name, (nwg + npf + ncs, 1, 1), (512, 1, 1), R * STAGE, 0)
    lab = lambda s: "%s_%s" % (name, s)
    k.e("s_cmp_ge_u32 s2, %d" % (nwg + npf))
    k.e("s_cbranch_scc1 %s" % lab("end"))
    stamp(k, 0)
    load_ptrs(k)
    k.e("s_cmp_lt_u32 s2, %d" % nwg)
    k.e("s_cbranch_scc1 %s" % lab("main"))
    srd(k, 4, KA_W2, 0, F * D * 2)
    per = F * D * 2 // npf
    k.e("s_sub_u32 s20, s2, %d" % nwg)
    k.e("s_mul_i32 s20, s20, %d" % per)
    k.e("v_lshlrev_b32 v1, 4, v0")
    k.e("v_add_u32 v1, s20, v1")
    for i in range(per // 8192):
        k.e("buffer_load_dwordx4 v[%d:%d], v1, s[4:7], 0 offen" % (8 + 4 * i, 11 + 4 * i))
        k.e("v_add_u32 v1, 8192, v1")
    k.e("s_waitcnt vmcnt(0)")
    k.e("s_endpgm")
    k.lab(lab("main"))
    srd(k, 4, KA_WS, WS_H, S * D * 2)
    srd(k, 8, KA_W1, 0, D * F * 2)
    srd(k, 12, KA_W3, 0, D * F * 2)
    k.e("""
    s_and_b32 s25, s2, 7
    s_lshr_b32 s26, s2, 3
    s_and_b32 s20, s25, 1
    s_mul_i32 s20, s20, 4
    s_and_b32 s27, s26, 3
    s_add_u32 s20, s20, s27
    s_lshr_b32 s21, s25, 1
    s_mul_i32 s21, s21, 7
    s_lshr_b32 s27, s26, 2
    s_add_u32 s21, s21, s27
    v_lshrrev_b32 v1, 6, v0
    s_nop 0
    v_readfirstlane_b32 s19, v1
    s_and_b32 s23, s19, 3
    s_lshr_b32 s24, s19, 2
    v_and_b32 v0, 63, v0
    """)
    vAd, vBd = 2, 4
    vAb = 6
    vAr = 15
    vsum, vsq = 24, 28
    vfr = 36
    vacc = vfr + 88
    T0, T1, T2 = vfr, vfr + 1, vfr + 2
    acc = lambda rb, cb: vacc + (rb * CB + cb) * 4
    vend = vacc + RB * CB * 4
    k.nvgpr = vend
    fA = lambda rb: vfr + 4 * rb
    fB = lambda cb: vfr + 16 + 4 * cb
    def sw(dst, rg, t):
        k.e("v_lshlrev_b32 v%d, 1, v%d" % (dst, rg))
        k.e("v_and_b32 v%d, 3, v%d" % (dst, dst))
        k.e("v_lshrrev_b32 v%d, 1, v%d" % (t, rg))
        k.e("v_mul_u32_u24 v%d, 3, v%d" % (t, t))
        k.e("v_xor_b32 v%d, v%d, v%d" % (dst, dst, t))
    k.e("v_bfe_u32 v1, v0, 4, 2")
    sw(T0, 1, T1)
    k.e("v_and_b32 v%d, 3, v0" % T1)
    k.e("v_xor_b32 v%d, v%d, v%d" % (T0, T0, T1))
    k.e("v_lshlrev_b32 v%d, 4, v%d" % (T0, T0))
    k.e("v_lshrrev_b32 v1, 2, v0")
    k.e("s_lshl_b32 s25, s19, 5")
    k.e("s_lshl_b32 s26, s20, 8")
    k.e("s_add_u32 s25, s25, s26")
    k.e("v_add_u32 v1, s25, v1")
    k.e("v_lshlrev_b32 v1, 11, v1")
    k.e("v_add_u32 v%d, v1, v%d" % (vAd, T0))
    k.e("v_add_u32 v%d, %d, v%d" % (vAd + 1, 16 * 2048, vAd))
    k.e("v_lshrrev_b32 v1, 4, v0")
    k.e("s_lshl_b32 s25, s19, 2")
    k.e("v_add_u32 v1, s25, v1")
    k.e("v_and_b32 v%d, 3, v1" % T0)
    k.e("v_lshrrev_b32 v%d, 1, v1" % T1)
    k.e("v_and_b32 v%d, 4, v%d" % (T1, T1))
    k.e("v_or_b32 v%d, v%d, v%d" % (T0, T0, T1))
    k.e("v_lshlrev_b32 v%d, 1, v%d" % (T0, T0))
    k.e("v_and_b32 v%d, 15, v0" % T1)
    k.e("v_xor_b32 v%d, v%d, v%d" % (T0, T0, T1))
    k.e("v_lshlrev_b32 v%d, 4, v%d" % (T0, T0))
    k.e("s_mov_b32 s26, %d" % (F * 2))
    k.e("v_mul_lo_u32 v1, v1, s26")
    k.e("s_lshl_b32 s26, s21, 8")
    k.e("v_add3_u32 v%d, v1, v%d, s26" % (vBd, T0))
    k.e("v_mov_b32 v%d, v%d" % (vBd + 1, vBd))
    k.e("v_bfe_u32 v1, v0, 2, 2")
    sw(T0, 1, T1)
    k.e("v_lshrrev_b32 v%d, 4, v0" % T1)
    k.e("v_xor_b32 v%d, v%d, v%d" % (T0, T0, T1))
    k.e("v_lshlrev_b32 v%d, 4, v%d" % (T0, T0))
    k.e("v_and_b32 v1, 15, v0")
    k.e("v_lshlrev_b32 v1, 6, v1")
    k.e("s_lshl_b32 s25, s23, 12")
    k.e("v_add3_u32 v%d, v1, v%d, s25" % (vAb, T0))
    for cb, (si, pmul, padd) in enumerate(colblocks):
        k.e("""
        v_lshrrev_b32 v1, 4, v0
        v_lshlrev_b32 v1, 3, v1
        v_bfe_u32 v%d, v0, 2, 2
        v_add_u32 v1, v1, v%d
        v_bfe_u32 v%d, v0, 4, 1
        v_lshlrev_b32 v%d, 2, v%d
        v_or_b32 v%d, v%d, v%d
        """ % (T0, T0, T1, T1, T1, T1, T1, T0))
        k.e("s_mul_i32 s25, s24, %d" % pmul)
        k.e("s_add_u32 s25, s25, %d" % padd)
        k.e("v_xor_b32 v%d, s25, v%d" % (T1, T1))
        k.e("v_lshlrev_b32 v%d, 5, v%d" % (T1, T1))
        k.e("v_lshlrev_b32 v1, 8, v1")
        k.e("v_and_b32 v%d, 3, v0" % T2)
        k.e("v_lshlrev_b32 v%d, 3, v%d" % (T2, T2))
        k.e("v_add3_u32 v%d, v1, v%d, v%d" % (vAb + 1 + cb, T1, T2))
        k.e("v_add_u32 v%d, %d, v%d" % (vAb + 1 + cb, sub_lds[si], vAb + 1 + cb))
    for r in range(vacc, vend):
        k.e("v_mov_b32 v%d, 0" % r)
    k.e("""
    s_mov_b32 s30, 0
    s_mov_b32 s31, 0
    s_mov_b32 s34, 0
    s_lshl_b32 s35, s19, 11
    s_lshl_b32 s44, s19, 10
    s_add_u32 s45, s44, 24576
    s_add_u32 s44, s44, 16384
    s_mov_b32 s37, 0
    s_mov_b32 s38, 0
    """)

    def dma():
        k.e("""
        s_add_u32 s36, s34, s35
        s_mov_b32 m0, s36
        s_nop 0
        buffer_load_dwordx4 v%d, s[4:7], s30 offen lds
        s_add_u32 m0, s36, 1024
        s_nop 0
        buffer_load_dwordx4 v%d, s[4:7], s30 offen lds
        s_add_u32 m0, s34, s44
        s_nop 0
        buffer_load_dwordx4 v%d, s[8:11], s31 offen lds
        s_add_u32 m0, s34, s45
        s_nop 0
        buffer_load_dwordx4 v%d, s[12:15], s31 offen lds
        s_add_u32 s30, s30, 64
        s_add_u32 s31, s31, %d
        s_add_u32 s34, s34, %d
        s_cmp_eq_u32 s34, %d
        s_cselect_b32 s34, 0, s34
        """ % (vAd, vAd + 1, vBd, vBd + 1, 32 * F * 2, STAGE, R * STAGE))

    def loadphase():
        dma()
        for r in range(9):
            k.e("v_add_u32 v%d, s38, v%d" % (vAr + r, vAb + r))
        k.e("s_add_u32 s38, s38, %d\ns_cmp_eq_u32 s38, %d\ns_cselect_b32 s38, 0, s38" % (STAGE, R * STAGE))
        for rb in range(RB):
            k.e("ds_read_b128 v[%d:%d], v%d offset:%d" % (fA(rb), fA(rb) + 3, vAr, rb * 1024))
        for cb in range(CB):
            k.e("ds_read_b64_tr_b16 v[%d:%d], v%d" % (fB(cb), fB(cb) + 1, vAr + 1 + cb))
            k.e("ds_read_b64_tr_b16 v[%d:%d], v%d offset:1024" % (fB(cb) + 2, fB(cb) + 3, vAr + 1 + cb))
        k.e("s_waitcnt lgkmcnt(0)")

    def compphase():
        for rb in range(RB):
            for cb in range(CB):
                a = acc(rb, cb)
                k.e("v_mfma_f32_16x16x32_bf16 v[%d:%d], v[%d:%d], v[%d:%d], v[%d:%d]" % (
                    a, a + 3, fB(cb), fB(cb) + 3, fA(rb), fA(rb) + 3, a, a + 3))

    for _ in range(4):
        dma()
    stamp(k, 1)
    k.e("s_waitcnt vmcnt(12)")
    k.e("s_barrier")
    k.e("s_cmp_ge_u32 s19, 4")
    k.e("s_cbranch_scc1 %s" % lab("ypath"))
    loadphase()
    k.e("s_barrier")
    k.lab(lab("xloop"))
    compphase()
    k.e("s_waitcnt vmcnt(12)")
    k.e("s_barrier")
    loadphase()
    k.e("s_barrier")
    k.e("s_add_u32 s37, s37, 1")
    k.e("s_cmp_lt_u32 s37, %d" % nk)
    k.e("s_cbranch_scc1 %s" % lab("xloop"))
    k.e("s_branch %s" % lab("done"))
    k.lab(lab("ypath"))
    k.e("s_barrier")
    k.lab(lab("loop"))
    loadphase()
    k.e("s_waitcnt vmcnt(12)")
    k.e("s_barrier")
    compphase()
    k.e("s_barrier")
    k.e("s_add_u32 s37, s37, 1")
    k.e("s_cmp_lt_u32 s37, %d" % nk)
    k.e("s_cbranch_scc1 %s" % lab("loop"))
    k.lab(lab("done"))
    k.e("s_waitcnt vmcnt(0) lgkmcnt(0)")
    k.e("s_barrier")
    stamp(k, 3)
    k.e("s_nop 7")
    ctx = dict(RB=RB, CB=CB, acc=acc, colblocks=colblocks, subs=subs, BM=BM, vend=vend, vres=None, ln='ws',
               vsum=vsum, vsq=vsq, vcs=None, Kdim=1024, lab=lab, vfr=vfr)

    def ws_stats():
        srd(k, 48, KA_WS, WS_PART, S * 256)
        t = vfr + 36
        dbase = [vfr + 40, vfr + 56, vfr + 72, 4]
        k.e("s_mul_i32 s25, s20, %d" % BM)
        k.e("s_mul_i32 s26, s23, %d" % (RB * 16))
        k.e("s_add_u32 s25, s25, s26")
        k.e("v_and_b32 v%d, 15, v0" % t)
        k.e("v_add_u32 v%d, s25, v%d" % (t, t))
        k.e("v_lshlrev_b32 v%d, 4, v%d" % (t, t))
        k.e("v_lshrrev_b32 v%d, 4, v0" % (t + 1))
        k.e("v_lshlrev_b32 v%d, 17, v%d" % (t + 1, t + 1))
        k.e("v_add_u32 v%d, v%d, v%d" % (t, t, t + 1))
        for j in range(4):
            if j:
                k.e("v_add_u32 v%d, 32768, v%d" % (t, t))
            for rb in range(RB):
                d = dbase[rb] + 4 * j
                k.e("buffer_load_dwordx4 v[%d:%d], v%d, s[48:51], 0 offen offset:%d" % (d, d + 3, t, 256 * rb))
        k.e("s_waitcnt vmcnt(0)")
        for rb in range(RB):
            d = dbase[rb]
            k.e("v_add_f32 v%d, v%d, v%d" % (vsum + rb, d, d + 2))
            k.e("v_add_f32 v%d, v%d, v%d" % (vsq + rb, d + 1, d + 3))
            for j in range(2, 8):
                k.e("v_add_f32 v%d, v%d, v%d" % (vsum + rb, vsum + rb, d + 2 * j))
                k.e("v_add_f32 v%d, v%d, v%d" % (vsq + rb, vsq + rb, d + 2 * j + 1))
        ctx["vtmp"] = vfr + 40
        ln_finish(k, ctx)
    ctx["ws_stats"] = ws_stats
    epi_swiglu(k, ctx)
    stamp_store(k, 4, 2)
    k.lab(lab("end"))
    k.e("s_endpgm")
    return k


def build():
    ks = []
    ks.append(gen_gemm("g1_kernel", 128, 2, 2, 1024, KA_X, 0,
                       [(KA_WQKV, 0, 3072, 128, 192), (KA_WQKV, 256, 3072, 64, 192)],
                       [(0, 4, 0), (0, 4, 1), (0, 4, 2), (0, 4, 3), (1, 2, 0), (1, 2, 1)], 16,
                       epi_store_factory(3072, KA_WS, WS_QKV, S * 3072 * 2, groups=[[0, 1, 2, 3], [4, 5]]), (4, 8), NL=4, ln='mfma'))
    ks.append(gen_attn("attn_kernel"))
    ks.append(gen_gemm("g2_kernel", 128, 2, 2, 1024, KA_WS, WS_O, [(KA_WO, 0, 1024, 64, 64)],
                       [(0, 2, 0), (0, 2, 1)], 16,
                       epi_store_factory(1024, KA_WS, WS_H, S * D * 2, part=True), (4, 8), nstages=3, NL=4, res=(KA_X, 0), ncs=56))
    if 'newg3' not in EXP:
        ks.append(gen_gemm("g3_kernel", 256, 4, 2, 1024, KA_WS, WS_H,
                           [(KA_W1, 0, F, 128, 128), (KA_W3, 0, F, 128, 128)],
                           [(0, 4, j) for j in range(4)] + [(1, 4, j) for j in range(4)], 28, epi_swiglu, (4, 7), ln='ws', pp=True, npf=32))
    else:
        ks.append(gen_g3("g3_kernel"))
    ks.append(gen_gemm("g4_kernel", 128, 2, 2, F, KA_WS, WS_ACT, [(KA_W2, 0, 1024, 64, 64)],
                       [(0, 2, 0), (0, 2, 1)], 16,
                       epi_store_factory(1024, KA_OUT, 0, S * D * 2), (4, 8), NL=int(os.environ.get('NL24', '4')), res=(KA_WS, WS_H)))
    return ks


def main():
    ks = build()
    out = [HEADER.rstrip()]
    for k in ks:
        out.append("; @launch kernel=%s grid=(%d,%d,%d) block=(%d,%d,%d) lds=%d" % ((k.name,) + k.grid + k.block + (k.lds,)))
    out.append('.amdgcn_target "amdgcn-amd-amdhsa--gfx950"')
    out.append(".text")
    for k in ks:
        out.append(k.text())
    out.append('.section .rodata,"a"')
    for k in ks:
        out.append(".p2align 6")
        out.append(k.desc())
    open(sys.argv[1] if len(sys.argv) > 1 else "sequential_preLN__sliding_block__glu_gated_swiglu__prompt.s", "w").write("\n".join(out) + "\n")


if __name__ == "__main__":
    main()
```

```python
import sys, os
EXP = os.environ.get('EXP', '')
STFLAG = ' sc1'

S = 2048; D = 1024; F = 3584
MB = 1 << 20
WS_QKV = 4 * MB
WS_O = 16 * MB
WS_H = 20 * MB
WS_ACT = 28 * MB
WS_PART = 49 * MB
WS_CS = 48 * MB

KA_X, KA_WQKV, KA_WO, KA_BX, KA_W1, KA_W3, KA_W2, KA_OUT, KA_DBG, KA_WS = range(10)
PTR0 = 64

HEADER = """; Kernarg layout for this problem (80 bytes, ptrs only, base s[0:1]):
;   offset  72: d_ws      268435456 bytes workspace
"""


class Kern:
    def __init__(self, name, grid, block, lds, nvgpr, nsgpr=100):
        self.name = name; self.grid = grid; self.block = block; self.lds = lds
        self.nvgpr = nvgpr; self.nsgpr = nsgpr
        self.lines = []

    def e(self, s):
        for ln in s.strip().split("\n"):
            if ln.strip():
                self.lines.append("    " + ln.strip())

    def lab(self, l):
        self.lines.append(l + ":")

    def text(self):
        out = [".globl %s" % self.name, ".p2align 8", ".type %s,@function" % self.name, "%s:" % self.name]
        return "\n".join(out + self.lines)

    def desc(self):
        nv = self.nvgpr
        return """.amdhsa_kernel %s
  .amdhsa_next_free_vgpr %d
  .amdhsa_next_free_sgpr %d
  .amdhsa_accum_offset %d
  .amdhsa_group_segment_fixed_size 0
  .amdhsa_kernarg_size 80
  .amdhsa_user_sgpr_count 2
  .amdhsa_user_sgpr_kernarg_segment_ptr 1
  .amdhsa_system_sgpr_workgroup_id_x 1
.end_amdhsa_kernel""" % (self.name, nv, self.nsgpr, (nv + 3) // 4 * 4)


def load_ptrs(k):
    k.e("s_load_dwordx16 s[64:79], s[0:1], 0")
    k.e("s_load_dwordx4 s[80:83], s[0:1], 64")
    k.e("s_waitcnt lgkmcnt(0)")


def srd(k, sreg, slot, off, nbytes):
    p = PTR0 + 2 * slot
    if off:
        k.e("s_add_u32 s%d, s%d, %d" % (sreg, p, off))
        k.e("s_addc_u32 s%d, s%d, 0" % (sreg + 1, p + 1))
        k.e("s_and_b32 s%d, s%d, 0xffff" % (sreg + 1, sreg + 1))
    else:
        k.e("s_mov_b32 s%d, s%d" % (sreg, p))
        k.e("s_and_b32 s%d, s%d, 0xffff" % (sreg + 1, p + 1))
    k.e("s_mov_b32 s%d, %d" % (sreg + 2, nbytes))
    k.e("s_mov_b32 s%d, 0x00020000" % (sreg + 3))


def stamp(k, i):
    if 'stamp' in EXP:
        k.e("s_memrealtime s[%d:%d]" % (86 + 2 * i, 87 + 2 * i))


def stamp_store(k, n, kidx):
    if 'stamp' not in EXP:
        return
    k.e("s_waitcnt vmcnt(0) lgkmcnt(0)")
    k.e("s_memrealtime s[%d:%d]" % (86 + 2 * n, 87 + 2 * n))
    k.e("s_waitcnt lgkmcnt(0)")
    srd(k, 56, KA_WS, 64 * MB + kidx * 65536, 65536)
    k.e("s_lshl_b32 s60, s2, 6")
    k.e("v_mov_b32 v1, s60")
    for i in range(n + 1):
        k.e("v_mov_b32 v2, s%d" % (86 + 2 * i))
        k.e("buffer_store_dword v2, v1, s[56:59], 0 offen offset:%d" % (4 * i))


def f3(k):
    return (k & 3) | ((k >> 1) & 4)


def gen_gemm(name, BM, WM, WN, Kdim, a_slot, a_off, subs, colblocks, ntn, epi, grp, nstages=6, NL=0, ln=None, res=None, pp=False, npf=0):
    NWC = WM * WN
    NW = NL if NL else NWC
    RB = BM // WM // 16
    CB = len(colblocks)
    ntm = S // BM
    nwg = ntm * ntn
    nk = Kdim // 64
    sub_lds = []
    o = BM * 128
    for sb in subs:
        sub_lds.append(o); o += 64 * sb[3] * 2
    STAGE = o
    NS = min(nstages, 163840 // STAGE)
    assert NS >= 2 and STAGE <= 65536
    k = Kern(name, (nwg + npf, 1, 1), (64 * (NWC + NL), 1, 1), NS * STAGE + (4096 if pp else 0), 0)
    lab = lambda s: "%s_%s" % (name, s)
    k.e("s_cmp_ge_u32 s2, %d" % (nwg + npf))
    k.e("s_cbranch_scc1 %s" % lab("end"))
    stamp(k, 0)
    load_ptrs(k)
    if npf:
        k.e("s_cmp_lt_u32 s2, %d" % nwg)
        k.e("s_cbranch_scc1 %s" % lab("main"))
        srd(k, 4, KA_W2, 0, F * D * 2)
        per = F * D * 2 // npf
        nthr = 64 * (NWC + NL)
        assert per % (nthr * 16) == 0
        k.e("s_sub_u32 s20, s2, %d" % nwg)
        k.e("s_mul_i32 s20, s20, %d" % per)
        k.e("v_lshlrev_b32 v1, 4, v0")
        k.e("v_add_u32 v1, s20, v1")
        for i in range(per // (nthr * 16)):
            k.e("buffer_load_dwordx4 v[%d:%d], v1, s[4:7], 0 offen" % (8 + 4 * i, 11 + 4 * i))
            k.e("v_add_u32 v1, %d, v1" % (nthr * 16))
        k.e("s_waitcnt vmcnt(0)")
        k.e("s_endpgm")
        k.lab(lab("main"))
    srd(k, 4, a_slot, a_off, S * Kdim * 2)
    for i, sb in enumerate(subs):
        srd(k, 8 + 4 * i, sb[0], sb[1], Kdim * sb[2] * 2 - sb[1])
    gm, gn = grp
    assert gm * gn * 8 == nwg
    k.e("s_and_b32 s25, s2, 7")
    k.e("s_lshr_b32 s26, s2, 3")
    ng = ntm // gm
    k.e("s_and_b32 s20, s25, %d" % (ng - 1))
    k.e("s_mul_i32 s20, s20, %d" % gm)
    k.e("s_and_b32 s27, s26, %d" % (gm - 1))
    k.e("s_add_u32 s20, s20, s27")
    k.e("s_lshr_b32 s21, s25, %d" % (ng.bit_length() - 1))
    k.e("s_mul_i32 s21, s21, %d" % gn)
    k.e("s_lshr_b32 s27, s26, %d" % (gm.bit_length() - 1))
    k.e("s_add_u32 s21, s21, s27")
    k.e("v_lshrrev_b32 v1, 6, v0")
    k.e("s_nop 0")
    k.e("v_readfirstlane_b32 s19, v1")
    k.e("s_and_b32 s23, s19, %d" % (WM - 1))
    k.e("s_lshr_b32 s24, s19, %d" % (WM.bit_length() - 1))
    k.e("s_and_b32 s24, s24, %d" % (WN - 1))
    if NL:
        k.e("s_sub_u32 s22, s19, %d" % NWC)
        k.e("s_and_b32 s22, s22, %d" % (NL - 1))
    else:
        k.e("s_mov_b32 s22, s19")
    k.e("v_and_b32 v0, 63, v0")
    nA_w = BM // 8 // NW
    vA_dma = 2
    _nb = sum(64 * sb[3] * 2 // 1024 // NW for sb in subs)
    XORST = (NS == 2 and STAGE == 65536)
    _vx = vA_dma + nA_w + _nb + (1 if XORST else 2) * (2 + CB)
    if ln == 'mfma':
        _vx = (_vx + 2 * RB + 3) // 4 * 4 + 4 + 4 * CB
    elif ln:
        _vx = _vx + 2 * RB + 1
    if res:
        _vx = (_vx + 1) // 2 * 2 + 2 * RB * CB
    _vfr = (_vx + 3) // 4 * 4
    T0, T1, T2 = _vfr, _vfr + 1, _vfr + 2
    k.e("""
    v_lshrrev_b32 v1, 3, v0
    v_and_b32 v%d, 7, v0
    v_xor_b32 v%d, v%d, v1
    v_lshlrev_b32 v%d, 4, v%d
    """ % (T0, T0, T0, T0, T0))
    k.e("s_mul_i32 s25, s22, %d" % (nA_w * 8))
    k.e("s_mul_i32 s26, s20, %d" % BM)
    k.e("s_add_u32 s25, s25, s26")
    k.e("v_add_u32 v1, s25, v1")
    k.e("s_mov_b32 s26, %d" % (Kdim * 2))
    k.e("v_mul_lo_u32 v1, v1, s26")
    k.e("v_add_u32 v%d, v1, v%d" % (vA_dma, T0))
    for t in range(1, nA_w):
        k.e("v_add_u32 v%d, %d, v%d" % (vA_dma + t, t * 8 * Kdim * 2, vA_dma))
    bdma = []
    vb = vA_dma + nA_w
    for si, (slot, off, ldb, width, tnmul) in enumerate(subs):
        pitch = width * 2
        nB = 64 * pitch // 1024
        assert nB % NW == 0
        nB_w = nB // NW
        rows_per = 1024 // pitch
        cpr = pitch // 16
        for t in range(nB_w):
            k.e("s_mul_i32 s25, s22, %d" % (nB_w * rows_per))
            k.e("s_add_u32 s25, s25, %d" % (t * rows_per))
            k.e("v_lshrrev_b32 v1, %d, v0" % (cpr.bit_length() - 1))
            k.e("v_add_u32 v1, s25, v1")
            if pitch >= 256:
                k.e("v_and_b32 v%d, 3, v1" % T0)
                k.e("v_lshrrev_b32 v%d, 1, v1" % T1)
                k.e("v_and_b32 v%d, 4, v%d" % (T1, T1))
            else:
                k.e("v_bfe_u32 v%d, v1, 1, 1" % T0)
                k.e("v_lshrrev_b32 v%d, 2, v1" % T1)
                k.e("v_and_b32 v%d, 2, v%d" % (T1, T1))
            k.e("v_or_b32 v%d, v%d, v%d" % (T0, T0, T1))
            k.e("v_lshlrev_b32 v%d, 1, v%d" % (T0, T0))
            k.e("v_and_b32 v%d, %d, v0" % (T1, cpr - 1))
            k.e("v_xor_b32 v%d, v%d, v%d" % (T0, T0, T1))
            k.e("v_lshlrev_b32 v%d, 4, v%d" % (T0, T0))
            k.e("s_mov_b32 s26, %d" % (ldb * 2))
            k.e("v_mul_lo_u32 v1, v1, s26")
            k.e("v_add_u32 v1, v1, v%d" % T0)
            k.e("s_mul_i32 s26, s21, %d" % (tnmul * 2))
            k.e("v_add_u32 v%d, s26, v1" % vb)
            bdma.append((si, t, vb, nB_w))
            vb += 1
    _iB0 = len(k.lines)
    NAD = 2 + CB
    vAb = vb
    vAr = vAb if XORST else vAb + NAD
    k.e("""
    v_and_b32 v1, 15, v0
    v_lshlrev_b32 v1, 7, v1
    v_lshrrev_b32 v%d, 4, v0
    v_and_b32 v%d, 7, v0
    """ % (T0, T1))
    k.e("s_mul_i32 s25, s23, %d" % (RB * 16 * 128))
    k.e("v_add_u32 v1, s25, v1")
    k.e("v_xor_b32 v%d, v%d, v%d" % (T2, T0, T1))
    k.e("v_lshlrev_b32 v%d, 4, v%d" % (T2, T2))
    k.e("v_add_u32 v%d, v1, v%d" % (vAb, T2))
    k.e("v_or_b32 v%d, 4, v%d" % (T0, T0))
    k.e("v_xor_b32 v%d, v%d, v%d" % (T2, T0, T1))
    k.e("v_lshlrev_b32 v%d, 4, v%d" % (T2, T2))
    k.e("v_add_u32 v%d, v1, v%d" % (vAb + 1, T2))
    for cb, (si, pmul, padd) in enumerate(colblocks):
        pitch = subs[si][3] * 2
        k.e("""
        v_lshrrev_b32 v1, 4, v0
        v_lshlrev_b32 v1, 3, v1
        v_bfe_u32 v%d, v0, 2, 2
        v_add_u32 v1, v1, v%d
        """ % (T0, T0))
        if pitch >= 256:
            k.e("v_bfe_u32 v%d, v0, 4, 1" % T1)
            k.e("v_lshlrev_b32 v%d, 2, v%d" % (T1, T1))
            k.e("v_or_b32 v%d, v%d, v%d" % (T1, T1, T0))
        else:
            k.e("v_bfe_u32 v%d, v0, 3, 1" % T1)
            k.e("v_bfe_u32 v%d, v0, 4, 1" % T2)
            k.e("v_lshlrev_b32 v%d, 1, v%d" % (T2, T2))
            k.e("v_or_b32 v%d, v%d, v%d" % (T1, T1, T2))
        k.e("s_mul_i32 s25, s24, %d" % pmul)
        k.e("s_add_u32 s25, s25, %d" % padd)
        k.e("v_xor_b32 v%d, s25, v%d" % (T1, T1))
        k.e("v_lshlrev_b32 v%d, 5, v%d" % (T1, T1))
        k.e("s_mov_b32 s26, %d" % pitch)
        k.e("v_mul_lo_u32 v1, v1, s26")
        k.e("v_and_b32 v%d, 3, v0" % T2)
        k.e("v_lshlrev_b32 v%d, 3, v%d" % (T2, T2))
        k.e("v_add3_u32 v%d, v1, v%d, v%d" % (vAb + 2 + cb, T1, T2))
    vBr = vAr + 2
    vx = vAr + NAD
    vsum = vsq = vones = vcs = vres = None
    if ln:
        vsum = vx; vsq = vx + RB; vx += 2 * RB
        if ln == 'mfma':
            vx = (vx + 3) // 4 * 4
            vones = vx; vx += 4
            vcs = vx; vx += 4 * CB
        else:
            vones = vx; vx += 1
    if res:
        vx = (vx + 1) // 2 * 2
        vres = vx; vx += 2 * RB * CB
    vfr = (vx + 3) // 4 * 4
    fA = lambda s, rb: vfr + (s * RB + rb) * 4
    fB = lambda s, cb: vfr + 2 * RB * 4 + (s * CB + cb) * 4
    vacc = vfr + 2 * RB * 4 + 2 * CB * 4
    assert vfr == _vfr
    acc = lambda rb, cb: vacc + (rb * CB + cb) * 4
    vend = vacc + RB * CB * 4
    k.nvgpr = vend
    assert vend <= 256
    def lds_stats():
        t = vfr + 36
        k.e("v_and_b32 v%d, 15, v0" % t)
        k.e("s_lshl_b32 s25, s23, 6")
        k.e("v_add_u32 v%d, s25, v%d" % (t, t))
        k.e("v_lshlrev_b32 v%d, 3, v%d" % (t, t))
        k.e("v_add_u32 v%d, %d, v%d" % (t, NS * STAGE, t))
        for rb in range(RB):
            k.e("ds_read_b32 v%d, v%d offset:%d" % (vsum + rb, t, rb * 128))
            k.e("ds_read_b32 v%d, v%d offset:%d" % (vsq + rb, t, rb * 128 + 4))
        k.e("s_waitcnt vmcnt(0) lgkmcnt(0)")
    ctx = dict(ws_stats=(lds_stats if pp else (lambda: ws_stats())), RB=RB, CB=CB, acc=acc, colblocks=colblocks, subs=subs, BM=BM, vend=vend, vres=vres, ln=ln,
               vsum=vsum, vsq=vsq, vcs=vcs, Kdim=Kdim, lab=lab, vfr=vfr)
    def ws_stats():
        srd(k, 48, KA_WS, WS_PART, S * 256)
        t = vfr + 36
        dbase = [vfr + 40, vfr + 56, vfr + 72, 4]
        assert RB == 4 and vsum >= 20
        k.e("s_mul_i32 s25, s20, %d" % BM)
        k.e("s_mul_i32 s26, s23, %d" % (RB * 16))
        k.e("s_add_u32 s25, s25, s26")
        k.e("v_and_b32 v%d, 15, v0" % t)
        k.e("v_add_u32 v%d, s25, v%d" % (t, t))
        k.e("v_lshlrev_b32 v%d, 4, v%d" % (t, t))
        k.e("v_lshrrev_b32 v%d, 4, v0" % (t + 1))
        k.e("v_lshlrev_b32 v%d, 17, v%d" % (t + 1, t + 1))
        k.e("v_add_u32 v%d, v%d, v%d" % (t, t, t + 1))
        for j in range(4):
            if j:
                k.e("v_add_u32 v%d, 32768, v%d" % (t, t))
            for rb in range(RB):
                d = dbase[rb] + 4 * j
                k.e("buffer_load_dwordx4 v[%d:%d], v%d, s[48:51], 0 offen offset:%d" % (d, d + 3, t, 256 * rb))
        k.e("s_waitcnt vmcnt(0)")
        for rb in range(RB):
            d = dbase[rb]
            k.e("v_add_f32 v%d, v%d, v%d" % (vsum + rb, d, d + 2))
            k.e("v_add_f32 v%d, v%d, v%d" % (vsq + rb, d + 1, d + 3))
            for j in range(2, 8):
                k.e("v_add_f32 v%d, v%d, v%d" % (vsum + rb, vsum + rb, d + 2 * j))
                k.e("v_add_f32 v%d, v%d, v%d" % (vsq + rb, vsq + rb, d + 2 * j + 1))
        ctx["vtmp"] = vfr + 40
        ln_finish(k, ctx)

    def zero_acc():
        for r in range(vacc, vend):
            k.e("v_mov_b32 v%d, 0" % r)
    if ln != 'ws':
        zero_acc()
    if ln:
        for r in range(2 * RB if ln == 'mfma' else 0):
            k.e("v_mov_b32 v%d, 0" % (vsum + r))
        for r in range(4 if vcs else 1):
            k.e("v_mov_b32 v%d, 0x3f803f80" % (vones + r))
        if vcs:
            for r in range(4 * CB):
                k.e("v_mov_b32 v%d, 0" % (vcs + r))
    partB = k.lines[_iB0:]
    del k.lines[_iB0:]
    k.e("s_mov_b32 s30, 0")
    for i in range(len(subs)):
        k.e("s_mov_b32 s%d, 0" % (31 + i))
    k.e("s_mov_b32 s34, 0")
    k.e("s_mul_i32 s35, s22, %d" % (nA_w * 1024))
    for (si, t, vreg, nB_w) in bdma:
        if t == 0:
            k.e("s_mul_i32 s%d, s22, %d" % (44 + si, nB_w * 1024))
            k.e("s_add_u32 s%d, s%d, %d" % (44 + si, 44 + si, sub_lds[si]))
    nd = nA_w + len(bdma)

    def dma_items():
        it = []
        for t in range(nA_w):
            if t:
                pre = "s_add_u32 m0, s36, %d\ns_nop 0\n" % (t * 1024)
            else:
                pre = "s_add_u32 s36, s34, s35\ns_mov_b32 m0, s36\ns_nop 0\n"
            it.append(pre + "buffer_load_dwordx4 v%d, s[4:7], s30 offen lds" % (vA_dma + t))
        for (si, t, vreg, nB_w) in bdma:
            if t == 0:
                pre = "s_add_u32 s36, s34, s%d\ns_mov_b32 m0, s36\ns_nop 0\n" % (44 + si)
            else:
                pre = "s_add_u32 m0, s36, %d\ns_nop 0\n" % (t * 1024)
            it.append(pre + "buffer_load_dwordx4 v%d, s[%d:%d], s%d offen lds" % (vreg, 8 + 4 * si, 11 + 4 * si, 31 + si))
        tail = "s_add_u32 s30, s30, 128\n"
        for i, sb in enumerate(subs):
            tail += "s_add_u32 s%d, s%d, %d\n" % (31 + i, 31 + i, 64 * sb[2] * 2)
        tail += "s_add_u32 s34, s34, %d\ns_cmp_eq_u32 s34, %d\ns_cselect_b32 s34, 0, s34" % (STAGE, NS * STAGE)
        it[-1] += "\n" + tail
        return it

    def dma():
        for x in dma_items():
            k.e(x)

    def setaddr_items():
        if XORST:
            return ["v_xor_b32 v%d, %d, v%d" % (vAr + r, STAGE, vAr + r) for r in range(NAD)]
        it = ["v_add_u32 v%d, s38, v%d" % (vAr + r, vAb + r) for r in range(NAD)]
        it[-1] += "\ns_add_u32 s38, s38, %d\ns_cmp_eq_u32 s38, %d\ns_cselect_b32 s38, 0, s38" % (STAGE, NS * STAGE)
        return it

    def read_items(st, kk):
        it = []
        for rb in range(RB):
            it.append("ds_read_b128 v[%d:%d], v%d offset:%d" % (fA(st, rb), fA(st, rb) + 3, vAr + kk, rb * 2048))
        for cb, (si, pmul, padd) in enumerate(colblocks):
            pitch = subs[si][3] * 2
            base = sub_lds[si] + kk * 32 * pitch
            it.append("ds_read_b64_tr_b16 v[%d:%d], v%d offset:%d" % (fB(st, cb), fB(st, cb) + 1, vBr + cb, base))
            it.append("ds_read_b64_tr_b16 v[%d:%d], v%d offset:%d" % (fB(st, cb) + 2, fB(st, cb) + 3, vBr + cb, base + 4 * pitch))
        return it

    def stat_items(st):
        return []

    def mfmas(st, fill=(), late=()):
        fill = list(fill); late = list(late)
        ms = []
        for rb in range(RB):
            for cb in range(CB):
                a = acc(rb, cb)
                ms.append("v_mfma_f32_16x16x32_bf16 v[%d:%d], v[%d:%d], v[%d:%d], v[%d:%d]" % (
                    a, a + 3, fB(st, cb), fB(st, cb) + 3, fA(st, rb), fA(st, rb) + 3, a, a + 3))
        if vcs and 'nocs' not in EXP:
            for cb in range(CB):
                c = vcs + 4 * cb
                ms.append("v_mfma_f32_16x16x32_bf16 v[%d:%d], v[%d:%d], v[%d:%d], v[%d:%d]" % (
                    c, c + 3, fB(st, cb), fB(st, cb) + 3, vones, vones + 3, c, c + 3))
        n = len(ms)
        per = -(-len(fill) // n) if fill else 0
        perl = -(-len(late) // n) if late else 0
        for m in ms:
            k.e(m)
            for _ in range(per):
                if fill:
                    k.e(fill.pop(0))
            for _ in range(perl):
                if late:
                    k.e(late.pop(0))
        assert not fill and not late

    k.e("s_mov_b32 s37, 0")
    if NL:
        assert NS >= 3
        k.e("s_cmp_lt_u32 s19, %d" % NWC)
        k.e("s_cbranch_scc1 %s" % lab("comp"))
        if 'lprio' in EXP:
            k.e("s_setprio 2")
        for s_ in range(NS - 1):
            dma()
        LS = (ln == 'mfma')
        if LS:
            assert BM == 128 and NL == 4
            t = vfr
            k.e("v_lshrrev_b32 v%d, 1, v0" % (t + 22))
            k.e("s_lshl_b32 s25, s22, 5")
            k.e("v_add_u32 v%d, s25, v%d" % (t + 23, t + 22))
            k.e("v_lshlrev_b32 v%d, 7, v%d" % (t + 23, t + 23))
            k.e("v_and_b32 v%d, 1, v0" % (t + 24))
            k.e("v_lshlrev_b32 v%d, 6, v%d" % (t + 24, t + 24))
            k.e("v_add_u32 v%d, v%d, v%d" % (t + 23, t + 23, t + 24))
            k.e("v_lshrrev_b32 v%d, 1, v%d" % (t + 22, t + 22))
            for j in range(4):
                k.e("v_add_u32 v%d, %d, v%d" % (t + 24, j, t + 22))
                k.e("v_and_b32 v%d, 3, v%d" % (t + 24, t + 24))
                k.e("v_lshlrev_b32 v%d, 4, v%d" % (t + 24, t + 24))
                k.e("v_add_u32 v%d, v%d, v%d" % (t + 26 + j, t + 23, t + 24))
            k.e("v_mov_b32 v%d, 0" % (t + 20))
            k.e("v_mov_b32 v%d, 0" % (t + 21))
            k.e("v_mov_b32 v%d, 0x3f803f80" % vones)
            k.e("s_mov_b32 s39, 0")

            def lstats():
                if 'nolstats' in EXP:
                    return
                for j in range(4):
                    k.e("v_add_u32 v%d, s39, v%d" % (t + j, t + 26 + j))
                for j in range(4):
                    k.e("ds_read_b128 v[%d:%d], v%d" % (t + 4 + 4 * j, t + 7 + 4 * j, t + j))
                k.e("s_add_u32 s39, s39, %d\ns_cmp_eq_u32 s39, %d\ns_cselect_b32 s39, 0, s39" % (STAGE, NS * STAGE))
                for j in range(16):
                    if j % 4 == 0:
                        k.e("s_waitcnt lgkmcnt(%d)" % (3 - j // 4))
                    d = t + 4 + j
                    k.e("v_dot2c_f32_bf16 v%d, v%d, v%d" % (t + 20, d, vones))
                    k.e("v_dot2c_f32_bf16 v%d, v%d, v%d" % (t + 21, d, d))
        k.e("s_waitcnt vmcnt(%d)" % ((NS - 2) * nd))
        k.e("s_barrier")
        if LS:
            lstats()
        k.lab(lab("lloop"))
        k.e("s_waitcnt vmcnt(%d)" % ((NS - 3) * nd))
        k.e("s_barrier")
        dma()
        k.e("s_add_u32 s37, s37, 1")
        k.e("s_cmp_lt_u32 s37, %d" % nk)
        if LS:
            k.e("s_cbranch_scc0 %s" % lab("ldone"))
            lstats()
            k.e("s_branch %s" % lab("lloop"))
            k.lab(lab("ldone"))
            k.e("s_waitcnt vmcnt(0)")
            for v in (t + 20, t + 21):
                k.e("ds_swizzle_b32 v%d, v%d offset:0x041F" % (t + 22, v))
                k.e("s_waitcnt lgkmcnt(0)")
                k.e("v_add_f32 v%d, v%d, v%d" % (v, v, t + 22))
            k.e("s_barrier")
            k.e("v_lshrrev_b32 v%d, 1, v0" % (t + 22))
            k.e("s_lshl_b32 s25, s22, 5")
            k.e("v_add_u32 v%d, s25, v%d" % (t + 22, t + 22))
            k.e("v_lshlrev_b32 v%d, 3, v%d" % (t + 22, t + 22))
            k.e("ds_write_b64 v%d, v[%d:%d]" % (t + 22, t + 20, t + 21))
            k.e("s_waitcnt lgkmcnt(0)")
            k.e("s_barrier")
        else:
            k.e("s_cbranch_scc1 %s" % lab("lloop"))
            k.e("s_waitcnt vmcnt(0)")
        k.e("s_endpgm")
        k.lab(lab("comp"))
        k.lines.extend(partB)
        if 'prio' in EXP:
            k.e("s_setprio 2")
        if res:
            res_prefetch(k, ctx, res)
        stamp(k, 1)
        k.e("s_mov_b32 s38, 0")
        for x in setaddr_items():
            k.e(x)
        k.e("s_barrier")
        stamp(k, 2)
        for x in read_items(0, 0):
            k.e(x)
        k.lab(lab("loop"))
        k.e("s_waitcnt lgkmcnt(0)")
        mfmas(0, read_items(1, 1), stat_items(0))
        k.e("s_barrier")
        k.e("s_waitcnt lgkmcnt(0)")
        mfmas(1, setaddr_items() + read_items(0, 0), stat_items(1))
    elif pp:
        assert XORST and NWC == 8
        dma()
        k.lines.extend(partB)
        zero_acc()
        stamp(k, 1)
        k.e("s_waitcnt vmcnt(0)")
        k.e("s_barrier")
        k.e("s_cmp_ge_u32 s19, 4")
        k.e("s_cbranch_scc1 %s" % lab("ypath"))

        NSPLIT = int(os.environ.get('NSPLIT', '8'))

        def loadphase(dm, rf=False):
            if not rf:
                for x in dm:
                    k.e(x)
            for x in read_items(0, 0) + read_items(1, 1):
                k.e(x)
            if rf:
                for x in dm:
                    k.e(x)
            for x in setaddr_items():
                k.e(x)
            k.e("s_waitcnt lgkmcnt(0)")
        RFX = 'rfx' in EXP; RFY = 'rfy' in EXP

        def compphase(dm):
            mfmas(0, dm)
            mfmas(1)
        di = dma_items()
        ny = len(di) - NSPLIT
        loadphase(di[:NSPLIT], RFX)
        k.e("s_barrier")
        k.lab(lab("xloop"))
        compphase(di[NSPLIT:])
        k.e("s_waitcnt vmcnt(0)")
        k.e("s_barrier")
        k.e("s_add_u32 s37, s37, 1")
        k.e("s_cmp_lt_u32 s37, %d" % nk)
        k.e("s_cbranch_scc0 %s" % lab("xlast"))
        loadphase(di[:NSPLIT], RFX)
        k.e("s_barrier")
        k.e("s_branch %s" % lab("xloop"))
        k.lab(lab("xlast"))
        ws_stats()
        k.e("v_and_b32 v%d, 15, v0" % (vfr + 36))
        k.e("s_lshl_b32 s25, s23, 6")
        k.e("v_add_u32 v%d, s25, v%d" % (vfr + 36, vfr + 36))
        k.e("v_lshlrev_b32 v%d, 3, v%d" % (vfr + 36, vfr + 36))
        k.e("v_add_u32 v%d, %d, v%d" % (vfr + 36, NS * STAGE, vfr + 36))
        for rb in range(RB):
            k.e("v_mov_b32 v%d, v%d" % (vfr + 40, vsum + rb))
            k.e("v_mov_b32 v%d, v%d" % (vfr + 41, vsq + rb))
            k.e("ds_write_b64 v%d, v[%d:%d] offset:%d" % (vfr + 36, vfr + 40, vfr + 41, rb * 128))
        k.e("s_waitcnt lgkmcnt(0)")
        k.e("s_barrier")
        k.e("s_branch %s" % lab("done"))
        k.lab(lab("ypath"))
        for x in di[:ny]:
            k.e(x)
        k.e("s_barrier")
        k.lab(lab("loop"))
        loadphase(di[ny:], RFY)
        k.e("s_waitcnt vmcnt(0)")
        k.e("s_barrier")
        compphase(di[:ny])
        k.e("s_barrier")
    else:
        dma()
        if ln == 'ws':
            ws_stats()
            zero_acc()
        stamp(k, 1)
        k.e("s_mov_b32 s38, 0")
        if not XORST:
            for x in setaddr_items():
                k.e(x)
        k.lab(lab("loop"))
        k.e("s_waitcnt vmcnt(0)")
        k.e("s_barrier")
        for x in read_items(0, 0):
            k.e(x)
        k.e("s_waitcnt lgkmcnt(0)")
        mfmas(0, read_items(1, 1) + dma_items(), stat_items(0))
        k.e("s_waitcnt lgkmcnt(0)")
        mfmas(1, setaddr_items(), stat_items(1))
    k.e("s_add_u32 s37, s37, 1")
    k.e("s_cmp_lt_u32 s37, %d" % nk)
    k.e("s_cbranch_scc1 %s" % lab("loop"))
    k.lab(lab("done"))
    k.e("s_waitcnt vmcnt(0) lgkmcnt(0)")
    if not NL:
        k.e("s_barrier")
    stamp(k, 3)
    k.e("s_nop 7")
    if ln == 'mfma':
        k.e("s_barrier")
        k.e("s_barrier")
        k.e("v_and_b32 v2, 15, v0")
        k.e("s_mul_i32 s25, s23, %d" % (RB * 16))
        k.e("v_add_u32 v2, s25, v2")
        k.e("v_lshlrev_b32 v2, 3, v2")
        for rb in range(RB):
            k.e("ds_read_b32 v%d, v2 offset:%d" % (vsum + rb, rb * 128))
            k.e("ds_read_b32 v%d, v2 offset:%d" % (vsq + rb, rb * 128 + 4))
        k.e("s_waitcnt lgkmcnt(0)")
        ln_finish(k, ctx, reduce=False)
    epi(k, ctx)
    stamp_store(k, 4, {'g1': 0, 'g2': 1, 'g3': 2, 'g4': 3}[name[:2]])
    k.lab(lab("end"))
    k.e("s_endpgm")
    return k


def row_base(k, c, ldc, va=1, vb=2):
    k.e("s_mul_i32 s25, s20, %d" % c["BM"])
    k.e("s_mul_i32 s26, s23, %d" % (c["RB"] * 16))
    k.e("s_add_u32 s25, s25, s26")
    k.e("v_and_b32 v%d, 15, v0" % va)
    k.e("v_add_u32 v%d, s25, v%d" % (va, va))
    k.e("s_mov_b32 s26, %d" % (ldc * 2))
    k.e("v_mul_lo_u32 v%d, v%d, s26" % (va, va))
    k.e("v_lshrrev_b32 v%d, 4, v0" % vb)
    k.e("v_lshlrev_b32 v%d, 3, v%d" % (vb, vb))
    k.e("v_add_u32 v%d, v%d, v%d" % (va, va, vb))


def col_off(k, c, cb, sreg, cmul):
    si, pmul, padd = c["colblocks"][cb]
    sb = sum(s[3] for s in c["subs"][:si])
    k.e("s_mul_i32 s%d, s21, %d" % (sreg, cmul * 2))
    k.e("s_mul_i32 s26, s24, %d" % (pmul * 32))
    k.e("s_add_u32 s%d, s%d, s26" % (sreg, sreg))
    k.e("s_add_u32 s%d, s%d, %d" % (sreg, sreg, (sb + padd * 16) * 2))


def res_prefetch(k, c, res):
    RB, CB = c["RB"], c["CB"]
    srd(k, 48, res[0], res[1], S * D * 2)
    t = c["vfr"]
    row_base(k, c, D, t, t + 1)
    tot = sum(s[3] for s in c["subs"])
    for cb in range(CB):
        col_off(k, c, cb, 25, tot)
        for rb in range(RB):
            k.e("v_add_u32 v%d, s25, v%d" % (t + 2, t))
            if rb:
                k.e("v_add_u32 v%d, %d, v%d" % (t + 2, rb * 16 * D * 2, t + 2))
            r = c["vres"] + 2 * (rb * CB + cb)
            k.e("buffer_load_dwordx2 v[%d:%d], v%d, s[48:51], 0 offen" % (r, r + 1, t + 2))


def ln_finish(k, c, reduce=True):
    RB = c["RB"]
    invK = {1024: "0x3a800000"}[c["Kdim"]]
    T = c.get("vtmp", 2)
    vs = [c["vsum"] + rb for rb in range(RB)] + [c["vsq"] + rb for rb in range(RB)]
    if reduce:
        for j, v in enumerate(vs):
            k.e("ds_swizzle_b32 v%d, v%d offset:0x401F" % (T + j, v))
        k.e("s_waitcnt lgkmcnt(0)")
        for j, v in enumerate(vs):
            k.e("v_add_f32 v%d, v%d, v%d" % (v, v, T + j))
        for j, v in enumerate(vs):
            k.e("v_mov_b32 v%d, v%d" % (T + j, v))
        k.e("s_nop 1")
        for j, v in enumerate(vs):
            k.e("v_permlane32_swap_b32 v%d, v%d" % (v, T + j))
        k.e("s_nop 1")
        for j, v in enumerate(vs):
            k.e("v_add_f32 v%d, v%d, v%d" % (v, v, T + j))
    R = range(RB)
    m = lambda rb: c["vsum"] + rb
    q = lambda rb: c["vsq"] + rb
    for rb in R:
        k.e("v_mul_f32 v%d, %s, v%d" % (m(rb), invK, m(rb)))
        k.e("v_mul_f32 v%d, %s, v%d" % (q(rb), invK, q(rb)))
    for rb in R:
        k.e("v_fma_f32 v%d, -v%d, v%d, v%d" % (q(rb), m(rb), m(rb), q(rb)))
    for rb in R:
        k.e("v_cvt_pk_bf16_f32 v%d, v%d, v%d" % (T + rb, m(rb), q(rb)))
    for rb in R:
        k.e("v_lshlrev_b32 v%d, 16, v%d" % (m(rb), T + rb))
        k.e("v_and_b32 v%d, 0xffff0000, v%d" % (q(rb), T + rb))
    for rb in R:
        k.e("v_add_f32 v%d, 0x3727c5ac, v%d" % (q(rb), q(rb)))
    for rb in R:
        k.e("v_cvt_pk_bf16_f32 v%d, v%d, v%d" % (T + rb, q(rb), q(rb)))
    for rb in R:
        k.e("v_lshlrev_b32 v%d, 16, v%d" % (q(rb), T + rb))
    for rb in R:
        k.e("v_sqrt_f32 v%d, v%d" % (q(rb), q(rb)))
    k.e("s_nop 0")
    for rb in R:
        k.e("v_cvt_pk_bf16_f32 v%d, v%d, v%d" % (T + rb, q(rb), q(rb)))
    for rb in R:
        k.e("v_lshlrev_b32 v%d, 16, v%d" % (q(rb), T + rb))
    for rb in R:
        k.e("v_rcp_f32 v%d, v%d" % (q(rb), q(rb)))
    k.e("s_nop 0")


def ln_apply(k, c, a, rb, cs):
    m = c["vsum"] + rb; q = c["vsq"] + rb
    for r in range(4):
        k.e("v_fma_f32 v%d, -v%d, v%d, v%d" % (a + r, m, cs + r, a + r))
    for r in range(4):
        k.e("v_mul_f32 v%d, v%d, v%d" % (a + r, a + r, q))


class LdsStore:
    def __init__(self, k, c, groups, ldc, srd_reg, NWC, vbase):
        self.k = k; self.c = c; self.groups = groups; self.ldc = ldc; self.srd = srd_reg
        self.off = []; o = 0
        for g in groups:
            self.off.append(o); o += 64 * len(g) * 32
        self.wbytes = o
        self.aw = {}
        v = vbase
        k.e("s_mul_i32 s27, s19, %d" % self.wbytes)
        for gi, g in enumerate(groups):
            CH = 2 * len(g); pitch = CH * 16
            for j, cb in enumerate(g):
                k.e("v_and_b32 v%d, 15, v0" % v)
                k.e("v_and_b32 v%d, %d, v0" % (v + 1, CH - 1))
                k.e("v_bfe_u32 v%d, v0, 5, 1" % (v + 2))
                k.e("v_or_b32 v%d, %d, v%d" % (v + 2, 2 * j, v + 2))
                k.e("v_xor_b32 v%d, v%d, v%d" % (v + 1, v + 1, v + 2))
                k.e("v_lshlrev_b32 v%d, 4, v%d" % (v + 1, v + 1))
                k.e("v_mul_u32_u24 v%d, %d, v%d" % (v, pitch, v))
                k.e("v_bfe_u32 v%d, v0, 4, 1" % (v + 2))
                k.e("v_lshlrev_b32 v%d, 3, v%d" % (v + 2, v + 2))
                k.e("v_add3_u32 v%d, v%d, v%d, v%d" % (v, v, v + 1, v + 2))
                k.e("v_add_u32 v%d, s27, v%d" % (v, v))
                self.aw[cb] = (v, gi, pitch); v += 1
        self.vfree = v + 2

    def put(self, rb, cb, a):
        v, gi, pitch = self.aw[cb]
        self.k.e("ds_write_b64 v%d, v[%d:%d] offset:%d" % (v, a, a + 1, self.off[gi] + rb * 16 * pitch))

    def flush(self, colbase_fn, vd):
        k = self.k; c = self.c
        k.e("s_waitcnt lgkmcnt(0)")
        v = self.vfree
        for gi, g in enumerate(self.groups):
            CH = 2 * len(g); pitch = CH * 16; rp = 64 // CH
            lg = CH.bit_length() - 1
            k.e("v_lshrrev_b32 v%d, %d, v0" % (v, lg))
            k.e("v_and_b32 v%d, %d, v0" % (v + 1, CH - 1))
            k.e("v_and_b32 v%d, %d, v%d" % (v + 2, CH - 1, v))
            k.e("v_xor_b32 v%d, v%d, v%d" % (v + 2, v + 2, v + 1))
            k.e("v_lshlrev_b32 v%d, 4, v%d" % (v + 2, v + 2))
            k.e("v_mul_u32_u24 v%d, %d, v%d" % (v + 3, pitch, v))
            k.e("v_add3_u32 v%d, v%d, v%d, s27" % (v + 2, v + 2, v + 3))
            k.e("s_mul_i32 s25, s20, %d" % c["BM"])
            k.e("s_mul_i32 s26, s23, %d" % (c["RB"] * 16))
            k.e("s_add_u32 s25, s25, s26")
            k.e("v_add_u32 v%d, s25, v%d" % (v, v))
            k.e("s_mov_b32 s26, %d" % (self.ldc * 2))
            k.e("v_mul_lo_u32 v%d, v%d, s26" % (v, v))
            k.e("v_lshlrev_b32 v%d, 4, v%d" % (v + 1, v + 1))
            colbase_fn(k, gi, 25)
            k.e("v_add3_u32 v%d, v%d, v%d, s25" % (v, v, v + 1))
            nj = 64 // rp
            for j in range(nj):
                k.e("ds_read_b128 v[%d:%d], v%d offset:%d" % (vd + 4 * j, vd + 4 * j + 3, v + 2, self.off[gi] + j * rp * pitch))
            for j in range(nj):
                k.e("s_waitcnt lgkmcnt(%d)" % (nj - 1 - j))
                if j:
                    k.e("v_add_u32 v%d, %d, v%d" % (v, rp * self.ldc * 2, v))
                k.e("buffer_store_dwordx4 v[%d:%d], v%d, s[%d:%d], 0 offen%s" % (vd + 4 * j, vd + 4 * j + 3, v, self.srd, self.srd + 3, STFLAG))
            k.e("s_nop 1")


def epi_store_factory(ldc, c_slot, c_off, c_bytes, part=False, groups=None):
    def epi(k, c):
        RB, CB, acc = c["RB"], c["CB"], c["acc"]
        srd(k, 40, c_slot, c_off, c_bytes)
        PS = c["vfr"]
        if groups:
            tot = sum(s[3] for s in c["subs"])
            k.e("s_barrier")
            ls = LdsStore(k, c, groups, ldc, 40, 4, c["vfr"])
            for cb in range(CB):
                for rb in range(RB):
                    a = acc(rb, cb)
                    if c["ln"]:
                        ln_apply(k, c, a, rb, c["vcs"] + 4 * cb)
                    k.e("v_cvt_pk_bf16_f32 v%d, v%d, v%d" % (a, a, a + 1))
                    k.e("v_cvt_pk_bf16_f32 v%d, v%d, v%d" % (a + 1, a + 2, a + 3))
                    ls.put(rb, cb, a)
            ls.flush(lambda k, gi, sreg: col_off(k, c, groups[gi][0], sreg, tot), c["vfr"] + 16)
            return
        if part:
            for rb in range(RB):
                k.e("v_mov_b32 v%d, 0" % (PS + 2 * rb))
                k.e("v_mov_b32 v%d, 0" % (PS + 1 + 2 * rb))
        row_base(k, c, ldc)
        tot = sum(s[3] for s in c["subs"])
        for cb in range(CB):
            col_off(k, c, cb, 25, tot)
            k.e("v_add_u32 v3, s25, v1")
            for rb in range(RB):
                a = acc(rb, cb)
                if c["ln"]:
                    ln_apply(k, c, a, rb, c["vcs"] + 4 * cb)
                k.e("v_cvt_pk_bf16_f32 v%d, v%d, v%d" % (a, a, a + 1))
                k.e("v_cvt_pk_bf16_f32 v%d, v%d, v%d" % (a + 1, a + 2, a + 3))
                if c["vres"] is not None:
                    r = c["vres"] + 2 * (rb * CB + cb)
                    for j in range(2):
                        k.e("v_lshlrev_b32 v6, 16, v%d" % (a + j))
                        k.e("v_and_b32 v7, 0xffff0000, v%d" % (a + j))
                        k.e("v_lshlrev_b32 v8, 16, v%d" % (r + j))
                        k.e("v_and_b32 v9, 0xffff0000, v%d" % (r + j))
                        k.e("v_add_f32 v6, v6, v8")
                        k.e("v_add_f32 v7, v7, v9")
                        k.e("v_cvt_pk_bf16_f32 v%d, v6, v7" % (a + j))
                        if part:
                            k.e("v_lshlrev_b32 v6, 16, v%d" % (a + j))
                            k.e("v_and_b32 v7, 0xffff0000, v%d" % (a + j))
                            k.e("v_add_f32 v%d, v%d, v6" % (PS + 2 * rb, PS + 2 * rb))
                            k.e("v_fmac_f32 v%d, v6, v6" % (PS + 1 + 2 * rb))
                            k.e("v_add_f32 v%d, v%d, v7" % (PS + 2 * rb, PS + 2 * rb))
                            k.e("v_fmac_f32 v%d, v7, v7" % (PS + 1 + 2 * rb))
                k.e("v_add_u32 v4, %d, v3" % (rb * 16 * ldc * 2))
                k.e("buffer_store_dwordx2 v[%d:%d], v4, s[40:43], 0 offen" % (a, a + 1))
        if part:
            srd(k, 44, KA_WS, WS_PART, S * 256)
            for v in range(PS, PS + 2 * RB):
                k.e("ds_swizzle_b32 v2, v%d offset:0x401F" % v)
                k.e("s_waitcnt lgkmcnt(0)")
                k.e("v_add_f32 v%d, v%d, v2" % (v, v))
                k.e("v_mov_b32 v2, v%d" % v)
                k.e("s_nop 1")
                k.e("v_permlane32_swap_b32 v%d, v2" % v)
                k.e("v_add_f32 v%d, v%d, v2" % (v, v))
            k.e("s_mul_i32 s25, s20, %d" % c["BM"])
            k.e("s_mul_i32 s26, s23, %d" % (RB * 16))
            k.e("s_add_u32 s25, s25, s26")
            k.e("v_add_u32 v1, s25, v0")
            k.e("v_lshlrev_b32 v1, 4, v1")
            k.e("s_lshl_b32 s25, s21, 15")
            k.e("s_lshl_b32 s26, s24, 3")
            k.e("s_add_u32 s25, s25, s26")
            k.e("v_add_u32 v1, s25, v1")
            k.e("v_cmp_gt_u32 vcc, 16, v0")
            k.e("s_and_saveexec_b64 s[52:53], vcc")
            for rb in range(RB):
                k.e("v_add_u32 v2, %d, v1" % (rb * 256))
                k.e("buffer_store_dwordx2 v[%d:%d], v2, s[44:47], 0 offen" % (PS + 2 * rb, PS + 1 + 2 * rb))
            k.e("s_mov_b64 exec, s[52:53]")
    return epi


def epi_swiglu(k, c):
    RB, CB, acc, colblocks, subs = c["RB"], c["CB"], c["acc"], c["colblocks"], c["subs"]
    ldc = F
    srd(k, 40, KA_WS, WS_ACT, S * F * 2)
    srd(k, 44, KA_WS, WS_CS, 2 * F * 4)
    half = CB // 2
    width = subs[0][3]
    vc = c["vfr"]
    assert 8 * half <= 32
    k.e("v_lshrrev_b32 v2, 4, v0")
    k.e("v_lshlrev_b32 v2, 4, v2")
    for cb in range(half):
        si, pmul, padd = colblocks[cb]
        assert si == 0 and colblocks[cb + half] == (1, pmul, padd)
        k.e("s_mul_i32 s25, s21, %d" % (width * 4))
        k.e("s_mul_i32 s26, s24, %d" % (pmul * 64))
        k.e("s_add_u32 s25, s25, s26")
        k.e("s_add_u32 s25, s25, %d" % (padd * 64))
        k.e("v_add_u32 v3, s25, v2")
        k.e("buffer_load_dwordx4 v[%d:%d], v3, s[44:47], 0 offen" % (vc + 8 * cb, vc + 8 * cb + 3))
        k.e("v_add_u32 v3, %d, v3" % (F * 4))
        k.e("buffer_load_dwordx4 v[%d:%d], v3, s[44:47], 0 offen" % (vc + 8 * cb + 4, vc + 8 * cb + 7))
    c["ws_stats"]()
    stamp(k, 2)
    ls = LdsStore(k, c, [list(range(half))], ldc, 40, 8, c["vfr"] + 40)
    for rb in range(RB):
        m = c["vsum"] + rb; q = c["vsq"] + rb
        k.e("v_sub_f32 v8, 0, v%d" % m)
        k.e("v_sub_f32 v9, 0, v%d" % m)
        k.e("v_mul_f32 v10, 0xbfb8aa3b, v%d" % q)
        k.e("v_mul_f32 v11, 0xbfb8aa3b, v%d" % q)
        k.e("v_mul_f32 v12, v%d, v%d" % (q, q))
        k.e("v_mul_f32 v13, v%d, v%d" % (q, q))
        for cb in range(half):
            g = acc(rb, cb); u = acc(rb, cb + half)
            cg = vc + 8 * cb; cu = cg + 4
            for r in (0, 2):
                k.e("v_pk_fma_f32 v[%d:%d], v[8:9], v[%d:%d], v[%d:%d]" % (g + r, g + r + 1, cg + r, cg + r + 1, g + r, g + r + 1))
            for r in (0, 2):
                k.e("v_pk_mul_f32 v[%d:%d], v[%d:%d], v[10:11]" % (4 + r, 5 + r, g + r, g + r + 1))
            for r in range(4):
                k.e("v_exp_f32 v%d, v%d" % (4 + r, 4 + r))
            for r in (0, 2):
                k.e("v_pk_fma_f32 v[%d:%d], v[8:9], v[%d:%d], v[%d:%d]" % (u + r, u + r + 1, cu + r, cu + r + 1, u + r, u + r + 1))
            for r in (0, 2):
                k.e("v_pk_add_f32 v[%d:%d], v[%d:%d], 1.0 op_sel_hi:[1,0]" % (4 + r, 5 + r, 4 + r, 5 + r))
            for r in range(4):
                k.e("v_rcp_f32 v%d, v%d" % (4 + r, 4 + r))
            for r in (0, 2):
                k.e("v_pk_mul_f32 v[%d:%d], v[%d:%d], v[%d:%d]" % (g + r, g + r + 1, g + r, g + r + 1, u + r, u + r + 1))
            for r in (0, 2):
                k.e("v_pk_mul_f32 v[%d:%d], v[%d:%d], v[12:13]" % (4 + r, 5 + r, 4 + r, 5 + r))
            for r in (0, 2):
                k.e("v_pk_mul_f32 v[%d:%d], v[%d:%d], v[%d:%d]" % (g + r, g + r + 1, g + r, g + r + 1, 4 + r, 5 + r))
            k.e("v_cvt_pk_bf16_f32 v%d, v%d, v%d" % (g, g, g + 1))
            k.e("v_cvt_pk_bf16_f32 v%d, v%d, v%d" % (g + 1, g + 2, g + 3))
            ls.put(rb, cb, g)

    def colbase(k, gi, sreg):
        si, pmul, padd = colblocks[0]
        k.e("s_mul_i32 s%d, s21, %d" % (sreg, width * 2))
        k.e("s_mul_i32 s26, s24, %d" % (pmul * 32))
        k.e("s_add_u32 s%d, s%d, s26" % (sreg, sreg))
    ls.flush(colbase, c["vfr"] + 56)


def gen_attn(name):
    MIMIC = 'mimic' in EXP
    NATT = 512
    NCS = 2 * F // 64
    NPF = 32
    NH = NCS + NPF
    nwg = NATT + NH
    KV_ROWS = 384
    K_LDS = 0
    V_LDS = KV_ROWS * 64
    k = Kern(name, (nwg, 1, 1), (256, 1, 1), 2 * KV_ROWS * 64, 0)
    lab = lambda s: "%s_%s" % (name, s)
    k.e("s_cmp_ge_u32 s2, %d" % nwg)
    k.e("s_cbranch_scc1 %s" % lab("end"))
    load_ptrs(k)
    if 'hlast' in EXP:
        k.e("s_sub_u32 s2, s2, %d" % NATT)
        k.e("s_cmp_lt_u32 s2, %d" % NH)
        k.e("s_cbranch_scc1 %s" % lab("cs"))
        k.e("s_add_u32 s2, s2, %d" % NATT)
    else:
        k.e("s_cmp_lt_u32 s2, %d" % NH)
        k.e("s_cbranch_scc1 %s" % lab("cs"))
        k.e("s_sub_u32 s2, s2, %d" % NH)
    stamp(k, 0)
    srd(k, 4, KA_WS, WS_QKV, S * 3 * D * 2)
    srd(k, 8, KA_WS, WS_O, S * D * 2)
    k.e("s_and_b32 s20, s2, 31")
    k.e("s_lshr_b32 s21, s2, 5")
    k.e("v_lshrrev_b32 v1, 6, v0")
    k.e("s_nop 0")
    k.e("v_readfirstlane_b32 s22, v1")
    k.e("v_and_b32 v0, 63, v0")
    k.e("""
    v_lshrrev_b32 v1, 2, v0
    v_and_b32 v2, 3, v0
    v_bfe_u32 v3, v0, 4, 2
    v_xor_b32 v2, v2, v3
    v_lshlrev_b32 v2, 4, v2
    s_lshl_b32 s23, s21, 7
    s_mul_i32 s24, s22, 96
    s_add_u32 s23, s23, s24
    s_sub_u32 s23, s23, 256
    v_add_u32 v1, s23, v1
    s_mov_b32 s24, %d
    v_mul_lo_u32 v1, v1, s24
    v_add_u32 v1, v1, v2
    s_lshl_b32 s24, s20, 6
    v_add_u32 v1, s24, v1
    s_mul_i32 s25, s22, 6144
    """ % (3 * D * 2))
    for mat, ldsb in ((1, K_LDS), (2, V_LDS)):
        for t in range(6):
            k.e("v_add_u32 v2, %d, v1" % (t * 16 * 3 * D * 2 + mat * D * 2))
            k.e("s_add_u32 m0, s25, %d" % (ldsb + t * 1024))
            k.e("s_nop 0")
            k.e("buffer_load_dwordx4 v2, s[4:7], 0 offen lds")
    k.e("""
    s_lshl_b32 s23, s21, 7
    s_lshl_b32 s24, s22, 5
    s_add_u32 s23, s23, s24
    v_and_b32 v1, 31, v0
    v_add_u32 v1, s23, v1
    s_mov_b32 s24, %d
    v_mul_lo_u32 v1, v1, s24
    v_lshrrev_b32 v2, 5, v0
    v_lshlrev_b32 v2, 4, v2
    s_lshl_b32 s24, s20, 6
    v_add3_u32 v1, v1, v2, s24
    buffer_load_dwordx4 v[4:7], v1, s[4:7], 0 offen
    buffer_load_dwordx4 v[8:11], v1, s[4:7], 0 offen offset:32
    v_and_b32 v1, 31, v0
    v_lshlrev_b32 v12, 6, v1
    v_bfe_u32 v2, v0, 2, 2
    v_lshrrev_b32 v3, 5, v0
    v_xor_b32 v13, v3, v2
    v_lshlrev_b32 v13, 4, v13
    v_add_u32 v13, v12, v13
    v_or_b32 v3, 2, v3
    v_xor_b32 v14, v3, v2
    v_lshlrev_b32 v14, 4, v14
    v_add_u32 v14, v12, v14
    s_lshl_b32 s24, s22, 11
    v_add_u32 v13, s24, v13
    v_add_u32 v14, s24, v14
    v_bfe_u32 v1, v0, 5, 1
    v_lshlrev_b32 v1, 2, v1
    v_bfe_u32 v2, v0, 2, 2
    v_add_u32 v1, v1, v2
    v_bfe_u32 v2, v0, 4, 1
    v_lshlrev_b32 v2, 1, v2
    v_bfe_u32 v3, v0, 1, 1
    v_or_b32 v2, v2, v3
    v_and_b32 v3, 1, v0
    v_lshlrev_b32 v3, 3, v3
    """ % (3 * D * 2))
    for j in range(4):
        k.e("v_add_u32 v19, %d, v1" % (8 * j))
        k.e("v_bfe_u32 v20, v19, 2, 2")
        k.e("v_xor_b32 v20, v20, v2")
        k.e("v_lshlrev_b32 v20, 4, v20")
        k.e("v_lshlrev_b32 v19, 6, v19")
        k.e("v_add3_u32 v%d, v19, v20, v3" % (15 + j))
        k.e("v_add_u32 v%d, s24, v%d" % (15 + j, 15 + j))
    k.e("s_waitcnt vmcnt(0)")
    k.e("s_barrier")
    stamp(k, 1)
    SB = 48
    OA = 128
    k.e("s_mov_b32 s26, 0x3e8293ee")
    k.e("v_and_b32 v40, 31, v0")
    k.e("v_lshrrev_b32 v2, 5, v0")
    k.e("v_lshlrev_b32 v2, 2, v2")
    k.e("v_sub_u32 v40, v40, v2")
    k.e("v_mov_b32 v41, 0xce6e6b28")
    k.e("s_lshl_b32 s23, s21, 2")
    k.e("s_add_u32 s23, s23, s22")
    k.e("v_mov_b32 v38, s26")
    k.e("v_mov_b32 v39, s26")
    for ci, blocks in enumerate(([0, 1, 2, 3, 4], [5, 6, 7, 8])):
        nb = len(blocks)
        k.e("ds_read_b128 v[20:23], v13 offset:%d" % (K_LDS + blocks[0] * 2048))
        k.e("ds_read_b128 v[24:27], v14 offset:%d" % (K_LDS + blocks[0] * 2048))
        for i, b_ in enumerate(blocks):
            f = 20 + 8 * (i & 1); fn = 20 + 8 * ((i + 1) & 1)
            if i < nb - 1:
                k.e("ds_read_b128 v[%d:%d], v13 offset:%d" % (fn, fn + 3, K_LDS + (b_ + 1) * 2048))
                k.e("ds_read_b128 v[%d:%d], v14 offset:%d" % (fn + 4, fn + 7, K_LDS + (b_ + 1) * 2048))
                k.e("s_waitcnt lgkmcnt(2)")
            else:
                k.e("s_waitcnt lgkmcnt(0)")
            s0 = SB + i * 16
            k.e("v_mfma_f32_32x32x16_bf16 v[%d:%d], v[%d:%d], v[4:7], 0" % (s0, s0 + 15, f, f + 3))
            k.e("v_mfma_f32_32x32x16_bf16 v[%d:%d], v[%d:%d], v[8:11], v[%d:%d]" % (s0, s0 + 15, f + 4, f + 7, s0, s0 + 15))
        k.e("s_nop 15")
        if ci == 0:
            for r in range(16):
                c = (r & 3) + 8 * (r >> 2)
                k.e("v_cmp_ge_i32 vcc, v40, %d" % c)
                k.e("s_nop 1")
                k.e("v_cndmask_b32 v%d, v%d, v41, vcc" % (SB + r, SB + r))
        else:
            for r in range(16):
                c = (r & 3) + 8 * (r >> 2)
                k.e("v_cmp_ge_i32 vcc, v40, %d" % c)
                k.e("s_nop 1")
                k.e("v_cndmask_b32 v%d, v41, v%d, vcc" % (SB + 48 + r, SB + 48 + r))
        k.e("s_cmp_ge_u32 s23, 8")
        k.e("s_cbranch_scc1 %s" % lab("nomask%d" % ci))
        for i, b_ in enumerate(blocks):
            if b_ == 8:
                continue
            k.e("s_cmp_lt_u32 s23, %d" % (8 - b_))
            k.e("s_cbranch_scc0 %s" % lab("nm%d" % b_))
            for r in range(16):
                k.e("v_mov_b32 v%d, v41" % (SB + i * 16 + r))
            k.lab(lab("nm%d" % b_))
        k.lab(lab("nomask%d" % ci))
        n = nb * 16
        k.e("v_max_f32 v1, v%d, v%d" % (SB, SB + 1))
        for r in range(2, n, 2):
            k.e("v_max3_f32 v1, v1, v%d, v%d" % (SB + r, SB + r + 1))
        k.e("v_mov_b32 v2, v1")
        k.e("s_nop 1")
        k.e("v_permlane32_swap_b32 v1, v2")
        k.e("v_max_f32 v1, v1, v2")
        k.e("v_mul_f32 v1, s26, v1")
        if ci == 0:
            k.e("v_mov_b32 v42, v1")
            k.e("v_mov_b32 v44, 0")
            k.e("v_mov_b32 v45, 0")
        else:
            k.e("v_max_f32 v1, v1, v42")
            k.e("v_sub_f32 v43, v42, v1")
            k.e("v_exp_f32 v43, v43")
            k.e("v_mov_b32 v42, v1")
            k.e("s_nop 0")
            k.e("v_mul_f32 v44, v44, v43")
            k.e("v_mul_f32 v45, v45, v43")
            for r in range(16):
                k.e("v_mul_f32 v%d, v%d, v43" % (OA + r, OA + r))
        k.e("v_sub_f32 v36, 0, v42")
        k.e("v_sub_f32 v37, 0, v42")
        for i in range(nb):
            for r in range(0, 16, 2):
                a_ = SB + i * 16 + r
                k.e("v_pk_fma_f32 v[%d:%d], v[%d:%d], v[38:39], v[36:37]" % (a_, a_ + 1, a_, a_ + 1))
            for r in range(16):
                a_ = SB + i * 16 + r
                k.e("v_exp_f32 v%d, v%d" % (a_, a_))
            k.e("s_nop 0")
            for j in range(8):
                a_ = SB + i * 16 + 2 * j
                k.e("v_pk_add_f32 v[44:45], v[44:45], v[%d:%d]" % (a_, a_ + 1))
                k.e("v_cvt_pk_bf16_f32 v%d, v%d, v%d" % (SB + i * 16 + j, a_, a_ + 1))
        for j in range(4):
            k.e("ds_read_b64_tr_b16 v[%d:%d], v%d offset:%d" % (20 + 2 * j, 21 + 2 * j, 15 + j, V_LDS + blocks[0] * 2048))
        for i, b_ in enumerate(blocks):
            f = 20 + 8 * (i & 1); fn = 20 + 8 * ((i + 1) & 1)
            if i < nb - 1:
                for j in range(4):
                    k.e("ds_read_b64_tr_b16 v[%d:%d], v%d offset:%d" % (fn + 2 * j, fn + 2 * j + 1, 15 + j, V_LDS + (b_ + 1) * 2048))
                k.e("s_waitcnt lgkmcnt(4)")
            else:
                k.e("s_waitcnt lgkmcnt(0)")
            p = SB + i * 16
            if b_ == 0:
                k.e("v_mfma_f32_32x32x16_bf16 v[%d:%d], v[%d:%d], v[%d:%d], 0" % (OA, OA + 15, f, f + 3, p, p + 3))
            else:
                k.e("v_mfma_f32_32x32x16_bf16 v[%d:%d], v[%d:%d], v[%d:%d], v[%d:%d]" % (OA, OA + 15, f, f + 3, p, p + 3, OA, OA + 15))
            k.e("v_mfma_f32_32x32x16_bf16 v[%d:%d], v[%d:%d], v[%d:%d], v[%d:%d]" % (OA, OA + 15, f + 4, f + 7, p + 4, p + 7, OA, OA + 15))
        k.e("s_nop 15")
        k.e("s_nop 3")
    k.e("v_add_f32 v2, v44, v45")
    k.e("v_mov_b32 v3, v2")
    k.e("s_nop 1")
    k.e("v_permlane32_swap_b32 v2, v3")
    k.e("v_add_f32 v2, v2, v3")
    k.e("v_rcp_f32 v2, v2")
    k.e("s_nop 0")
    k.e("""
    s_lshl_b32 s23, s21, 7
    s_lshl_b32 s24, s22, 5
    s_add_u32 s23, s23, s24
    v_and_b32 v1, 31, v0
    v_add_u32 v1, s23, v1
    v_lshlrev_b32 v1, 11, v1
    v_lshrrev_b32 v3, 5, v0
    v_lshlrev_b32 v3, 3, v3
    s_lshl_b32 s24, s20, 6
    v_add3_u32 v1, v1, v3, s24
    s_nop 7
    """)
    if not MIMIC:
        for r in range(16):
            k.e("v_mul_f32 v%d, v%d, v2" % (OA + r, OA + r))
    for j in range(4):
        k.e("v_cvt_pk_bf16_f32 v%d, v%d, v%d" % (144 + 2 * j, OA + 4 * j, OA + 1 + 4 * j))
        k.e("v_cvt_pk_bf16_f32 v%d, v%d, v%d" % (145 + 2 * j, OA + 2 + 4 * j, OA + 3 + 4 * j))
        k.e("buffer_store_dwordx2 v[%d:%d], v1, s[8:11], 0 offen offset:%d" % (144 + 2 * j, 145 + 2 * j, 16 * j))
    stamp_store(k, 4, 4)
    k.e("s_endpgm")
    k.lab(lab("cs"))
    k.e("s_cmp_ge_u32 s2, %d" % NCS)
    k.e("s_cbranch_scc1 %s" % lab("pf"))
    k.e("s_mov_b32 s20, s2")
    k.e("s_cmp_lt_u32 s20, 56")
    k.e("s_cselect_b32 s4, s%d, s%d" % (PTR0 + 2 * KA_W1, PTR0 + 2 * KA_W3))
    k.e("s_cselect_b32 s5, s%d, s%d" % (PTR0 + 2 * KA_W1 + 1, PTR0 + 2 * KA_W3 + 1))
    k.e("s_cselect_b32 s21, 0, 56")
    k.e("s_and_b32 s5, s5, 0xffff")
    k.e("s_mov_b32 s6, %d" % (D * F * 2))
    k.e("s_mov_b32 s7, 0x00020000")
    k.e("s_sub_u32 s21, s20, s21")
    srd(k, 8, KA_WS, WS_CS, 2 * F * 4)
    k.e("""
    v_lshrrev_b32 v1, 3, v0
    v_and_b32 v2, 7, v0
    s_mov_b32 s22, %d
    v_mul_lo_u32 v1, v1, s22
    v_lshlrev_b32 v2, 4, v2
    s_lshl_b32 s22, s21, 7
    v_add3_u32 v1, v1, v2, s22
    """ % (F * 2))
    for r in range(8):
        k.e("v_mov_b32 v%d, 0" % (8 + r))
    for half in range(1):
        for i in range(32):
            k.e("v_add_u32 v2, %d, v1" % (i * 32 * F * 2))
            k.e("buffer_load_dwordx4 v[%d:%d], v2, s[4:7], 0 offen" % (16 + 4 * i, 19 + 4 * i))
        for i in range(32):
            k.e("s_waitcnt vmcnt(%d)" % (31 - i))
            for j in range(4):
                k.e("v_lshlrev_b32 v3, 16, v%d" % (16 + 4 * i + j))
                k.e("v_and_b32 v4, 0xffff0000, v%d" % (16 + 4 * i + j))
                k.e("v_add_f32 v%d, v%d, v3" % (8 + 2 * j, 8 + 2 * j))
                k.e("v_add_f32 v%d, v%d, v4" % (9 + 2 * j, 9 + 2 * j))
    k.e("v_lshlrev_b32 v2, 5, v0")
    k.e("ds_write_b128 v2, v[8:11]")
    k.e("ds_write_b128 v2, v[12:15] offset:16")
    k.e("s_waitcnt lgkmcnt(0)")
    k.e("s_barrier")
    k.e("v_cmp_gt_u32 vcc, 64, v0")
    k.e("s_and_saveexec_b64 s[24:25], vcc")
    k.e("s_cbranch_execz %s" % lab("end"))
    k.e("v_lshlrev_b32 v2, 2, v0")
    for i in range(32):
        k.e("ds_read_b32 v%d, v2 offset:%d" % (16 + i, i * 256))
    k.e("s_waitcnt lgkmcnt(0)")
    for i in range(1, 32):
        k.e("v_add_f32 v16, v16, v%d" % (16 + i))
    k.e("s_lshl_b32 s22, s20, 8")
    k.e("v_add_u32 v2, s22, v2")
    k.e("buffer_store_dword v16, v2, s[8:11], 0 offen")
    k.e("s_endpgm")
    k.lab(lab("pf"))
    k.e("s_sub_u32 s20, s2, %d" % NCS)
    k.e("s_cmp_lt_u32 s20, 0")
    k.e("s_cselect_b32 s4, s%d, s%d" % (PTR0 + 2 * KA_W2, PTR0 + 2 * KA_WO))
    k.e("s_cselect_b32 s5, s%d, s%d" % (PTR0 + 2 * KA_W2 + 1, PTR0 + 2 * KA_WO + 1))
    k.e("s_mov_b32 s23, %d" % (D * D * 2))
    k.e("s_cselect_b32 s6, %d, s23" % (F * D * 2))
    k.e("s_cselect_b32 s21, 0, 0")
    k.e("s_mov_b32 s22, 65536")
    k.e("s_and_b32 s5, s5, 0xffff")
    k.e("s_mov_b32 s7, 0x00020000")
    k.e("s_sub_u32 s21, s20, s21")
    k.e("s_mul_i32 s21, s21, s22")
    k.e("v_lshlrev_b32 v1, 4, v0")
    k.e("v_add_u32 v1, s21, v1")
    for i in range(16):
        k.e("buffer_load_dwordx4 v[%d:%d], v1, s[4:7], 0 offen" % (8 + 4 * i, 11 + 4 * i))
        k.e("v_add_u32 v1, 4096, v1")
    k.e("s_waitcnt vmcnt(0)")
    k.lab(lab("end"))
    k.e("s_endpgm")
    k.nvgpr = 160
    return k


def gen_g3(name, npf=32):
    BM = 256; RB = 4; CB = 8; NWC = 8; R = 5; STAGE = 32768; nk = 32
    ntm, ntn = 8, 28
    nwg = ntm * ntn
    subs = [(KA_W1, 0, F, 128, 128), (KA_W3, 0, F, 128, 128)]
    colblocks = [(0, 4, j) for j in range(4)] + [(1, 4, j) for j in range(4)]
    sub_lds = [16384, 24576]
    k = Kern(name, (nwg + npf, 1, 1), (512, 1, 1), R * STAGE, 0)
    lab = lambda s: "%s_%s" % (name, s)
    k.e("s_cmp_ge_u32 s2, %d" % (nwg + npf))
    k.e("s_cbranch_scc1 %s" % lab("end"))
    stamp(k, 0)
    load_ptrs(k)
    k.e("s_cmp_lt_u32 s2, %d" % nwg)
    k.e("s_cbranch_scc1 %s" % lab("main"))
    srd(k, 4, KA_W2, 0, F * D * 2)
    per = F * D * 2 // npf
    k.e("s_sub_u32 s20, s2, %d" % nwg)
    k.e("s_mul_i32 s20, s20, %d" % per)
    k.e("v_lshlrev_b32 v1, 4, v0")
    k.e("v_add_u32 v1, s20, v1")
    for i in range(per // 8192):
        k.e("buffer_load_dwordx4 v[%d:%d], v1, s[4:7], 0 offen" % (8 + 4 * i, 11 + 4 * i))
        k.e("v_add_u32 v1, 8192, v1")
    k.e("s_waitcnt vmcnt(0)")
    k.e("s_endpgm")
    k.lab(lab("main"))
    srd(k, 4, KA_WS, WS_H, S * D * 2)
    srd(k, 8, KA_W1, 0, D * F * 2)
    srd(k, 12, KA_W3, 0, D * F * 2)
    k.e("""
    s_and_b32 s25, s2, 7
    s_lshr_b32 s26, s2, 3
    s_and_b32 s20, s25, 1
    s_mul_i32 s20, s20, 4
    s_and_b32 s27, s26, 3
    s_add_u32 s20, s20, s27
    s_lshr_b32 s21, s25, 1
    s_mul_i32 s21, s21, 7
    s_lshr_b32 s27, s26, 2
    s_add_u32 s21, s21, s27
    v_lshrrev_b32 v1, 6, v0
    s_nop 0
    v_readfirstlane_b32 s19, v1
    s_and_b32 s23, s19, 3
    s_lshr_b32 s24, s19, 2
    v_and_b32 v0, 63, v0
    """)
    vAd, vBd = 2, 4
    vAb = 6
    vAr = 15
    vsum, vsq = 24, 28
    vfr = 36
    vacc = vfr + 88
    T0, T1, T2 = vfr, vfr + 1, vfr + 2
    acc = lambda rb, cb: vacc + (rb * CB + cb) * 4
    vend = vacc + RB * CB * 4
    k.nvgpr = vend
    fA = lambda rb: vfr + 4 * rb
    fB = lambda cb: vfr + 16 + 4 * cb
    def sw(dst, rg, t):
        k.e("v_lshlrev_b32 v%d, 1, v%d" % (dst, rg))
        k.e("v_and_b32 v%d, 3, v%d" % (dst, dst))
        k.e("v_lshrrev_b32 v%d, 1, v%d" % (t, rg))
        k.e("v_mul_u32_u24 v%d, 3, v%d" % (t, t))
        k.e("v_xor_b32 v%d, v%d, v%d" % (dst, dst, t))
    k.e("v_bfe_u32 v1, v0, 4, 2")
    sw(T0, 1, T1)
    k.e("v_and_b32 v%d, 3, v0" % T1)
    k.e("v_xor_b32 v%d, v%d, v%d" % (T0, T0, T1))
    k.e("v_lshlrev_b32 v%d, 4, v%d" % (T0, T0))
    k.e("v_lshrrev_b32 v1, 2, v0")
    k.e("s_lshl_b32 s25, s19, 5")
    k.e("s_lshl_b32 s26, s20, 8")
    k.e("s_add_u32 s25, s25, s26")
    k.e("v_add_u32 v1, s25, v1")
    k.e("v_lshlrev_b32 v1, 11, v1")
    k.e("v_add_u32 v%d, v1, v%d" % (vAd, T0))
    k.e("v_add_u32 v%d, %d, v%d" % (vAd + 1, 16 * 2048, vAd))
    k.e("v_lshrrev_b32 v1, 4, v0")
    k.e("s_lshl_b32 s25, s19, 2")
    k.e("v_add_u32 v1, s25, v1")
    k.e("v_and_b32 v%d, 3, v1" % T0)
    k.e("v_lshrrev_b32 v%d, 1, v1" % T1)
    k.e("v_and_b32 v%d, 4, v%d" % (T1, T1))
    k.e("v_or_b32 v%d, v%d, v%d" % (T0, T0, T1))
    k.e("v_lshlrev_b32 v%d, 1, v%d" % (T0, T0))
    k.e("v_and_b32 v%d, 15, v0" % T1)
    k.e("v_xor_b32 v%d, v%d, v%d" % (T0, T0, T1))
    k.e("v_lshlrev_b32 v%d, 4, v%d" % (T0, T0))
    k.e("s_mov_b32 s26, %d" % (F * 2))
    k.e("v_mul_lo_u32 v1, v1, s26")
    k.e("s_lshl_b32 s26, s21, 8")
    k.e("v_add3_u32 v%d, v1, v%d, s26" % (vBd, T0))
    k.e("v_mov_b32 v%d, v%d" % (vBd + 1, vBd))
    k.e("v_bfe_u32 v1, v0, 2, 2")
    sw(T0, 1, T1)
    k.e("v_lshrrev_b32 v%d, 4, v0" % T1)
    k.e("v_xor_b32 v%d, v%d, v%d" % (T0, T0, T1))
    k.e("v_lshlrev_b32 v%d, 4, v%d" % (T0, T0))
    k.e("v_and_b32 v1, 15, v0")
    k.e("v_lshlrev_b32 v1, 6, v1")
    k.e("s_lshl_b32 s25, s23, 12")
    k.e("v_add3_u32 v%d, v1, v%d, s25" % (vAb, T0))
    for cb, (si, pmul, padd) in enumerate(colblocks):
        k.e("""
        v_lshrrev_b32 v1, 4, v0
        v_lshlrev_b32 v1, 3, v1
        v_bfe_u32 v%d, v0, 2, 2
        v_add_u32 v1, v1, v%d
        v_bfe_u32 v%d, v0, 4, 1
        v_lshlrev_b32 v%d, 2, v%d
        v_or_b32 v%d, v%d, v%d
        """ % (T0, T0, T1, T1, T1, T1, T1, T0))
        k.e("s_mul_i32 s25, s24, %d" % pmul)
        k.e("s_add_u32 s25, s25, %d" % padd)
        k.e("v_xor_b32 v%d, s25, v%d" % (T1, T1))
        k.e("v_lshlrev_b32 v%d, 5, v%d" % (T1, T1))
        k.e("v_lshlrev_b32 v1, 8, v1")
        k.e("v_and_b32 v%d, 3, v0" % T2)
        k.e("v_lshlrev_b32 v%d, 3, v%d" % (T2, T2))
        k.e("v_add3_u32 v%d, v1, v%d, v%d" % (vAb + 1 + cb, T1, T2))
        k.e("v_add_u32 v%d, %d, v%d" % (vAb + 1 + cb, sub_lds[si], vAb + 1 + cb))
    for r in range(vacc, vend):
        k.e("v_mov_b32 v%d, 0" % r)
    k.e("""
    s_mov_b32 s30, 0
    s_mov_b32 s31, 0
    s_mov_b32 s34, 0
    s_lshl_b32 s35, s19, 11
    s_lshl_b32 s44, s19, 10
    s_add_u32 s45, s44, 24576
    s_add_u32 s44, s44, 16384
    s_mov_b32 s37, 0
    s_mov_b32 s38, 0
    """)

    def dma():
        k.e("""
        s_add_u32 s36, s34, s35
        s_mov_b32 m0, s36
        s_nop 0
        buffer_load_dwordx4 v%d, s[4:7], s30 offen lds
        s_add_u32 m0, s36, 1024
        s_nop 0
        buffer_load_dwordx4 v%d, s[4:7], s30 offen lds
        s_add_u32 m0, s34, s44
        s_nop 0
        buffer_load_dwordx4 v%d, s[8:11], s31 offen lds
        s_add_u32 m0, s34, s45
        s_nop 0
        buffer_load_dwordx4 v%d, s[12:15], s31 offen lds
        s_add_u32 s30, s30, 64
        s_add_u32 s31, s31, %d
        s_add_u32 s34, s34, %d
        s_cmp_eq_u32 s34, %d
        s_cselect_b32 s34, 0, s34
        """ % (vAd, vAd + 1, vBd, vBd + 1, 32 * F * 2, STAGE, R * STAGE))

    def loadphase():
        dma()
        for r in range(9):
            k.e("v_add_u32 v%d, s38, v%d" % (vAr + r, vAb + r))
        k.e("s_add_u32 s38, s38, %d\ns_cmp_eq_u32 s38, %d\ns_cselect_b32 s38, 0, s38" % (STAGE, R * STAGE))
        for rb in range(RB):
            k.e("ds_read_b128 v[%d:%d], v%d offset:%d" % (fA(rb), fA(rb) + 3, vAr, rb * 1024))
        for cb in range(CB):
            k.e("ds_read_b64_tr_b16 v[%d:%d], v%d" % (fB(cb), fB(cb) + 1, vAr + 1 + cb))
            k.e("ds_read_b64_tr_b16 v[%d:%d], v%d offset:1024" % (fB(cb) + 2, fB(cb) + 3, vAr + 1 + cb))
        k.e("s_waitcnt lgkmcnt(0)")

    def compphase():
        for rb in range(RB):
            for cb in range(CB):
                a = acc(rb, cb)
                k.e("v_mfma_f32_16x16x32_bf16 v[%d:%d], v[%d:%d], v[%d:%d], v[%d:%d]" % (
                    a, a + 3, fB(cb), fB(cb) + 3, fA(rb), fA(rb) + 3, a, a + 3))

    for _ in range(4):
        dma()
    stamp(k, 1)
    k.e("s_waitcnt vmcnt(12)")
    k.e("s_barrier")
    k.e("s_cmp_ge_u32 s19, 4")
    k.e("s_cbranch_scc1 %s" % lab("ypath"))
    loadphase()
    k.e("s_barrier")
    k.lab(lab("xloop"))
    compphase()
    k.e("s_waitcnt vmcnt(12)")
    k.e("s_barrier")
    loadphase()
    k.e("s_barrier")
    k.e("s_add_u32 s37, s37, 1")
    k.e("s_cmp_lt_u32 s37, %d" % nk)
    k.e("s_cbranch_scc1 %s" % lab("xloop"))
    k.e("s_branch %s" % lab("done"))
    k.lab(lab("ypath"))
    k.e("s_barrier")
    k.lab(lab("loop"))
    loadphase()
    k.e("s_waitcnt vmcnt(12)")
    k.e("s_barrier")
    compphase()
    k.e("s_barrier")
    k.e("s_add_u32 s37, s37, 1")
    k.e("s_cmp_lt_u32 s37, %d" % nk)
    k.e("s_cbranch_scc1 %s" % lab("loop"))
    k.lab(lab("done"))
    k.e("s_waitcnt vmcnt(0) lgkmcnt(0)")
    k.e("s_barrier")
    stamp(k, 3)
    k.e("s_nop 7")
    ctx = dict(RB=RB, CB=CB, acc=acc, colblocks=colblocks, subs=subs, BM=BM, vend=vend, vres=None, ln='ws',
               vsum=vsum, vsq=vsq, vcs=None, Kdim=1024, lab=lab, vfr=vfr)

    def ws_stats():
        srd(k, 48, KA_WS, WS_PART, S * 256)
        t = vfr + 36
        dbase = [vfr + 40, vfr + 56, vfr + 72, 4]
        k.e("s_mul_i32 s25, s20, %d" % BM)
        k.e("s_mul_i32 s26, s23, %d" % (RB * 16))
        k.e("s_add_u32 s25, s25, s26")
        k.e("v_and_b32 v%d, 15, v0" % t)
        k.e("v_add_u32 v%d, s25, v%d" % (t, t))
        k.e("v_lshlrev_b32 v%d, 4, v%d" % (t, t))
        k.e("v_lshrrev_b32 v%d, 4, v0" % (t + 1))
        k.e("v_lshlrev_b32 v%d, 17, v%d" % (t + 1, t + 1))
        k.e("v_add_u32 v%d, v%d, v%d" % (t, t, t + 1))
        for j in range(4):
            if j:
                k.e("v_add_u32 v%d, 32768, v%d" % (t, t))
            for rb in range(RB):
                d = dbase[rb] + 4 * j
                k.e("buffer_load_dwordx4 v[%d:%d], v%d, s[48:51], 0 offen offset:%d" % (d, d + 3, t, 256 * rb))
        k.e("s_waitcnt vmcnt(0)")
        for rb in range(RB):
            d = dbase[rb]
            k.e("v_add_f32 v%d, v%d, v%d" % (vsum + rb, d, d + 2))
            k.e("v_add_f32 v%d, v%d, v%d" % (vsq + rb, d + 1, d + 3))
            for j in range(2, 8):
                k.e("v_add_f32 v%d, v%d, v%d" % (vsum + rb, vsum + rb, d + 2 * j))
                k.e("v_add_f32 v%d, v%d, v%d" % (vsq + rb, vsq + rb, d + 2 * j + 1))
        ctx["vtmp"] = vfr + 40
        ln_finish(k, ctx)
    ctx["ws_stats"] = ws_stats
    epi_swiglu(k, ctx)
    stamp_store(k, 4, 2)
    k.lab(lab("end"))
    k.e("s_endpgm")
    return k


def build():
    ks = []
    ks.append(gen_gemm("g1_kernel", 128, 2, 2, 1024, KA_X, 0,
                       [(KA_WQKV, 0, 3072, 128, 192), (KA_WQKV, 256, 3072, 64, 192)],
                       [(0, 4, 0), (0, 4, 1), (0, 4, 2), (0, 4, 3), (1, 2, 0), (1, 2, 1)], 16,
                       epi_store_factory(3072, KA_WS, WS_QKV, S * 3072 * 2, groups=[[0, 1, 2, 3], [4, 5]]), (4, 8), NL=4, ln='mfma'))
    ks.append(gen_attn("attn_kernel"))
    ks.append(gen_gemm("g2_kernel", 128, 2, 2, 1024, KA_WS, WS_O, [(KA_WO, 0, 1024, 64, 64)],
                       [(0, 2, 0), (0, 2, 1)], 16,
                       epi_store_factory(1024, KA_WS, WS_H, S * D * 2, part=True), (4, 8), NL=int(os.environ.get('NL24', '4')), res=(KA_X, 0)))
    if 'newg3' not in EXP:
        ks.append(gen_gemm("g3_kernel", 256, 4, 2, 1024, KA_WS, WS_H,
                           [(KA_W1, 0, F, 128, 128), (KA_W3, 0, F, 128, 128)],
                           [(0, 4, j) for j in range(4)] + [(1, 4, j) for j in range(4)], 28, epi_swiglu, (4, 7), ln='ws', pp=True, npf=32))
    else:
        ks.append(gen_g3("g3_kernel"))
    ks.append(gen_gemm("g4_kernel", 128, 2, 2, F, KA_WS, WS_ACT, [(KA_W2, 0, 1024, 64, 64)],
                       [(0, 2, 0), (0, 2, 1)], 16,
                       epi_store_factory(1024, KA_OUT, 0, S * D * 2), (4, 8), NL=int(os.environ.get('NL24', '4')), res=(KA_WS, WS_H)))
    return ks


def main():
    ks = build()
    out = [HEADER.rstrip()]
    for k in ks:
        out.append("; @launch kernel=%s grid=(%d,%d,%d) block=(%d,%d,%d) lds=%d" % ((k.name,) + k.grid + k.block + (k.lds,)))
    out.append('.amdgcn_target "amdgcn-amd-amdhsa--gfx950"')
    out.append(".text")
    for k in ks:
        out.append(k.text())
    out.append('.section .rodata,"a"')
    for k in ks:
        out.append(".p2align 6")
        out.append(k.desc())
    open(sys.argv[1] if len(sys.argv) > 1 else "sequential_preLN__sliding_block__glu_gated_swiglu__prompt.s", "w").write("\n".join(out) + "\n")


if __name__ == "__main__":
    main()
```

```python
import sys, os
EXP = os.environ.get('EXP', '')
STFLAG = ' sc1'

S = 2048; D = 1024; F = 3584
MB = 1 << 20
WS_QKV = 4 * MB
WS_O = 16 * MB
WS_H = 20 * MB
WS_ACT = 28 * MB
WS_PART = 49 * MB
WS_CS = 48 * MB

KA_X, KA_WQKV, KA_WO, KA_BX, KA_W1, KA_W3, KA_W2, KA_OUT, KA_DBG, KA_WS = range(10)
PTR0 = 64

HEADER = """; Kernarg layout for this problem (80 bytes, ptrs only, base s[0:1]):
;   offset  72: d_ws      268435456 bytes workspace
"""


class Kern:
    def __init__(self, name, grid, block, lds, nvgpr, nsgpr=100):
        self.name = name; self.grid = grid; self.block = block; self.lds = lds
        self.nvgpr = nvgpr; self.nsgpr = nsgpr
        self.lines = []

    def e(self, s):
        for ln in s.strip().split("\n"):
            if ln.strip():
                self.lines.append("    " + ln.strip())

    def lab(self, l):
        self.lines.append(l + ":")

    def text(self):
        out = [".globl %s" % self.name, ".p2align 8", ".type %s,@function" % self.name, "%s:" % self.name]
        return "\n".join(out + self.lines)

    def desc(self):
        nv = self.nvgpr
        return """.amdhsa_kernel %s
  .amdhsa_next_free_vgpr %d
  .amdhsa_next_free_sgpr %d
  .amdhsa_accum_offset %d
  .amdhsa_group_segment_fixed_size 0
  .amdhsa_kernarg_size 80
  .amdhsa_user_sgpr_count 2
  .amdhsa_user_sgpr_kernarg_segment_ptr 1
  .amdhsa_system_sgpr_workgroup_id_x 1
.end_amdhsa_kernel""" % (self.name, nv, self.nsgpr, (nv + 3) // 4 * 4)


def load_ptrs(k):
    k.e("s_load_dwordx16 s[64:79], s[0:1], 0")
    k.e("s_load_dwordx4 s[80:83], s[0:1], 64")
    k.e("s_waitcnt lgkmcnt(0)")


def srd(k, sreg, slot, off, nbytes):
    p = PTR0 + 2 * slot
    if off:
        k.e("s_add_u32 s%d, s%d, %d" % (sreg, p, off))
        k.e("s_addc_u32 s%d, s%d, 0" % (sreg + 1, p + 1))
        k.e("s_and_b32 s%d, s%d, 0xffff" % (sreg + 1, sreg + 1))
    else:
        k.e("s_mov_b32 s%d, s%d" % (sreg, p))
        k.e("s_and_b32 s%d, s%d, 0xffff" % (sreg + 1, p + 1))
    k.e("s_mov_b32 s%d, %d" % (sreg + 2, nbytes))
    k.e("s_mov_b32 s%d, 0x00020000" % (sreg + 3))


def stamp(k, i):
    if 'stamp' in EXP:
        k.e("s_memrealtime s[%d:%d]" % (86 + 2 * i, 87 + 2 * i))


def stamp_store(k, n, kidx):
    if 'stamp' not in EXP:
        return
    k.e("s_waitcnt vmcnt(0) lgkmcnt(0)")
    k.e("s_memrealtime s[%d:%d]" % (86 + 2 * n, 87 + 2 * n))
    k.e("s_waitcnt lgkmcnt(0)")
    srd(k, 56, KA_WS, 64 * MB + kidx * 65536, 65536)
    k.e("s_lshl_b32 s60, s2, 6")
    k.e("v_mov_b32 v1, s60")
    for i in range(n + 1):
        k.e("v_mov_b32 v2, s%d" % (86 + 2 * i))
        k.e("buffer_store_dword v2, v1, s[56:59], 0 offen offset:%d" % (4 * i))


def f3(k):
    return (k & 3) | ((k >> 1) & 4)


def gen_gemm(name, BM, WM, WN, Kdim, a_slot, a_off, subs, colblocks, ntn, epi, grp, nstages=6, NL=0, ln=None, res=None, pp=False, npf=0):
    NWC = WM * WN
    NW = NL if NL else NWC
    RB = BM // WM // 16
    CB = len(colblocks)
    ntm = S // BM
    nwg = ntm * ntn
    nk = Kdim // 64
    sub_lds = []
    o = BM * 128
    for sb in subs:
        sub_lds.append(o); o += 64 * sb[3] * 2
    STAGE = o
    NS = min(nstages, 163840 // STAGE)
    assert NS >= 2 and STAGE <= 65536
    k = Kern(name, (nwg + npf, 1, 1), (64 * (NWC + NL), 1, 1), NS * STAGE + (4096 if pp else 0), 0)
    lab = lambda s: "%s_%s" % (name, s)
    k.e("s_cmp_ge_u32 s2, %d" % (nwg + npf))
    k.e("s_cbranch_scc1 %s" % lab("end"))
    stamp(k, 0)
    load_ptrs(k)
    if npf:
        k.e("s_cmp_lt_u32 s2, %d" % nwg)
        k.e("s_cbranch_scc1 %s" % lab("main"))
        srd(k, 4, KA_W2, 0, F * D * 2)
        per = F * D * 2 // npf
        nthr = 64 * (NWC + NL)
        assert per % (nthr * 16) == 0
        k.e("s_sub_u32 s20, s2, %d" % nwg)
        k.e("s_mul_i32 s20, s20, %d" % per)
        k.e("v_lshlrev_b32 v1, 4, v0")
        k.e("v_add_u32 v1, s20, v1")
        for i in range(per // (nthr * 16)):
            k.e("buffer_load_dwordx4 v[%d:%d], v1, s[4:7], 0 offen" % (8 + 4 * i, 11 + 4 * i))
            k.e("v_add_u32 v1, %d, v1" % (nthr * 16))
        k.e("s_waitcnt vmcnt(0)")
        k.e("s_endpgm")
        k.lab(lab("main"))
    srd(k, 4, a_slot, a_off, S * Kdim * 2)
    for i, sb in enumerate(subs):
        srd(k, 8 + 4 * i, sb[0], sb[1], Kdim * sb[2] * 2 - sb[1])
    gm, gn = grp
    assert gm * gn * 8 == nwg
    k.e("s_and_b32 s25, s2, 7")
    k.e("s_lshr_b32 s26, s2, 3")
    ng = ntm // gm
    k.e("s_and_b32 s20, s25, %d" % (ng - 1))
    k.e("s_mul_i32 s20, s20, %d" % gm)
    k.e("s_and_b32 s27, s26, %d" % (gm - 1))
    k.e("s_add_u32 s20, s20, s27")
    k.e("s_lshr_b32 s21, s25, %d" % (ng.bit_length() - 1))
    k.e("s_mul_i32 s21, s21, %d" % gn)
    k.e("s_lshr_b32 s27, s26, %d" % (gm.bit_length() - 1))
    k.e("s_add_u32 s21, s21, s27")
    k.e("v_lshrrev_b32 v1, 6, v0")
    k.e("s_nop 0")
    k.e("v_readfirstlane_b32 s19, v1")
    k.e("s_and_b32 s23, s19, %d" % (WM - 1))
    k.e("s_lshr_b32 s24, s19, %d" % (WM.bit_length() - 1))
    k.e("s_and_b32 s24, s24, %d" % (WN - 1))
    if NL:
        k.e("s_sub_u32 s22, s19, %d" % NWC)
        k.e("s_and_b32 s22, s22, %d" % (NL - 1))
    else:
        k.e("s_mov_b32 s22, s19")
    k.e("v_and_b32 v0, 63, v0")
    nA_w = BM // 8 // NW
    vA_dma = 2
    _nb = sum(64 * sb[3] * 2 // 1024 // NW for sb in subs)
    XORST = (NS == 2 and STAGE == 65536)
    _vx = vA_dma + nA_w + _nb + (1 if XORST else 2) * (2 + CB)
    if ln == 'mfma':
        _vx = (_vx + 2 * RB + 3) // 4 * 4 + 4 + 4 * CB
    elif ln:
        _vx = _vx + 2 * RB + 1
    if res:
        _vx = (_vx + 1) // 2 * 2 + 2 * RB * CB
    _vfr = (_vx + 3) // 4 * 4
    T0, T1, T2 = _vfr, _vfr + 1, _vfr + 2
    k.e("""
    v_lshrrev_b32 v1, 3, v0
    v_and_b32 v%d, 7, v0
    v_xor_b32 v%d, v%d, v1
    v_lshlrev_b32 v%d, 4, v%d
    """ % (T0, T0, T0, T0, T0))
    k.e("s_mul_i32 s25, s22, %d" % (nA_w * 8))
    k.e("s_mul_i32 s26, s20, %d" % BM)
    k.e("s_add_u32 s25, s25, s26")
    k.e("v_add_u32 v1, s25, v1")
    k.e("s_mov_b32 s26, %d" % (Kdim * 2))
    k.e("v_mul_lo_u32 v1, v1, s26")
    k.e("v_add_u32 v%d, v1, v%d" % (vA_dma, T0))
    for t in range(1, nA_w):
        k.e("v_add_u32 v%d, %d, v%d" % (vA_dma + t, t * 8 * Kdim * 2, vA_dma))
    bdma = []
    vb = vA_dma + nA_w
    for si, (slot, off, ldb, width, tnmul) in enumerate(subs):
        pitch = width * 2
        nB = 64 * pitch // 1024
        assert nB % NW == 0
        nB_w = nB // NW
        rows_per = 1024 // pitch
        cpr = pitch // 16
        for t in range(nB_w):
            k.e("s_mul_i32 s25, s22, %d" % (nB_w * rows_per))
            k.e("s_add_u32 s25, s25, %d" % (t * rows_per))
            k.e("v_lshrrev_b32 v1, %d, v0" % (cpr.bit_length() - 1))
            k.e("v_add_u32 v1, s25, v1")
            if pitch >= 256:
                k.e("v_and_b32 v%d, 3, v1" % T0)
                k.e("v_lshrrev_b32 v%d, 1, v1" % T1)
                k.e("v_and_b32 v%d, 4, v%d" % (T1, T1))
            else:
                k.e("v_bfe_u32 v%d, v1, 1, 1" % T0)
                k.e("v_lshrrev_b32 v%d, 2, v1" % T1)
                k.e("v_and_b32 v%d, 2, v%d" % (T1, T1))
            k.e("v_or_b32 v%d, v%d, v%d" % (T0, T0, T1))
            k.e("v_lshlrev_b32 v%d, 1, v%d" % (T0, T0))
            k.e("v_and_b32 v%d, %d, v0" % (T1, cpr - 1))
            k.e("v_xor_b32 v%d, v%d, v%d" % (T0, T0, T1))
            k.e("v_lshlrev_b32 v%d, 4, v%d" % (T0, T0))
            k.e("s_mov_b32 s26, %d" % (ldb * 2))
            k.e("v_mul_lo_u32 v1, v1, s26")
            k.e("v_add_u32 v1, v1, v%d" % T0)
            k.e("s_mul_i32 s26, s21, %d" % (tnmul * 2))
            k.e("v_add_u32 v%d, s26, v1" % vb)
            bdma.append((si, t, vb, nB_w))
            vb += 1
    _iB0 = len(k.lines)
    NAD = 2 + CB
    vAb = vb
    vAr = vAb if XORST else vAb + NAD
    k.e("""
    v_and_b32 v1, 15, v0
    v_lshlrev_b32 v1, 7, v1
    v_lshrrev_b32 v%d, 4, v0
    v_and_b32 v%d, 7, v0
    """ % (T0, T1))
    k.e("s_mul_i32 s25, s23, %d" % (RB * 16 * 128))
    k.e("v_add_u32 v1, s25, v1")
    k.e("v_xor_b32 v%d, v%d, v%d" % (T2, T0, T1))
    k.e("v_lshlrev_b32 v%d, 4, v%d" % (T2, T2))
    k.e("v_add_u32 v%d, v1, v%d" % (vAb, T2))
    k.e("v_or_b32 v%d, 4, v%d" % (T0, T0))
    k.e("v_xor_b32 v%d, v%d, v%d" % (T2, T0, T1))
    k.e("v_lshlrev_b32 v%d, 4, v%d" % (T2, T2))
    k.e("v_add_u32 v%d, v1, v%d" % (vAb + 1, T2))
    for cb, (si, pmul, padd) in enumerate(colblocks):
        pitch = subs[si][3] * 2
        k.e("""
        v_lshrrev_b32 v1, 4, v0
        v_lshlrev_b32 v1, 3, v1
        v_bfe_u32 v%d, v0, 2, 2
        v_add_u32 v1, v1, v%d
        """ % (T0, T0))
        if pitch >= 256:
            k.e("v_bfe_u32 v%d, v0, 4, 1" % T1)
            k.e("v_lshlrev_b32 v%d, 2, v%d" % (T1, T1))
            k.e("v_or_b32 v%d, v%d, v%d" % (T1, T1, T0))
        else:
            k.e("v_bfe_u32 v%d, v0, 3, 1" % T1)
            k.e("v_bfe_u32 v%d, v0, 4, 1" % T2)
            k.e("v_lshlrev_b32 v%d, 1, v%d" % (T2, T2))
            k.e("v_or_b32 v%d, v%d, v%d" % (T1, T1, T2))
        k.e("s_mul_i32 s25, s24, %d" % pmul)
        k.e("s_add_u32 s25, s25, %d" % padd)
        k.e("v_xor_b32 v%d, s25, v%d" % (T1, T1))
        k.e("v_lshlrev_b32 v%d, 5, v%d" % (T1, T1))
        k.e("s_mov_b32 s26, %d" % pitch)
        k.e("v_mul_lo_u32 v1, v1, s26")
        k.e("v_and_b32 v%d, 3, v0" % T2)
        k.e("v_lshlrev_b32 v%d, 3, v%d" % (T2, T2))
        k.e("v_add3_u32 v%d, v1, v%d, v%d" % (vAb + 2 + cb, T1, T2))
    vBr = vAr + 2
    vx = vAr + NAD
    vsum = vsq = vones = vcs = vres = None
    if ln:
        vsum = vx; vsq = vx + RB; vx += 2 * RB
        if ln == 'mfma':
            vx = (vx + 3) // 4 * 4
            vones = vx; vx += 4
            vcs = vx; vx += 4 * CB
        else:
            vones = vx; vx += 1
    if res:
        vx = (vx + 1) // 2 * 2
        vres = vx; vx += 2 * RB * CB
    vfr = (vx + 3) // 4 * 4
    fA = lambda s, rb: vfr + (s * RB + rb) * 4
    fB = lambda s, cb: vfr + 2 * RB * 4 + (s * CB + cb) * 4
    vacc = vfr + 2 * RB * 4 + 2 * CB * 4
    assert vfr == _vfr
    acc = lambda rb, cb: vacc + (rb * CB + cb) * 4
    vend = vacc + RB * CB * 4
    k.nvgpr = vend
    assert vend <= 256
    def lds_stats():
        t = vfr + 36
        k.e("v_and_b32 v%d, 15, v0" % t)
        k.e("s_lshl_b32 s25, s23, 6")
        k.e("v_add_u32 v%d, s25, v%d" % (t, t))
        k.e("v_lshlrev_b32 v%d, 3, v%d" % (t, t))
        k.e("v_add_u32 v%d, %d, v%d" % (t, NS * STAGE, t))
        for rb in range(RB):
            k.e("ds_read_b32 v%d, v%d offset:%d" % (vsum + rb, t, rb * 128))
            k.e("ds_read_b32 v%d, v%d offset:%d" % (vsq + rb, t, rb * 128 + 4))
        k.e("s_waitcnt vmcnt(0) lgkmcnt(0)")
    ctx = dict(ws_stats=(lds_stats if pp else (lambda: ws_stats())), RB=RB, CB=CB, acc=acc, colblocks=colblocks, subs=subs, BM=BM, vend=vend, vres=vres, ln=ln,
               vsum=vsum, vsq=vsq, vcs=vcs, Kdim=Kdim, lab=lab, vfr=vfr)
    def ws_stats():
        srd(k, 48, KA_WS, WS_PART, S * 256)
        t = vfr + 36
        dbase = [vfr + 40, vfr + 56, vfr + 72, 4]
        assert RB == 4 and vsum >= 20
        k.e("s_mul_i32 s25, s20, %d" % BM)
        k.e("s_mul_i32 s26, s23, %d" % (RB * 16))
        k.e("s_add_u32 s25, s25, s26")
        k.e("v_and_b32 v%d, 15, v0" % t)
        k.e("v_add_u32 v%d, s25, v%d" % (t, t))
        k.e("v_lshlrev_b32 v%d, 4, v%d" % (t, t))
        k.e("v_lshrrev_b32 v%d, 4, v0" % (t + 1))
        k.e("v_lshlrev_b32 v%d, 17, v%d" % (t + 1, t + 1))
        k.e("v_add_u32 v%d, v%d, v%d" % (t, t, t + 1))
        for j in range(4):
            if j:
                k.e("v_add_u32 v%d, 32768, v%d" % (t, t))
            for rb in range(RB):
                d = dbase[rb] + 4 * j
                k.e("buffer_load_dwordx4 v[%d:%d], v%d, s[48:51], 0 offen offset:%d" % (d, d + 3, t, 256 * rb))
        k.e("s_waitcnt vmcnt(0)")
        for rb in range(RB):
            d = dbase[rb]
            k.e("v_add_f32 v%d, v%d, v%d" % (vsum + rb, d, d + 2))
            k.e("v_add_f32 v%d, v%d, v%d" % (vsq + rb, d + 1, d + 3))
            for j in range(2, 8):
                k.e("v_add_f32 v%d, v%d, v%d" % (vsum + rb, vsum + rb, d + 2 * j))
                k.e("v_add_f32 v%d, v%d, v%d" % (vsq + rb, vsq + rb, d + 2 * j + 1))
        ctx["vtmp"] = vfr + 40
        ln_finish(k, ctx)

    def zero_acc():
        for r in range(vacc, vend):
            k.e("v_mov_b32 v%d, 0" % r)
    if ln != 'ws':
        zero_acc()
    if ln:
        for r in range(2 * RB if ln == 'mfma' else 0):
            k.e("v_mov_b32 v%d, 0" % (vsum + r))
        for r in range(4 if vcs else 1):
            k.e("v_mov_b32 v%d, 0x3f803f80" % (vones + r))
        if vcs:
            for r in range(4 * CB):
                k.e("v_mov_b32 v%d, 0" % (vcs + r))
    partB = k.lines[_iB0:]
    del k.lines[_iB0:]
    k.e("s_mov_b32 s30, 0")
    for i in range(len(subs)):
        k.e("s_mov_b32 s%d, 0" % (31 + i))
    k.e("s_mov_b32 s34, 0")
    k.e("s_mul_i32 s35, s22, %d" % (nA_w * 1024))
    for (si, t, vreg, nB_w) in bdma:
        if t == 0:
            k.e("s_mul_i32 s%d, s22, %d" % (44 + si, nB_w * 1024))
            k.e("s_add_u32 s%d, s%d, %d" % (44 + si, 44 + si, sub_lds[si]))
    nd = nA_w + len(bdma)

    def dma_items():
        it = []
        for t in range(nA_w):
            if t:
                pre = "s_add_u32 m0, s36, %d\ns_nop 0\n" % (t * 1024)
            else:
                pre = "s_add_u32 s36, s34, s35\ns_mov_b32 m0, s36\ns_nop 0\n"
            it.append(pre + "buffer_load_dwordx4 v%d, s[4:7], s30 offen lds" % (vA_dma + t))
        for (si, t, vreg, nB_w) in bdma:
            if t == 0:
                pre = "s_add_u32 s36, s34, s%d\ns_mov_b32 m0, s36\ns_nop 0\n" % (44 + si)
            else:
                pre = "s_add_u32 m0, s36, %d\ns_nop 0\n" % (t * 1024)
            it.append(pre + "buffer_load_dwordx4 v%d, s[%d:%d], s%d offen lds" % (vreg, 8 + 4 * si, 11 + 4 * si, 31 + si))
        tail = "s_add_u32 s30, s30, 128\n"
        for i, sb in enumerate(subs):
            tail += "s_add_u32 s%d, s%d, %d\n" % (31 + i, 31 + i, 64 * sb[2] * 2)
        tail += "s_add_u32 s34, s34, %d\ns_cmp_eq_u32 s34, %d\ns_cselect_b32 s34, 0, s34" % (STAGE, NS * STAGE)
        it[-1] += "\n" + tail
        return it

    def dma():
        for x in dma_items():
            k.e(x)

    def setaddr_items():
        if XORST:
            return ["v_xor_b32 v%d, %d, v%d" % (vAr + r, STAGE, vAr + r) for r in range(NAD)]
        it = ["v_add_u32 v%d, s38, v%d" % (vAr + r, vAb + r) for r in range(NAD)]
        it[-1] += "\ns_add_u32 s38, s38, %d\ns_cmp_eq_u32 s38, %d\ns_cselect_b32 s38, 0, s38" % (STAGE, NS * STAGE)
        return it

    def read_items(st, kk):
        it = []
        for rb in range(RB):
            it.append("ds_read_b128 v[%d:%d], v%d offset:%d" % (fA(st, rb), fA(st, rb) + 3, vAr + kk, rb * 2048))
        for cb, (si, pmul, padd) in enumerate(colblocks):
            pitch = subs[si][3] * 2
            base = sub_lds[si] + kk * 32 * pitch
            it.append("ds_read_b64_tr_b16 v[%d:%d], v%d offset:%d" % (fB(st, cb), fB(st, cb) + 1, vBr + cb, base))
            it.append("ds_read_b64_tr_b16 v[%d:%d], v%d offset:%d" % (fB(st, cb) + 2, fB(st, cb) + 3, vBr + cb, base + 4 * pitch))
        return it

    def stat_items(st):
        return []

    def mfmas(st, fill=(), late=()):
        fill = list(fill); late = list(late)
        ms = []
        for rb in range(RB):
            for cb in range(CB):
                a = acc(rb, cb)
                ms.append("v_mfma_f32_16x16x32_bf16 v[%d:%d], v[%d:%d], v[%d:%d], v[%d:%d]" % (
                    a, a + 3, fB(st, cb), fB(st, cb) + 3, fA(st, rb), fA(st, rb) + 3, a, a + 3))
        if vcs and 'nocs' not in EXP:
            for cb in range(CB):
                c = vcs + 4 * cb
                ms.append("v_mfma_f32_16x16x32_bf16 v[%d:%d], v[%d:%d], v[%d:%d], v[%d:%d]" % (
                    c, c + 3, fB(st, cb), fB(st, cb) + 3, vones, vones + 3, c, c + 3))
        n = len(ms)
        per = -(-len(fill) // n) if fill else 0
        perl = -(-len(late) // n) if late else 0
        for m in ms:
            k.e(m)
            for _ in range(per):
                if fill:
                    k.e(fill.pop(0))
            for _ in range(perl):
                if late:
                    k.e(late.pop(0))
        assert not fill and not late

    k.e("s_mov_b32 s37, 0")
    if NL:
        assert NS >= 3
        k.e("s_cmp_lt_u32 s19, %d" % NWC)
        k.e("s_cbranch_scc1 %s" % lab("comp"))
        if 'lprio' in EXP:
            k.e("s_setprio 2")
        for s_ in range(NS - 1):
            dma()
        LS = (ln == 'mfma')
        if LS:
            assert BM == 128 and NL == 4
            t = vfr
            k.e("v_lshrrev_b32 v%d, 1, v0" % (t + 22))
            k.e("s_lshl_b32 s25, s22, 5")
            k.e("v_add_u32 v%d, s25, v%d" % (t + 23, t + 22))
            k.e("v_lshlrev_b32 v%d, 7, v%d" % (t + 23, t + 23))
            k.e("v_and_b32 v%d, 1, v0" % (t + 24))
            k.e("v_lshlrev_b32 v%d, 6, v%d" % (t + 24, t + 24))
            k.e("v_add_u32 v%d, v%d, v%d" % (t + 23, t + 23, t + 24))
            k.e("v_lshrrev_b32 v%d, 1, v%d" % (t + 22, t + 22))
            for j in range(4):
                k.e("v_add_u32 v%d, %d, v%d" % (t + 24, j, t + 22))
                k.e("v_and_b32 v%d, 3, v%d" % (t + 24, t + 24))
                k.e("v_lshlrev_b32 v%d, 4, v%d" % (t + 24, t + 24))
                k.e("v_add_u32 v%d, v%d, v%d" % (t + 26 + j, t + 23, t + 24))
            k.e("v_mov_b32 v%d, 0" % (t + 20))
            k.e("v_mov_b32 v%d, 0" % (t + 21))
            k.e("v_mov_b32 v%d, 0x3f803f80" % vones)
            k.e("s_mov_b32 s39, 0")

            def lstats():
                if 'nolstats' in EXP:
                    return
                for j in range(4):
                    k.e("v_add_u32 v%d, s39, v%d" % (t + j, t + 26 + j))
                for j in range(4):
                    k.e("ds_read_b128 v[%d:%d], v%d" % (t + 4 + 4 * j, t + 7 + 4 * j, t + j))
                k.e("s_add_u32 s39, s39, %d\ns_cmp_eq_u32 s39, %d\ns_cselect_b32 s39, 0, s39" % (STAGE, NS * STAGE))
                for j in range(16):
                    if j % 4 == 0:
                        k.e("s_waitcnt lgkmcnt(%d)" % (3 - j // 4))
                    d = t + 4 + j
                    k.e("v_dot2c_f32_bf16 v%d, v%d, v%d" % (t + 20, d, vones))
                    k.e("v_dot2c_f32_bf16 v%d, v%d, v%d" % (t + 21, d, d))
        PF = LS and 'nopf' not in EXP
        if PF:
            k.e("s_cmp_lt_u32 s2, 128")
            k.e("s_cselect_b32 s52, s%d, s%d" % (PTR0 + 2 * KA_W1, PTR0 + 2 * KA_W3))
            k.e("s_cselect_b32 s53, s%d, s%d" % (PTR0 + 2 * KA_W1 + 1, PTR0 + 2 * KA_W3 + 1))
            k.e("s_and_b32 s53, s53, 0xffff")
            k.e("s_mov_b32 s54, %d" % (D * F * 2))
            k.e("s_mov_b32 s55, 0x00020000")
            k.e("s_and_b32 s25, s2, 127")
            k.e("s_mul_i32 s25, s25, 57344")
            k.e("s_lshl_b32 s26, s22, 10")
            k.e("s_add_u32 s25, s25, s26")
            k.e("v_lshlrev_b32 v%d, 4, v0" % (t + 30))
            k.e("v_add_u32 v%d, s25, v%d" % (t + 30, t + 30))
        k.e("s_waitcnt vmcnt(%d)" % ((NS - 2) * nd))
        k.e("s_barrier")
        if LS:
            lstats()
        k.lab(lab("lloop"))
        k.e("s_waitcnt vmcnt(%d)" % ((NS - 3) * (nd + (1 if PF else 0))))
        k.e("s_barrier")
        dma()
        if PF:
            k.e("buffer_load_dwordx4 v[%d:%d], v%d, s[52:55], 0 offen" % (t + 32, t + 35, t + 30))
            k.e("v_add_u32 v%d, 4096, v%d" % (t + 30, t + 30))
        k.e("s_add_u32 s37, s37, 1")
        k.e("s_cmp_lt_u32 s37, %d" % nk)
        if LS:
            k.e("s_cbranch_scc0 %s" % lab("ldone"))
            lstats()
            k.e("s_branch %s" % lab("lloop"))
            k.lab(lab("ldone"))
            k.e("s_waitcnt vmcnt(0)")
            for v in (t + 20, t + 21):
                k.e("ds_swizzle_b32 v%d, v%d offset:0x041F" % (t + 22, v))
                k.e("s_waitcnt lgkmcnt(0)")
                k.e("v_add_f32 v%d, v%d, v%d" % (v, v, t + 22))
            k.e("s_barrier")
            k.e("v_lshrrev_b32 v%d, 1, v0" % (t + 22))
            k.e("s_lshl_b32 s25, s22, 5")
            k.e("v_add_u32 v%d, s25, v%d" % (t + 22, t + 22))
            k.e("v_lshlrev_b32 v%d, 3, v%d" % (t + 22, t + 22))
            k.e("ds_write_b64 v%d, v[%d:%d]" % (t + 22, t + 20, t + 21))
            k.e("s_waitcnt lgkmcnt(0)")
            k.e("s_barrier")
        else:
            k.e("s_cbranch_scc1 %s" % lab("lloop"))
            k.e("s_waitcnt vmcnt(0)")
        k.e("s_endpgm")
        k.lab(lab("comp"))
        k.lines.extend(partB)
        if 'prio' in EXP:
            k.e("s_setprio 2")
        if res:
            res_prefetch(k, ctx, res)
        stamp(k, 1)
        k.e("s_mov_b32 s38, 0")
        for x in setaddr_items():
            k.e(x)
        k.e("s_barrier")
        stamp(k, 2)
        for x in read_items(0, 0):
            k.e(x)
        k.lab(lab("loop"))
        k.e("s_waitcnt lgkmcnt(0)")
        mfmas(0, read_items(1, 1), stat_items(0))
        k.e("s_barrier")
        k.e("s_waitcnt lgkmcnt(0)")
        mfmas(1, setaddr_items() + read_items(0, 0), stat_items(1))
    elif pp:
        assert XORST and NWC == 8
        dma()
        k.lines.extend(partB)
        zero_acc()
        stamp(k, 1)
        k.e("s_waitcnt vmcnt(0)")
        k.e("s_barrier")
        k.e("s_cmp_ge_u32 s19, 4")
        k.e("s_cbranch_scc1 %s" % lab("ypath"))

        NSPLIT = int(os.environ.get('NSPLIT', '8'))

        def loadphase(dm, rf=False):
            if not rf:
                for x in dm:
                    k.e(x)
            for x in read_items(0, 0) + read_items(1, 1):
                k.e(x)
            if rf:
                for x in dm:
                    k.e(x)
            for x in setaddr_items():
                k.e(x)
            k.e("s_waitcnt lgkmcnt(0)")
        RFX = 'rfx' in EXP; RFY = 'rfy' in EXP

        def compphase(dm):
            mfmas(0, dm)
            mfmas(1)
        di = dma_items()
        ny = len(di) - NSPLIT
        loadphase(di[:NSPLIT], RFX)
        k.e("s_barrier")
        k.lab(lab("xloop"))
        compphase(di[NSPLIT:])
        k.e("s_waitcnt vmcnt(0)")
        k.e("s_barrier")
        k.e("s_add_u32 s37, s37, 1")
        k.e("s_cmp_lt_u32 s37, %d" % nk)
        k.e("s_cbranch_scc0 %s" % lab("xlast"))
        loadphase(di[:NSPLIT], RFX)
        k.e("s_barrier")
        k.e("s_branch %s" % lab("xloop"))
        k.lab(lab("xlast"))
        ws_stats()
        k.e("v_and_b32 v%d, 15, v0" % (vfr + 36))
        k.e("s_lshl_b32 s25, s23, 6")
        k.e("v_add_u32 v%d, s25, v%d" % (vfr + 36, vfr + 36))
        k.e("v_lshlrev_b32 v%d, 3, v%d" % (vfr + 36, vfr + 36))
        k.e("v_add_u32 v%d, %d, v%d" % (vfr + 36, NS * STAGE, vfr + 36))
        for rb in range(RB):
            k.e("v_mov_b32 v%d, v%d" % (vfr + 40, vsum + rb))
            k.e("v_mov_b32 v%d, v%d" % (vfr + 41, vsq + rb))
            k.e("ds_write_b64 v%d, v[%d:%d] offset:%d" % (vfr + 36, vfr + 40, vfr + 41, rb * 128))
        k.e("s_waitcnt lgkmcnt(0)")
        k.e("s_barrier")
        k.e("s_branch %s" % lab("done"))
        k.lab(lab("ypath"))
        for x in di[:ny]:
            k.e(x)
        k.e("s_barrier")
        k.lab(lab("loop"))
        loadphase(di[ny:], RFY)
        k.e("s_waitcnt vmcnt(0)")
        k.e("s_barrier")
        compphase(di[:ny])
        k.e("s_barrier")
    else:
        dma()
        if ln == 'ws':
            ws_stats()
            zero_acc()
        stamp(k, 1)
        k.e("s_mov_b32 s38, 0")
        if not XORST:
            for x in setaddr_items():
                k.e(x)
        k.lab(lab("loop"))
        k.e("s_waitcnt vmcnt(0)")
        k.e("s_barrier")
        for x in read_items(0, 0):
            k.e(x)
        k.e("s_waitcnt lgkmcnt(0)")
        mfmas(0, read_items(1, 1) + dma_items(), stat_items(0))
        k.e("s_waitcnt lgkmcnt(0)")
        mfmas(1, setaddr_items(), stat_items(1))
    k.e("s_add_u32 s37, s37, 1")
    k.e("s_cmp_lt_u32 s37, %d" % nk)
    k.e("s_cbranch_scc1 %s" % lab("loop"))
    k.lab(lab("done"))
    k.e("s_waitcnt vmcnt(0) lgkmcnt(0)")
    if not NL:
        k.e("s_barrier")
    stamp(k, 3)
    k.e("s_nop 7")
    if ln == 'mfma':
        k.e("s_barrier")
        k.e("s_barrier")
        k.e("v_and_b32 v2, 15, v0")
        k.e("s_mul_i32 s25, s23, %d" % (RB * 16))
        k.e("v_add_u32 v2, s25, v2")
        k.e("v_lshlrev_b32 v2, 3, v2")
        for rb in range(RB):
            k.e("ds_read_b32 v%d, v2 offset:%d" % (vsum + rb, rb * 128))
            k.e("ds_read_b32 v%d, v2 offset:%d" % (vsq + rb, rb * 128 + 4))
        k.e("s_waitcnt lgkmcnt(0)")
        ln_finish(k, ctx, reduce=False)
    epi(k, ctx)
    stamp_store(k, 4, {'g1': 0, 'g2': 1, 'g3': 2, 'g4': 3}[name[:2]])
    k.lab(lab("end"))
    k.e("s_endpgm")
    return k


def row_base(k, c, ldc, va=1, vb=2):
    k.e("s_mul_i32 s25, s20, %d" % c["BM"])
    k.e("s_mul_i32 s26, s23, %d" % (c["RB"] * 16))
    k.e("s_add_u32 s25, s25, s26")
    k.e("v_and_b32 v%d, 15, v0" % va)
    k.e("v_add_u32 v%d, s25, v%d" % (va, va))
    k.e("s_mov_b32 s26, %d" % (ldc * 2))
    k.e("v_mul_lo_u32 v%d, v%d, s26" % (va, va))
    k.e("v_lshrrev_b32 v%d, 4, v0" % vb)
    k.e("v_lshlrev_b32 v%d, 3, v%d" % (vb, vb))
    k.e("v_add_u32 v%d, v%d, v%d" % (va, va, vb))


def col_off(k, c, cb, sreg, cmul):
    si, pmul, padd = c["colblocks"][cb]
    sb = sum(s[3] for s in c["subs"][:si])
    k.e("s_mul_i32 s%d, s21, %d" % (sreg, cmul * 2))
    k.e("s_mul_i32 s26, s24, %d" % (pmul * 32))
    k.e("s_add_u32 s%d, s%d, s26" % (sreg, sreg))
    k.e("s_add_u32 s%d, s%d, %d" % (sreg, sreg, (sb + padd * 16) * 2))


def res_prefetch(k, c, res):
    RB, CB = c["RB"], c["CB"]
    srd(k, 48, res[0], res[1], S * D * 2)
    t = c["vfr"]
    row_base(k, c, D, t, t + 1)
    tot = sum(s[3] for s in c["subs"])
    for cb in range(CB):
        col_off(k, c, cb, 25, tot)
        for rb in range(RB):
            k.e("v_add_u32 v%d, s25, v%d" % (t + 2, t))
            if rb:
                k.e("v_add_u32 v%d, %d, v%d" % (t + 2, rb * 16 * D * 2, t + 2))
            r = c["vres"] + 2 * (rb * CB + cb)
            k.e("buffer_load_dwordx2 v[%d:%d], v%d, s[48:51], 0 offen" % (r, r + 1, t + 2))


def ln_finish(k, c, reduce=True):
    RB = c["RB"]
    invK = {1024: "0x3a800000"}[c["Kdim"]]
    T = c.get("vtmp", 2)
    vs = [c["vsum"] + rb for rb in range(RB)] + [c["vsq"] + rb for rb in range(RB)]
    if reduce:
        for j, v in enumerate(vs):
            k.e("ds_swizzle_b32 v%d, v%d offset:0x401F" % (T + j, v))
        k.e("s_waitcnt lgkmcnt(0)")
        for j, v in enumerate(vs):
            k.e("v_add_f32 v%d, v%d, v%d" % (v, v, T + j))
        for j, v in enumerate(vs):
            k.e("v_mov_b32 v%d, v%d" % (T + j, v))
        k.e("s_nop 1")
        for j, v in enumerate(vs):
            k.e("v_permlane32_swap_b32 v%d, v%d" % (v, T + j))
        k.e("s_nop 1")
        for j, v in enumerate(vs):
            k.e("v_add_f32 v%d, v%d, v%d" % (v, v, T + j))
    R = range(RB)
    m = lambda rb: c["vsum"] + rb
    q = lambda rb: c["vsq"] + rb
    for rb in R:
        k.e("v_mul_f32 v%d, %s, v%d" % (m(rb), invK, m(rb)))
        k.e("v_mul_f32 v%d, %s, v%d" % (q(rb), invK, q(rb)))
    for rb in R:
        k.e("v_fma_f32 v%d, -v%d, v%d, v%d" % (q(rb), m(rb), m(rb), q(rb)))
    for rb in R:
        k.e("v_cvt_pk_bf16_f32 v%d, v%d, v%d" % (T + rb, m(rb), q(rb)))
    for rb in R:
        k.e("v_lshlrev_b32 v%d, 16, v%d" % (m(rb), T + rb))
        k.e("v_and_b32 v%d, 0xffff0000, v%d" % (q(rb), T + rb))
    for rb in R:
        k.e("v_add_f32 v%d, 0x3727c5ac, v%d" % (q(rb), q(rb)))
    for rb in R:
        k.e("v_cvt_pk_bf16_f32 v%d, v%d, v%d" % (T + rb, q(rb), q(rb)))
    for rb in R:
        k.e("v_lshlrev_b32 v%d, 16, v%d" % (q(rb), T + rb))
    for rb in R:
        k.e("v_sqrt_f32 v%d, v%d" % (q(rb), q(rb)))
    k.e("s_nop 0")
    for rb in R:
        k.e("v_cvt_pk_bf16_f32 v%d, v%d, v%d" % (T + rb, q(rb), q(rb)))
    for rb in R:
        k.e("v_lshlrev_b32 v%d, 16, v%d" % (q(rb), T + rb))
    for rb in R:
        k.e("v_rcp_f32 v%d, v%d" % (q(rb), q(rb)))
    k.e("s_nop 0")


def ln_apply(k, c, a, rb, cs):
    m = c["vsum"] + rb; q = c["vsq"] + rb
    for r in range(4):
        k.e("v_fma_f32 v%d, -v%d, v%d, v%d" % (a + r, m, cs + r, a + r))
    for r in range(4):
        k.e("v_mul_f32 v%d, v%d, v%d" % (a + r, a + r, q))


class LdsStore:
    def __init__(self, k, c, groups, ldc, srd_reg, NWC, vbase):
        self.k = k; self.c = c; self.groups = groups; self.ldc = ldc; self.srd = srd_reg
        self.off = []; o = 0
        for g in groups:
            self.off.append(o); o += 64 * len(g) * 32
        self.wbytes = o
        self.aw = {}
        v = vbase
        k.e("s_mul_i32 s27, s19, %d" % self.wbytes)
        for gi, g in enumerate(groups):
            CH = 2 * len(g); pitch = CH * 16
            for j, cb in enumerate(g):
                k.e("v_and_b32 v%d, 15, v0" % v)
                k.e("v_and_b32 v%d, %d, v0" % (v + 1, CH - 1))
                k.e("v_bfe_u32 v%d, v0, 5, 1" % (v + 2))
                k.e("v_or_b32 v%d, %d, v%d" % (v + 2, 2 * j, v + 2))
                k.e("v_xor_b32 v%d, v%d, v%d" % (v + 1, v + 1, v + 2))
                k.e("v_lshlrev_b32 v%d, 4, v%d" % (v + 1, v + 1))
                k.e("v_mul_u32_u24 v%d, %d, v%d" % (v, pitch, v))
                k.e("v_bfe_u32 v%d, v0, 4, 1" % (v + 2))
                k.e("v_lshlrev_b32 v%d, 3, v%d" % (v + 2, v + 2))
                k.e("v_add3_u32 v%d, v%d, v%d, v%d" % (v, v, v + 1, v + 2))
                k.e("v_add_u32 v%d, s27, v%d" % (v, v))
                self.aw[cb] = (v, gi, pitch); v += 1
        self.vfree = v + 2

    def put(self, rb, cb, a):
        v, gi, pitch = self.aw[cb]
        self.k.e("ds_write_b64 v%d, v[%d:%d] offset:%d" % (v, a, a + 1, self.off[gi] + rb * 16 * pitch))

    def flush(self, colbase_fn, vd):
        k = self.k; c = self.c
        k.e("s_waitcnt lgkmcnt(0)")
        v = self.vfree
        for gi, g in enumerate(self.groups):
            CH = 2 * len(g); pitch = CH * 16; rp = 64 // CH
            lg = CH.bit_length() - 1
            k.e("v_lshrrev_b32 v%d, %d, v0" % (v, lg))
            k.e("v_and_b32 v%d, %d, v0" % (v + 1, CH - 1))
            k.e("v_and_b32 v%d, %d, v%d" % (v + 2, CH - 1, v))
            k.e("v_xor_b32 v%d, v%d, v%d" % (v + 2, v + 2, v + 1))
            k.e("v_lshlrev_b32 v%d, 4, v%d" % (v + 2, v + 2))
            k.e("v_mul_u32_u24 v%d, %d, v%d" % (v + 3, pitch, v))
            k.e("v_add3_u32 v%d, v%d, v%d, s27" % (v + 2, v + 2, v + 3))
            k.e("s_mul_i32 s25, s20, %d" % c["BM"])
            k.e("s_mul_i32 s26, s23, %d" % (c["RB"] * 16))
            k.e("s_add_u32 s25, s25, s26")
            k.e("v_add_u32 v%d, s25, v%d" % (v, v))
            k.e("s_mov_b32 s26, %d" % (self.ldc * 2))
            k.e("v_mul_lo_u32 v%d, v%d, s26" % (v, v))
            k.e("v_lshlrev_b32 v%d, 4, v%d" % (v + 1, v + 1))
            colbase_fn(k, gi, 25)
            k.e("v_add3_u32 v%d, v%d, v%d, s25" % (v, v, v + 1))
            nj = 64 // rp
            for j in range(nj):
                k.e("ds_read_b128 v[%d:%d], v%d offset:%d" % (vd + 4 * j, vd + 4 * j + 3, v + 2, self.off[gi] + j * rp * pitch))
            for j in range(nj):
                k.e("s_waitcnt lgkmcnt(%d)" % (nj - 1 - j))
                if j:
                    k.e("v_add_u32 v%d, %d, v%d" % (v, rp * self.ldc * 2, v))
                k.e("buffer_store_dwordx4 v[%d:%d], v%d, s[%d:%d], 0 offen%s" % (vd + 4 * j, vd + 4 * j + 3, v, self.srd, self.srd + 3, STFLAG))
            k.e("s_nop 1")


def epi_store_factory(ldc, c_slot, c_off, c_bytes, part=False, groups=None):
    def epi(k, c):
        RB, CB, acc = c["RB"], c["CB"], c["acc"]
        srd(k, 40, c_slot, c_off, c_bytes)
        PS = c["vfr"]
        if groups:
            tot = sum(s[3] for s in c["subs"])
            k.e("s_barrier")
            ls = LdsStore(k, c, groups, ldc, 40, 4, c["vfr"])
            for cb in range(CB):
                for rb in range(RB):
                    a = acc(rb, cb)
                    if c["ln"]:
                        ln_apply(k, c, a, rb, c["vcs"] + 4 * cb)
                    k.e("v_cvt_pk_bf16_f32 v%d, v%d, v%d" % (a, a, a + 1))
                    k.e("v_cvt_pk_bf16_f32 v%d, v%d, v%d" % (a + 1, a + 2, a + 3))
                    ls.put(rb, cb, a)
            ls.flush(lambda k, gi, sreg: col_off(k, c, groups[gi][0], sreg, tot), c["vfr"] + 16)
            return
        if part:
            for rb in range(RB):
                k.e("v_mov_b32 v%d, 0" % (PS + 2 * rb))
                k.e("v_mov_b32 v%d, 0" % (PS + 1 + 2 * rb))
        row_base(k, c, ldc)
        tot = sum(s[3] for s in c["subs"])
        for cb in range(CB):
            col_off(k, c, cb, 25, tot)
            k.e("v_add_u32 v3, s25, v1")
            for rb in range(RB):
                a = acc(rb, cb)
                if c["ln"]:
                    ln_apply(k, c, a, rb, c["vcs"] + 4 * cb)
                k.e("v_cvt_pk_bf16_f32 v%d, v%d, v%d" % (a, a, a + 1))
                k.e("v_cvt_pk_bf16_f32 v%d, v%d, v%d" % (a + 1, a + 2, a + 3))
                if c["vres"] is not None:
                    r = c["vres"] + 2 * (rb * CB + cb)
                    for j in range(2):
                        k.e("v_lshlrev_b32 v6, 16, v%d" % (a + j))
                        k.e("v_and_b32 v7, 0xffff0000, v%d" % (a + j))
                        k.e("v_lshlrev_b32 v8, 16, v%d" % (r + j))
                        k.e("v_and_b32 v9, 0xffff0000, v%d" % (r + j))
                        k.e("v_add_f32 v6, v6, v8")
                        k.e("v_add_f32 v7, v7, v9")
                        k.e("v_cvt_pk_bf16_f32 v%d, v6, v7" % (a + j))
                        if part:
                            k.e("v_lshlrev_b32 v6, 16, v%d" % (a + j))
                            k.e("v_and_b32 v7, 0xffff0000, v%d" % (a + j))
                            k.e("v_add_f32 v%d, v%d, v6" % (PS + 2 * rb, PS + 2 * rb))
                            k.e("v_fmac_f32 v%d, v6, v6" % (PS + 1 + 2 * rb))
                            k.e("v_add_f32 v%d, v%d, v7" % (PS + 2 * rb, PS + 2 * rb))
                            k.e("v_fmac_f32 v%d, v7, v7" % (PS + 1 + 2 * rb))
                k.e("v_add_u32 v4, %d, v3" % (rb * 16 * ldc * 2))
                k.e("buffer_store_dwordx2 v[%d:%d], v4, s[40:43], 0 offen" % (a, a + 1))
        if part:
            srd(k, 44, KA_WS, WS_PART, S * 256)
            for v in range(PS, PS + 2 * RB):
                k.e("ds_swizzle_b32 v2, v%d offset:0x401F" % v)
                k.e("s_waitcnt lgkmcnt(0)")
                k.e("v_add_f32 v%d, v%d, v2" % (v, v))
                k.e("v_mov_b32 v2, v%d" % v)
                k.e("s_nop 1")
                k.e("v_permlane32_swap_b32 v%d, v2" % v)
                k.e("v_add_f32 v%d, v%d, v2" % (v, v))
            k.e("s_mul_i32 s25, s20, %d" % c["BM"])
            k.e("s_mul_i32 s26, s23, %d" % (RB * 16))
            k.e("s_add_u32 s25, s25, s26")
            k.e("v_add_u32 v1, s25, v0")
            k.e("v_lshlrev_b32 v1, 4, v1")
            k.e("s_lshl_b32 s25, s21, 15")
            k.e("s_lshl_b32 s26, s24, 3")
            k.e("s_add_u32 s25, s25, s26")
            k.e("v_add_u32 v1, s25, v1")
            k.e("v_cmp_gt_u32 vcc, 16, v0")
            k.e("s_and_saveexec_b64 s[52:53], vcc")
            for rb in range(RB):
                k.e("v_add_u32 v2, %d, v1" % (rb * 256))
                k.e("buffer_store_dwordx2 v[%d:%d], v2, s[44:47], 0 offen" % (PS + 2 * rb, PS + 1 + 2 * rb))
            k.e("s_mov_b64 exec, s[52:53]")
    return epi


def epi_swiglu(k, c):
    RB, CB, acc, colblocks, subs = c["RB"], c["CB"], c["acc"], c["colblocks"], c["subs"]
    ldc = F
    srd(k, 40, KA_WS, WS_ACT, S * F * 2)
    srd(k, 44, KA_WS, WS_CS, 2 * F * 4)
    half = CB // 2
    width = subs[0][3]
    vc = c["vfr"]
    assert 8 * half <= 32
    k.e("v_lshrrev_b32 v2, 4, v0")
    k.e("v_lshlrev_b32 v2, 4, v2")
    for cb in range(half):
        si, pmul, padd = colblocks[cb]
        assert si == 0 and colblocks[cb + half] == (1, pmul, padd)
        k.e("s_mul_i32 s25, s21, %d" % (width * 4))
        k.e("s_mul_i32 s26, s24, %d" % (pmul * 64))
        k.e("s_add_u32 s25, s25, s26")
        k.e("s_add_u32 s25, s25, %d" % (padd * 64))
        k.e("v_add_u32 v3, s25, v2")
        k.e("buffer_load_dwordx4 v[%d:%d], v3, s[44:47], 0 offen" % (vc + 8 * cb, vc + 8 * cb + 3))
        k.e("v_add_u32 v3, %d, v3" % (F * 4))
        k.e("buffer_load_dwordx4 v[%d:%d], v3, s[44:47], 0 offen" % (vc + 8 * cb + 4, vc + 8 * cb + 7))
    c["ws_stats"]()
    stamp(k, 2)
    ls = LdsStore(k, c, [list(range(half))], ldc, 40, 8, c["vfr"] + 40)
    for rb in range(RB):
        m = c["vsum"] + rb; q = c["vsq"] + rb
        k.e("v_sub_f32 v8, 0, v%d" % m)
        k.e("v_sub_f32 v9, 0, v%d" % m)
        k.e("v_mul_f32 v10, 0xbfb8aa3b, v%d" % q)
        k.e("v_mul_f32 v11, 0xbfb8aa3b, v%d" % q)
        k.e("v_mul_f32 v12, v%d, v%d" % (q, q))
        k.e("v_mul_f32 v13, v%d, v%d" % (q, q))
        for cb in range(half):
            g = acc(rb, cb); u = acc(rb, cb + half)
            cg = vc + 8 * cb; cu = cg + 4
            for r in (0, 2):
                k.e("v_pk_fma_f32 v[%d:%d], v[8:9], v[%d:%d], v[%d:%d]" % (g + r, g + r + 1, cg + r, cg + r + 1, g + r, g + r + 1))
            for r in (0, 2):
                k.e("v_pk_mul_f32 v[%d:%d], v[%d:%d], v[10:11]" % (4 + r, 5 + r, g + r, g + r + 1))
            for r in range(4):
                k.e("v_exp_f32 v%d, v%d" % (4 + r, 4 + r))
            for r in (0, 2):
                k.e("v_pk_fma_f32 v[%d:%d], v[8:9], v[%d:%d], v[%d:%d]" % (u + r, u + r + 1, cu + r, cu + r + 1, u + r, u + r + 1))
            for r in (0, 2):
                k.e("v_pk_add_f32 v[%d:%d], v[%d:%d], 1.0 op_sel_hi:[1,0]" % (4 + r, 5 + r, 4 + r, 5 + r))
            for r in range(4):
                k.e("v_rcp_f32 v%d, v%d" % (4 + r, 4 + r))
            for r in (0, 2):
                k.e("v_pk_mul_f32 v[%d:%d], v[%d:%d], v[%d:%d]" % (g + r, g + r + 1, g + r, g + r + 1, u + r, u + r + 1))
            for r in (0, 2):
                k.e("v_pk_mul_f32 v[%d:%d], v[%d:%d], v[12:13]" % (4 + r, 5 + r, 4 + r, 5 + r))
            for r in (0, 2):
                k.e("v_pk_mul_f32 v[%d:%d], v[%d:%d], v[%d:%d]" % (g + r, g + r + 1, g + r, g + r + 1, 4 + r, 5 + r))
            k.e("v_cvt_pk_bf16_f32 v%d, v%d, v%d" % (g, g, g + 1))
            k.e("v_cvt_pk_bf16_f32 v%d, v%d, v%d" % (g + 1, g + 2, g + 3))
            ls.put(rb, cb, g)

    def colbase(k, gi, sreg):
        si, pmul, padd = colblocks[0]
        k.e("s_mul_i32 s%d, s21, %d" % (sreg, width * 2))
        k.e("s_mul_i32 s26, s24, %d" % (pmul * 32))
        k.e("s_add_u32 s%d, s%d, s26" % (sreg, sreg))
    ls.flush(colbase, c["vfr"] + 56)


def gen_attn(name):
    MIMIC = 'mimic' in EXP
    NATT = 512
    NCS = 2 * F // 64
    NPF = 32
    NH = NCS + NPF
    nwg = NATT + NH
    KV_ROWS = 384
    K_LDS = 0
    V_LDS = KV_ROWS * 64
    k = Kern(name, (nwg, 1, 1), (256, 1, 1), 2 * KV_ROWS * 64, 0)
    lab = lambda s: "%s_%s" % (name, s)
    k.e("s_cmp_ge_u32 s2, %d" % nwg)
    k.e("s_cbranch_scc1 %s" % lab("end"))
    load_ptrs(k)
    if 'hlast' in EXP:
        k.e("s_sub_u32 s2, s2, %d" % NATT)
        k.e("s_cmp_lt_u32 s2, %d" % NH)
        k.e("s_cbranch_scc1 %s" % lab("cs"))
        k.e("s_add_u32 s2, s2, %d" % NATT)
    else:
        k.e("s_cmp_lt_u32 s2, %d" % NH)
        k.e("s_cbranch_scc1 %s" % lab("cs"))
        k.e("s_sub_u32 s2, s2, %d" % NH)
    stamp(k, 0)
    srd(k, 4, KA_WS, WS_QKV, S * 3 * D * 2)
    srd(k, 8, KA_WS, WS_O, S * D * 2)
    k.e("s_and_b32 s20, s2, 31")
    k.e("s_lshr_b32 s21, s2, 5")
    k.e("v_lshrrev_b32 v1, 6, v0")
    k.e("s_nop 0")
    k.e("v_readfirstlane_b32 s22, v1")
    k.e("v_and_b32 v0, 63, v0")
    k.e("""
    v_lshrrev_b32 v1, 2, v0
    v_and_b32 v2, 3, v0
    v_bfe_u32 v3, v0, 4, 2
    v_xor_b32 v2, v2, v3
    v_lshlrev_b32 v2, 4, v2
    s_lshl_b32 s23, s21, 7
    s_mul_i32 s24, s22, 96
    s_add_u32 s23, s23, s24
    s_sub_u32 s23, s23, 256
    v_add_u32 v1, s23, v1
    s_mov_b32 s24, %d
    v_mul_lo_u32 v1, v1, s24
    v_add_u32 v1, v1, v2
    s_lshl_b32 s24, s20, 6
    v_add_u32 v1, s24, v1
    s_mul_i32 s25, s22, 6144
    """ % (3 * D * 2))
    for mat, ldsb in ((1, K_LDS), (2, V_LDS)):
        for t in range(6):
            k.e("v_add_u32 v2, %d, v1" % (t * 16 * 3 * D * 2 + mat * D * 2))
            k.e("s_add_u32 m0, s25, %d" % (ldsb + t * 1024))
            k.e("s_nop 0")
            k.e("buffer_load_dwordx4 v2, s[4:7], 0 offen lds")
    k.e("""
    s_lshl_b32 s23, s21, 7
    s_lshl_b32 s24, s22, 5
    s_add_u32 s23, s23, s24
    v_and_b32 v1, 31, v0
    v_add_u32 v1, s23, v1
    s_mov_b32 s24, %d
    v_mul_lo_u32 v1, v1, s24
    v_lshrrev_b32 v2, 5, v0
    v_lshlrev_b32 v2, 4, v2
    s_lshl_b32 s24, s20, 6
    v_add3_u32 v1, v1, v2, s24
    buffer_load_dwordx4 v[4:7], v1, s[4:7], 0 offen
    buffer_load_dwordx4 v[8:11], v1, s[4:7], 0 offen offset:32
    v_and_b32 v1, 31, v0
    v_lshlrev_b32 v12, 6, v1
    v_bfe_u32 v2, v0, 2, 2
    v_lshrrev_b32 v3, 5, v0
    v_xor_b32 v13, v3, v2
    v_lshlrev_b32 v13, 4, v13
    v_add_u32 v13, v12, v13
    v_or_b32 v3, 2, v3
    v_xor_b32 v14, v3, v2
    v_lshlrev_b32 v14, 4, v14
    v_add_u32 v14, v12, v14
    s_lshl_b32 s24, s22, 11
    v_add_u32 v13, s24, v13
    v_add_u32 v14, s24, v14
    v_bfe_u32 v1, v0, 5, 1
    v_lshlrev_b32 v1, 2, v1
    v_bfe_u32 v2, v0, 2, 2
    v_add_u32 v1, v1, v2
    v_bfe_u32 v2, v0, 4, 1
    v_lshlrev_b32 v2, 1, v2
    v_bfe_u32 v3, v0, 1, 1
    v_or_b32 v2, v2, v3
    v_and_b32 v3, 1, v0
    v_lshlrev_b32 v3, 3, v3
    """ % (3 * D * 2))
    for j in range(4):
        k.e("v_add_u32 v19, %d, v1" % (8 * j))
        k.e("v_bfe_u32 v20, v19, 2, 2")
        k.e("v_xor_b32 v20, v20, v2")
        k.e("v_lshlrev_b32 v20, 4, v20")
        k.e("v_lshlrev_b32 v19, 6, v19")
        k.e("v_add3_u32 v%d, v19, v20, v3" % (15 + j))
        k.e("v_add_u32 v%d, s24, v%d" % (15 + j, 15 + j))
    k.e("s_waitcnt vmcnt(0)")
    k.e("s_barrier")
    stamp(k, 1)
    SB = 48
    k.e("ds_read_b128 v[20:23], v13 offset:%d" % K_LDS)
    k.e("ds_read_b128 v[24:27], v14 offset:%d" % K_LDS)
    for b in range(9):
        f = 20 + 8 * (b & 1); fn = 20 + 8 * ((b + 1) & 1)
        if b < 8:
            k.e("ds_read_b128 v[%d:%d], v13 offset:%d" % (fn, fn + 3, K_LDS + (b + 1) * 2048))
            k.e("ds_read_b128 v[%d:%d], v14 offset:%d" % (fn + 4, fn + 7, K_LDS + (b + 1) * 2048))
            k.e("s_waitcnt lgkmcnt(2)")
        else:
            k.e("s_waitcnt lgkmcnt(0)")
        s0 = SB + b * 16
        k.e("v_mfma_f32_32x32x16_bf16 v[%d:%d], v[%d:%d], v[4:7], 0" % (s0, s0 + 15, f, f + 3))
        k.e("v_mfma_f32_32x32x16_bf16 v[%d:%d], v[%d:%d], v[8:11], v[%d:%d]" % (s0, s0 + 15, f + 4, f + 7, s0, s0 + 15))
    k.e("s_nop 15")
    NSR = 144
    stamp(k, 2)
    if MIMIC:
        for r in range(0, NSR, 2):
            a = SB + r
            k.e("v_cvt_pk_bf16_f32 v36, v%d, v%d" % (a, a + 1))
            k.e("v_lshlrev_b32 v%d, 16, v36" % a)
            k.e("v_and_b32 v%d, 0xffff0000, v36" % (a + 1))
            k.e("v_mul_f32 v%d, 0x3e3504f3, v%d" % (a, a))
            k.e("v_mul_f32 v%d, 0x3e3504f3, v%d" % (a + 1, a + 1))
            k.e("v_cvt_pk_bf16_f32 v36, v%d, v%d" % (a, a + 1))
            k.e("v_lshlrev_b32 v%d, 16, v36" % a)
            k.e("v_and_b32 v%d, 0xffff0000, v36" % (a + 1))
        k.e("s_mov_b32 s26, 0x3fb8aa3b")
    else:
        k.e("s_mov_b32 s26, 0x3e8293ee")
    k.e("v_and_b32 v1, 31, v0")
    k.e("v_lshrrev_b32 v2, 5, v0")
    k.e("v_lshlrev_b32 v2, 2, v2")
    k.e("v_sub_u32 v1, v1, v2")
    k.e("v_mov_b32 v3, 0xce6e6b28")
    for r in range(16):
        c = (r & 3) + 8 * (r >> 2)
        k.e("v_cmp_ge_i32 vcc, v1, %d" % c)
        k.e("s_nop 1")
        k.e("v_cndmask_b32 v%d, v%d, v3, vcc" % (SB + r, SB + r))
        k.e("v_cndmask_b32 v%d, v3, v%d, vcc" % (SB + 128 + r, SB + 128 + r))
    k.e("s_lshl_b32 s23, s21, 2")
    k.e("s_add_u32 s23, s23, s22")
    k.e("s_cmp_ge_u32 s23, 8")
    k.e("s_cbranch_scc1 %s" % lab("nomask"))
    for b in range(8):
        k.e("s_cmp_lt_u32 s23, %d" % (8 - b))
        k.e("s_cbranch_scc0 %s" % lab("nm%d" % b))
        for r in range(16):
            k.e("v_mov_b32 v%d, v3" % (SB + b * 16 + r))
        k.lab(lab("nm%d" % b))
    k.lab(lab("nomask"))
    k.e("v_max_f32 v1, v%d, v%d" % (SB, SB + 1))
    for r in range(2, NSR, 2):
        k.e("v_max3_f32 v1, v1, v%d, v%d" % (SB + r, SB + r + 1))
    k.e("v_mov_b32 v2, v1")
    k.e("s_nop 1")
    k.e("v_permlane32_swap_b32 v1, v2")
    k.e("v_max_f32 v1, v1, v2")
    k.e("v_mul_f32 v1, s26, v1")
    k.e("v_sub_f32 v36, 0, v1")
    k.e("v_sub_f32 v37, 0, v1")
    k.e("v_mov_b32 v38, s26")
    k.e("v_mov_b32 v39, s26")
    k.e("v_mov_b32 v2, 0")
    k.e("v_mov_b32 v3, 0")
    PB = None
    for b in range(9):
        for r in range(0, 16, 2):
            a = SB + b * 16 + r
            k.e("v_pk_fma_f32 v[%d:%d], v[%d:%d], v[38:39], v[36:37]" % (a, a + 1, a, a + 1))
        for r in range(16):
            a = SB + b * 16 + r
            k.e("v_exp_f32 v%d, v%d" % (a, a))
        k.e("s_nop 0")
        if not MIMIC:
            for j in range(8):
                a = SB + b * 16 + 2 * j
                k.e("v_pk_add_f32 v[2:3], v[2:3], v[%d:%d]" % (a, a + 1))
                k.e("v_cvt_pk_bf16_f32 v%d, v%d, v%d" % (SB + b * 16 + j, a, a + 1))
    if MIMIC:
        for r in range(NSR):
            k.e("v_add_f32 v2, v2, v%d" % (SB + r))
    k.e("v_add_f32 v2, v2, v3")
    k.e("v_mov_b32 v3, v2")
    k.e("s_nop 1")
    k.e("v_permlane32_swap_b32 v2, v3")
    k.e("v_add_f32 v2, v2, v3")
    k.e("v_rcp_f32 v2, v2")
    k.e("s_nop 0")
    if MIMIC:
        for b in range(9):
            for j in range(8):
                a = SB + b * 16 + 2 * j
                k.e("v_mul_f32 v%d, v%d, v2" % (a, a))
                k.e("v_mul_f32 v%d, v%d, v2" % (a + 1, a + 1))
                k.e("v_cvt_pk_bf16_f32 v%d, v%d, v%d" % (SB + b * 16 + j, a, a + 1))
    OA = 192
    stamp(k, 3)
    for j in range(4):
        k.e("ds_read_b64_tr_b16 v[%d:%d], v%d offset:%d" % (20 + 2 * j, 21 + 2 * j, 15 + j, V_LDS))
    for b in range(9):
        f = 20 + 8 * (b & 1); fn = 20 + 8 * ((b + 1) & 1)
        if b < 8:
            for j in range(4):
                k.e("ds_read_b64_tr_b16 v[%d:%d], v%d offset:%d" % (fn + 2 * j, fn + 2 * j + 1, 15 + j, V_LDS + (b + 1) * 2048))
            k.e("s_waitcnt lgkmcnt(4)")
        else:
            k.e("s_waitcnt lgkmcnt(0)")
        p = SB + b * 16
        if b == 0:
            k.e("v_mfma_f32_32x32x16_bf16 v[%d:%d], v[%d:%d], v[%d:%d], 0" % (OA, OA + 15, f, f + 3, p, p + 3))
        else:
            k.e("v_mfma_f32_32x32x16_bf16 v[%d:%d], v[%d:%d], v[%d:%d], v[%d:%d]" % (OA, OA + 15, f, f + 3, p, p + 3, OA, OA + 15))
        k.e("v_mfma_f32_32x32x16_bf16 v[%d:%d], v[%d:%d], v[%d:%d], v[%d:%d]" % (OA, OA + 15, f + 4, f + 7, p + 4, p + 7, OA, OA + 15))
    k.e("""
    s_lshl_b32 s23, s21, 7
    s_lshl_b32 s24, s22, 5
    s_add_u32 s23, s23, s24
    v_and_b32 v1, 31, v0
    v_add_u32 v1, s23, v1
    v_lshlrev_b32 v1, 11, v1
    v_lshrrev_b32 v3, 5, v0
    v_lshlrev_b32 v3, 3, v3
    s_lshl_b32 s24, s20, 6
    v_add3_u32 v1, v1, v3, s24
    s_nop 7
    """)
    if not MIMIC:
        for r in range(16):
            k.e("v_mul_f32 v%d, v%d, v2" % (OA + r, OA + r))
    for j in range(4):
        k.e("v_cvt_pk_bf16_f32 v%d, v%d, v%d" % (208 + 2 * j, OA + 4 * j, OA + 1 + 4 * j))
        k.e("v_cvt_pk_bf16_f32 v%d, v%d, v%d" % (209 + 2 * j, OA + 2 + 4 * j, OA + 3 + 4 * j))
        k.e("buffer_store_dwordx2 v[%d:%d], v1, s[8:11], 0 offen offset:%d" % (208 + 2 * j, 209 + 2 * j, 16 * j))
    stamp_store(k, 4, 4)
    k.e("s_endpgm")
    k.lab(lab("cs"))
    k.e("s_cmp_ge_u32 s2, %d" % NCS)
    k.e("s_cbranch_scc1 %s" % lab("pf"))
    k.e("s_mov_b32 s20, s2")
    k.e("s_cmp_lt_u32 s20, 56")
    k.e("s_cselect_b32 s4, s%d, s%d" % (PTR0 + 2 * KA_W1, PTR0 + 2 * KA_W3))
    k.e("s_cselect_b32 s5, s%d, s%d" % (PTR0 + 2 * KA_W1 + 1, PTR0 + 2 * KA_W3 + 1))
    k.e("s_cselect_b32 s21, 0, 56")
    k.e("s_and_b32 s5, s5, 0xffff")
    k.e("s_mov_b32 s6, %d" % (D * F * 2))
    k.e("s_mov_b32 s7, 0x00020000")
    k.e("s_sub_u32 s21, s20, s21")
    srd(k, 8, KA_WS, WS_CS, 2 * F * 4)
    k.e("""
    v_lshrrev_b32 v1, 3, v0
    v_and_b32 v2, 7, v0
    s_mov_b32 s22, %d
    v_mul_lo_u32 v1, v1, s22
    v_lshlrev_b32 v2, 4, v2
    s_lshl_b32 s22, s21, 7
    v_add3_u32 v1, v1, v2, s22
    """ % (F * 2))
    for r in range(8):
        k.e("v_mov_b32 v%d, 0" % (8 + r))
    for half in range(1):
        for i in range(32):
            k.e("v_add_u32 v2, %d, v1" % (i * 32 * F * 2))
            k.e("buffer_load_dwordx4 v[%d:%d], v2, s[4:7], 0 offen" % (16 + 4 * i, 19 + 4 * i))
        for i in range(32):
            k.e("s_waitcnt vmcnt(%d)" % (31 - i))
            for j in range(4):
                k.e("v_lshlrev_b32 v3, 16, v%d" % (16 + 4 * i + j))
                k.e("v_and_b32 v4, 0xffff0000, v%d" % (16 + 4 * i + j))
                k.e("v_add_f32 v%d, v%d, v3" % (8 + 2 * j, 8 + 2 * j))
                k.e("v_add_f32 v%d, v%d, v4" % (9 + 2 * j, 9 + 2 * j))
    k.e("v_lshlrev_b32 v2, 5, v0")
    k.e("ds_write_b128 v2, v[8:11]")
    k.e("ds_write_b128 v2, v[12:15] offset:16")
    k.e("s_waitcnt lgkmcnt(0)")
    k.e("s_barrier")
    k.e("v_cmp_gt_u32 vcc, 64, v0")
    k.e("s_and_saveexec_b64 s[24:25], vcc")
    k.e("s_cbranch_execz %s" % lab("end"))
    k.e("v_lshlrev_b32 v2, 2, v0")
    for i in range(32):
        k.e("ds_read_b32 v%d, v2 offset:%d" % (16 + i, i * 256))
    k.e("s_waitcnt lgkmcnt(0)")
    for i in range(1, 32):
        k.e("v_add_f32 v16, v16, v%d" % (16 + i))
    k.e("s_lshl_b32 s22, s20, 8")
    k.e("v_add_u32 v2, s22, v2")
    k.e("buffer_store_dword v16, v2, s[8:11], 0 offen")
    k.e("s_endpgm")
    k.lab(lab("pf"))
    k.e("s_sub_u32 s20, s2, %d" % NCS)
    k.e("s_cmp_lt_u32 s20, 0")
    k.e("s_cselect_b32 s4, s%d, s%d" % (PTR0 + 2 * KA_W2, PTR0 + 2 * KA_WO))
    k.e("s_cselect_b32 s5, s%d, s%d" % (PTR0 + 2 * KA_W2 + 1, PTR0 + 2 * KA_WO + 1))
    k.e("s_mov_b32 s23, %d" % (D * D * 2))
    k.e("s_cselect_b32 s6, %d, s23" % (F * D * 2))
    k.e("s_cselect_b32 s21, 0, 0")
    k.e("s_mov_b32 s22, 65536")
    k.e("s_and_b32 s5, s5, 0xffff")
    k.e("s_mov_b32 s7, 0x00020000")
    k.e("s_sub_u32 s21, s20, s21")
    k.e("s_mul_i32 s21, s21, s22")
    k.e("v_lshlrev_b32 v1, 4, v0")
    k.e("v_add_u32 v1, s21, v1")
    for i in range(16):
        k.e("buffer_load_dwordx4 v[%d:%d], v1, s[4:7], 0 offen" % (8 + 4 * i, 11 + 4 * i))
        k.e("v_add_u32 v1, 4096, v1")
    k.e("s_waitcnt vmcnt(0)")
    k.lab(lab("end"))
    k.e("s_endpgm")
    k.nvgpr = 216
    return k


def gen_g3(name, npf=32):
    BM = 256; RB = 4; CB = 8; NWC = 8; R = 5; STAGE = 32768; nk = 32
    ntm, ntn = 8, 28
    nwg = ntm * ntn
    subs = [(KA_W1, 0, F, 128, 128), (KA_W3, 0, F, 128, 128)]
    colblocks = [(0, 4, j) for j in range(4)] + [(1, 4, j) for j in range(4)]
    sub_lds = [16384, 24576]
    k = Kern(name, (nwg + npf, 1, 1), (512, 1, 1), R * STAGE, 0)
    lab = lambda s: "%s_%s" % (name, s)
    k.e("s_cmp_ge_u32 s2, %d" % (nwg + npf))
    k.e("s_cbranch_scc1 %s" % lab("end"))
    stamp(k, 0)
    load_ptrs(k)
    k.e("s_cmp_lt_u32 s2, %d" % nwg)
    k.e("s_cbranch_scc1 %s" % lab("main"))
    srd(k, 4, KA_W2, 0, F * D * 2)
    per = F * D * 2 // npf
    k.e("s_sub_u32 s20, s2, %d" % nwg)
    k.e("s_mul_i32 s20, s20, %d" % per)
    k.e("v_lshlrev_b32 v1, 4, v0")
    k.e("v_add_u32 v1, s20, v1")
    for i in range(per // 8192):
        k.e("buffer_load_dwordx4 v[%d:%d], v1, s[4:7], 0 offen" % (8 + 4 * i, 11 + 4 * i))
        k.e("v_add_u32 v1, 8192, v1")
    k.e("s_waitcnt vmcnt(0)")
    k.e("s_endpgm")
    k.lab(lab("main"))
    srd(k, 4, KA_WS, WS_H, S * D * 2)
    srd(k, 8, KA_W1, 0, D * F * 2)
    srd(k, 12, KA_W3, 0, D * F * 2)
    k.e("""
    s_and_b32 s25, s2, 7
    s_lshr_b32 s26, s2, 3
    s_and_b32 s20, s25, 1
    s_mul_i32 s20, s20, 4
    s_and_b32 s27, s26, 3
    s_add_u32 s20, s20, s27
    s_lshr_b32 s21, s25, 1
    s_mul_i32 s21, s21, 7
    s_lshr_b32 s27, s26, 2
    s_add_u32 s21, s21, s27
    v_lshrrev_b32 v1, 6, v0
    s_nop 0
    v_readfirstlane_b32 s19, v1
    s_and_b32 s23, s19, 3
    s_lshr_b32 s24, s19, 2
    v_and_b32 v0, 63, v0
    """)
    vAd, vBd = 2, 4
    vAb = 6
    vAr = 15
    vsum, vsq = 24, 28
    vfr = 36
    vacc = vfr + 88
    T0, T1, T2 = vfr, vfr + 1, vfr + 2
    acc = lambda rb, cb: vacc + (rb * CB + cb) * 4
    vend = vacc + RB * CB * 4
    k.nvgpr = vend
    fA = lambda rb: vfr + 4 * rb
    fB = lambda cb: vfr + 16 + 4 * cb
    def sw(dst, rg, t):
        k.e("v_lshlrev_b32 v%d, 1, v%d" % (dst, rg))
        k.e("v_and_b32 v%d, 3, v%d" % (dst, dst))
        k.e("v_lshrrev_b32 v%d, 1, v%d" % (t, rg))
        k.e("v_mul_u32_u24 v%d, 3, v%d" % (t, t))
        k.e("v_xor_b32 v%d, v%d, v%d" % (dst, dst, t))
    k.e("v_bfe_u32 v1, v0, 4, 2")
    sw(T0, 1, T1)
    k.e("v_and_b32 v%d, 3, v0" % T1)
    k.e("v_xor_b32 v%d, v%d, v%d" % (T0, T0, T1))
    k.e("v_lshlrev_b32 v%d, 4, v%d" % (T0, T0))
    k.e("v_lshrrev_b32 v1, 2, v0")
    k.e("s_lshl_b32 s25, s19, 5")
    k.e("s_lshl_b32 s26, s20, 8")
    k.e("s_add_u32 s25, s25, s26")
    k.e("v_add_u32 v1, s25, v1")
    k.e("v_lshlrev_b32 v1, 11, v1")
    k.e("v_add_u32 v%d, v1, v%d" % (vAd, T0))
    k.e("v_add_u32 v%d, %d, v%d" % (vAd + 1, 16 * 2048, vAd))
    k.e("v_lshrrev_b32 v1, 4, v0")
    k.e("s_lshl_b32 s25, s19, 2")
    k.e("v_add_u32 v1, s25, v1")
    k.e("v_and_b32 v%d, 3, v1" % T0)
    k.e("v_lshrrev_b32 v%d, 1, v1" % T1)
    k.e("v_and_b32 v%d, 4, v%d" % (T1, T1))
    k.e("v_or_b32 v%d, v%d, v%d" % (T0, T0, T1))
    k.e("v_lshlrev_b32 v%d, 1, v%d" % (T0, T0))
    k.e("v_and_b32 v%d, 15, v0" % T1)
    k.e("v_xor_b32 v%d, v%d, v%d" % (T0, T0, T1))
    k.e("v_lshlrev_b32 v%d, 4, v%d" % (T0, T0))
    k.e("s_mov_b32 s26, %d" % (F * 2))
    k.e("v_mul_lo_u32 v1, v1, s26")
    k.e("s_lshl_b32 s26, s21, 8")
    k.e("v_add3_u32 v%d, v1, v%d, s26" % (vBd, T0))
    k.e("v_mov_b32 v%d, v%d" % (vBd + 1, vBd))
    k.e("v_bfe_u32 v1, v0, 2, 2")
    sw(T0, 1, T1)
    k.e("v_lshrrev_b32 v%d, 4, v0" % T1)
    k.e("v_xor_b32 v%d, v%d, v%d" % (T0, T0, T1))
    k.e("v_lshlrev_b32 v%d, 4, v%d" % (T0, T0))
    k.e("v_and_b32 v1, 15, v0")
    k.e("v_lshlrev_b32 v1, 6, v1")
    k.e("s_lshl_b32 s25, s23, 12")
    k.e("v_add3_u32 v%d, v1, v%d, s25" % (vAb, T0))
    for cb, (si, pmul, padd) in enumerate(colblocks):
        k.e("""
        v_lshrrev_b32 v1, 4, v0
        v_lshlrev_b32 v1, 3, v1
        v_bfe_u32 v%d, v0, 2, 2
        v_add_u32 v1, v1, v%d
        v_bfe_u32 v%d, v0, 4, 1
        v_lshlrev_b32 v%d, 2, v%d
        v_or_b32 v%d, v%d, v%d
        """ % (T0, T0, T1, T1, T1, T1, T1, T0))
        k.e("s_mul_i32 s25, s24, %d" % pmul)
        k.e("s_add_u32 s25, s25, %d" % padd)
        k.e("v_xor_b32 v%d, s25, v%d" % (T1, T1))
        k.e("v_lshlrev_b32 v%d, 5, v%d" % (T1, T1))
        k.e("v_lshlrev_b32 v1, 8, v1")
        k.e("v_and_b32 v%d, 3, v0" % T2)
        k.e("v_lshlrev_b32 v%d, 3, v%d" % (T2, T2))
        k.e("v_add3_u32 v%d, v1, v%d, v%d" % (vAb + 1 + cb, T1, T2))
        k.e("v_add_u32 v%d, %d, v%d" % (vAb + 1 + cb, sub_lds[si], vAb + 1 + cb))
    for r in range(vacc, vend):
        k.e("v_mov_b32 v%d, 0" % r)
    k.e("""
    s_mov_b32 s30, 0
    s_mov_b32 s31, 0
    s_mov_b32 s34, 0
    s_lshl_b32 s35, s19, 11
    s_lshl_b32 s44, s19, 10
    s_add_u32 s45, s44, 24576
    s_add_u32 s44, s44, 16384
    s_mov_b32 s37, 0
    s_mov_b32 s38, 0
    """)

    def dma():
        k.e("""
        s_add_u32 s36, s34, s35
        s_mov_b32 m0, s36
        s_nop 0
        buffer_load_dwordx4 v%d, s[4:7], s30 offen lds
        s_add_u32 m0, s36, 1024
        s_nop 0
        buffer_load_dwordx4 v%d, s[4:7], s30 offen lds
        s_add_u32 m0, s34, s44
        s_nop 0
        buffer_load_dwordx4 v%d, s[8:11], s31 offen lds
        s_add_u32 m0, s34, s45
        s_nop 0
        buffer_load_dwordx4 v%d, s[12:15], s31 offen lds
        s_add_u32 s30, s30, 64
        s_add_u32 s31, s31, %d
        s_add_u32 s34, s34, %d
        s_cmp_eq_u32 s34, %d
        s_cselect_b32 s34, 0, s34
        """ % (vAd, vAd + 1, vBd, vBd + 1, 32 * F * 2, STAGE, R * STAGE))

    def loadphase():
        dma()
        for r in range(9):
            k.e("v_add_u32 v%d, s38, v%d" % (vAr + r, vAb + r))
        k.e("s_add_u32 s38, s38, %d\ns_cmp_eq_u32 s38, %d\ns_cselect_b32 s38, 0, s38" % (STAGE, R * STAGE))
        for rb in range(RB):
            k.e("ds_read_b128 v[%d:%d], v%d offset:%d" % (fA(rb), fA(rb) + 3, vAr, rb * 1024))
        for cb in range(CB):
            k.e("ds_read_b64_tr_b16 v[%d:%d], v%d" % (fB(cb), fB(cb) + 1, vAr + 1 + cb))
            k.e("ds_read_b64_tr_b16 v[%d:%d], v%d offset:1024" % (fB(cb) + 2, fB(cb) + 3, vAr + 1 + cb))
        k.e("s_waitcnt lgkmcnt(0)")

    def compphase():
        for rb in range(RB):
            for cb in range(CB):
                a = acc(rb, cb)
                k.e("v_mfma_f32_16x16x32_bf16 v[%d:%d], v[%d:%d], v[%d:%d], v[%d:%d]" % (
                    a, a + 3, fB(cb), fB(cb) + 3, fA(rb), fA(rb) + 3, a, a + 3))

    for _ in range(4):
        dma()
    stamp(k, 1)
    k.e("s_waitcnt vmcnt(12)")
    k.e("s_barrier")
    k.e("s_cmp_ge_u32 s19, 4")
    k.e("s_cbranch_scc1 %s" % lab("ypath"))
    loadphase()
    k.e("s_barrier")
    k.lab(lab("xloop"))
    compphase()
    k.e("s_waitcnt vmcnt(12)")
    k.e("s_barrier")
    loadphase()
    k.e("s_barrier")
    k.e("s_add_u32 s37, s37, 1")
    k.e("s_cmp_lt_u32 s37, %d" % nk)
    k.e("s_cbranch_scc1 %s" % lab("xloop"))
    k.e("s_branch %s" % lab("done"))
    k.lab(lab("ypath"))
    k.e("s_barrier")
    k.lab(lab("loop"))
    loadphase()
    k.e("s_waitcnt vmcnt(12)")
    k.e("s_barrier")
    compphase()
    k.e("s_barrier")
    k.e("s_add_u32 s37, s37, 1")
    k.e("s_cmp_lt_u32 s37, %d" % nk)
    k.e("s_cbranch_scc1 %s" % lab("loop"))
    k.lab(lab("done"))
    k.e("s_waitcnt vmcnt(0) lgkmcnt(0)")
    k.e("s_barrier")
    stamp(k, 3)
    k.e("s_nop 7")
    ctx = dict(RB=RB, CB=CB, acc=acc, colblocks=colblocks, subs=subs, BM=BM, vend=vend, vres=None, ln='ws',
               vsum=vsum, vsq=vsq, vcs=None, Kdim=1024, lab=lab, vfr=vfr)

    def ws_stats():
        srd(k, 48, KA_WS, WS_PART, S * 256)
        t = vfr + 36
        dbase = [vfr + 40, vfr + 56, vfr + 72, 4]
        k.e("s_mul_i32 s25, s20, %d" % BM)
        k.e("s_mul_i32 s26, s23, %d" % (RB * 16))
        k.e("s_add_u32 s25, s25, s26")
        k.e("v_and_b32 v%d, 15, v0" % t)
        k.e("v_add_u32 v%d, s25, v%d" % (t, t))
        k.e("v_lshlrev_b32 v%d, 4, v%d" % (t, t))
        k.e("v_lshrrev_b32 v%d, 4, v0" % (t + 1))
        k.e("v_lshlrev_b32 v%d, 17, v%d" % (t + 1, t + 1))
        k.e("v_add_u32 v%d, v%d, v%d" % (t, t, t + 1))
        for j in range(4):
            if j:
                k.e("v_add_u32 v%d, 32768, v%d" % (t, t))
            for rb in range(RB):
                d = dbase[rb] + 4 * j
                k.e("buffer_load_dwordx4 v[%d:%d], v%d, s[48:51], 0 offen offset:%d" % (d, d + 3, t, 256 * rb))
        k.e("s_waitcnt vmcnt(0)")
        for rb in range(RB):
            d = dbase[rb]
            k.e("v_add_f32 v%d, v%d, v%d" % (vsum + rb, d, d + 2))
            k.e("v_add_f32 v%d, v%d, v%d" % (vsq + rb, d + 1, d + 3))
            for j in range(2, 8):
                k.e("v_add_f32 v%d, v%d, v%d" % (vsum + rb, vsum + rb, d + 2 * j))
                k.e("v_add_f32 v%d, v%d, v%d" % (vsq + rb, vsq + rb, d + 2 * j + 1))
        ctx["vtmp"] = vfr + 40
        ln_finish(k, ctx)
    ctx["ws_stats"] = ws_stats
    epi_swiglu(k, ctx)
    stamp_store(k, 4, 2)
    k.lab(lab("end"))
    k.e("s_endpgm")
    return k


def build():
    ks = []
    ks.append(gen_gemm("g1_kernel", 128, 2, 2, 1024, KA_X, 0,
                       [(KA_WQKV, 0, 3072, 128, 192), (KA_WQKV, 256, 3072, 64, 192)],
                       [(0, 4, 0), (0, 4, 1), (0, 4, 2), (0, 4, 3), (1, 2, 0), (1, 2, 1)], 16,
                       epi_store_factory(3072, KA_WS, WS_QKV, S * 3072 * 2, groups=[[0, 1, 2, 3], [4, 5]]), (4, 8), NL=4, ln='mfma'))
    ks.append(gen_attn("attn_kernel"))
    ks.append(gen_gemm("g2_kernel", 128, 2, 2, 1024, KA_WS, WS_O, [(KA_WO, 0, 1024, 64, 64)],
                       [(0, 2, 0), (0, 2, 1)], 16,
                       epi_store_factory(1024, KA_WS, WS_H, S * D * 2, part=True), (4, 8), NL=int(os.environ.get('NL24', '4')), res=(KA_X, 0)))
    if 'newg3' not in EXP:
        ks.append(gen_gemm("g3_kernel", 256, 4, 2, 1024, KA_WS, WS_H,
                           [(KA_W1, 0, F, 128, 128), (KA_W3, 0, F, 128, 128)],
                           [(0, 4, j) for j in range(4)] + [(1, 4, j) for j in range(4)], 28, epi_swiglu, (4, 7), ln='ws', pp=True, npf=32))
    else:
        ks.append(gen_g3("g3_kernel"))
    ks.append(gen_gemm("g4_kernel", 128, 2, 2, F, KA_WS, WS_ACT, [(KA_W2, 0, 1024, 64, 64)],
                       [(0, 2, 0), (0, 2, 1)], 16,
                       epi_store_factory(1024, KA_OUT, 0, S * D * 2), (4, 8), NL=int(os.environ.get('NL24', '4')), res=(KA_WS, WS_H)))
    return ks


def main():
    ks = build()
    out = [HEADER.rstrip()]
    for k in ks:
        out.append("; @launch kernel=%s grid=(%d,%d,%d) block=(%d,%d,%d) lds=%d" % ((k.name,) + k.grid + k.block + (k.lds,)))
    out.append('.amdgcn_target "amdgcn-amd-amdhsa--gfx950"')
    out.append(".text")
    for k in ks:
        out.append(k.text())
    out.append('.section .rodata,"a"')
    for k in ks:
        out.append(".p2align 6")
        out.append(k.desc())
    open(sys.argv[1] if len(sys.argv) > 1 else "sequential_preLN__sliding_block__glu_gated_swiglu__prompt.s", "w").write("\n".join(out) + "\n")


if __name__ == "__main__":
    main()
```
